```python
import torch

def _softmax(x, axis=-1):
    return torch.softmax(x, dim=axis)
def _gelu(x):
    return torch.nn.functional.gelu(x, approximate="tanh")
def _silu(x):
    return torch.nn.functional.silu(x)
def _sigmoid(x):
    return torch.sigmoid(x)
def _layernorm(x, axis=-1, eps=1e-5):
    m = x.mean(dim=axis, keepdim=True)
    v = x.var(dim=axis, keepdim=True, unbiased=False)
    return (x - m) / torch.sqrt(v + eps)
def _scatter_add(tgt, idx, src, axis=0):
    return tgt.clone().index_add_(axis, idx, src)
def _segment_sum(src, seg, n):
    out = torch.zeros((n,) + src.shape[1:], dtype=src.dtype)
    return out.index_add_(0, seg, src)
def _pad(x, pw):
    flat = tuple(v for pair in reversed(pw) for v in pair)
    return torch.nn.functional.pad(x, flat)

kernel_name = 'interleave_layers__sliding_block__dense_activation_squared_relu__prompt'

def setup_inputs():

    _w = (lambda a: (lambda t: t.to(torch.bfloat16) if t.is_floating_point() else t)(torch.as_tensor(a)))
    def _A_setup():
        B, S, D = 1, 2048, 512
        return {
            "x": _w((lambda *s: torch.randn(*s, dtype=torch.bfloat16) * 0.05)(B, S, D)),
            "wqkv": _w((lambda *s: torch.randn(*s, dtype=torch.bfloat16) * 0.05)(D, 3 * D)),
            "wo": _w((lambda *s: torch.randn(*s, dtype=torch.bfloat16) * 0.05)(D, D)),
        }
    _A_in = _A_setup()

    def _B_setup():
        B, S, D, F = 1, 2048, 512, 1792
        return {
            "x": _w((lambda *s: torch.randn(*s, dtype=torch.bfloat16) * 0.05)(B, S, D)),
            "w1": _w((lambda *s: torch.randn(*s, dtype=torch.bfloat16) * 0.05)(D, F)),
            "b1": _w((lambda *s: torch.randn(*s, dtype=torch.bfloat16) * 0.2)(F)),
            "w2": _w((lambda *s: torch.randn(*s, dtype=torch.bfloat16) * 0.05)(F, D)),
            "b2": _w((lambda *s: torch.randn(*s, dtype=torch.bfloat16) * 0.8)(D)),
        }
    _B_in = _B_setup()

    return {
        "A_x": _A_in["x"],
        "A_wqkv": _A_in["wqkv"],
        "A_wo": _A_in["wo"],
        "B_x": _B_in["x"],
        "B_w1": _B_in["w1"],
        "B_b1": _B_in["b1"],
        "B_w2": _B_in["w2"],
        "B_b2": _B_in["b2"],
    }

def reference(A_x, A_wqkv, A_wo, B_x, B_w1, B_b1, B_w2, B_b2):
    def _A_ref(x, wqkv, wo):
        B, S, D = x.shape
        H = 32; Dh = D // H; W = 256
        qkv = (lambda x, *d: x.permute(*d))((x @ wqkv).reshape(B, S, 3, H, Dh), 2, 0, 3, 1, 4)
        q, k, v = qkv[0], qkv[1], qkv[2]
        scores = torch.einsum("bhqd,bhkd->bhqk", q, k) * (Dh ** -0.5)
        idx = torch.arange(S)
        mask = (idx[:, None] - idx[None, :] >= 0) & (idx[:, None] - idx[None, :] < W)
        scores = torch.where(mask[None, None], scores, -1e9)
        p = _softmax(scores, axis=-1)
        o = torch.einsum("bhqk,bhkd->bhqd", p, v)
        return (lambda x, *d: x.permute(*d))(o, 0, 2, 1, 3).reshape(B, S, D) @ wo

    def _B_ref(x, w1, b1, w2, b2):
        h = torch.einsum("bsd,df->bsf", x, w1) + b1
        zero = torch.zeros_like(h)
        r = torch.where(h > zero, h, zero)
        h = r * r
        out = torch.einsum("bsf,fd->bsd", h, w2) + b2
        return out

    x = A_x
    x = x + _A_ref(_layernorm(x, axis=-1), A_wqkv, A_wo)
    x = x + _B_ref(_layernorm(x, axis=-1), B_w1, B_b1, B_w2, B_b2)
    x = x + _A_ref(_layernorm(x, axis=-1), A_wqkv, A_wo)
    x = x + _B_ref(_layernorm(x, axis=-1), B_w1, B_b1, B_w2, B_b2)
    return x
```

```python
import sys, argparse

NAME = "interleave_layers__sliding_block__dense_activation_squared_relu__prompt"

TF   = 0x0
KVF  = 0x1000
STAMP= 0x10000
XF   = 0x100000
X2F  = 0x300000
OF   = 0x500000
ST1  = 0x700000
ST2  = 0x740000
KF   = 0x800000
VF   = 0xC00000
HF   = 0x1000000
LSTRIDE = 0x200000

L_W    = 0
L_KST  = 0
L_VST  = 24576
L_QST  = 49152
L_WO   = 65536
L_EX   = 131072
L_STA  = 147456
L_MD   = 151552
L_MF   = L_MD + 4096
L_MB   = L_MF + 4096
L_CS1  = L_MB + 2048
L_CS4  = L_CS1 + 512
L_B1   = L_CS4 + 512
L_B2   = L_B1 + 512
L_MODE = L_B2 + 256
LDS_BYTES = 163840
assert L_MODE + 16 <= LDS_BYTES

NEG = 0xF149F2CA
QSCALE = 0.25 * 1.4426950408889634
import struct
def f2u(f): return struct.unpack("<I", struct.pack("<f", f))[0]

sWS, sWQ, sWO, sW1, sW2, sX, sOUT, sDBG, sTS = 8, 12, 16, 20, 24, 28, 32, 36, 40
sB, sI, sW, sMODE, sL, sTEAM, sMYF, sFAIL = 44, 45, 46, 47, 48, 49, 50, 51
sT0 = 52
sKA = 64
sM16 = 86
sM32 = 88
sTGT = 90
sCNT = 91
sXCC = 92
sN   = 93
sKVO = 94
def srd(x): return f"s[{x}:{x+3}]"
def sp(x): return f"s[{x}:{x+1}]"
def vr(a, n=1): return f"v{a}" if n == 1 else f"v[{a}:{a+n-1}]"

vLANE, vL16 = 0, 1
vRES = 248

class Asm:
    def __init__(self):
        self.l = []; self.uid = 0
    def e(self, s): self.l.append("  " + s)
    def lab(self, s): self.l.append(s + ":")
    def c(self, s): self.l.append("  ; " + s)
    def new(self, p="L"):
        self.uid += 1; return f"{p}_{self.uid}"
    def text(self): return "\n".join(self.l) + "\n"
    def nop(self, n):
        while n > 0:
            k = min(n, 16); self.e(f"s_nop {k-1}"); n -= k

def build(args):
    a = Asm(); e = a.e
    STOP = args.stop
    POLL_LIMIT = 1 << 18

    def stamp(idx):
        if not args.stamps: return
        e(f"s_memtime s[96:97]")
        e(f"s_lshl_b32 s98, s2, 3")
        e(f"s_add_u32 s98, s98, s{sW}")
        e(f"s_lshl_b32 s98, s98, 8")
        e(f"s_lshl_b32 s99, s{sL}, 7")
        e(f"s_add_u32 s98, s98, s99")
        e(f"s_add_u32 s98, s98, {STAMP + idx*4}")
        e("s_waitcnt lgkmcnt(0)")
        e(f"v_mov_b32 v2, s96")
        e(f"v_mov_b32 v3, 0")
        e(f"s_mov_b64 s[100:101], exec")
        e("s_mov_b64 exec, 1")
        e(f"buffer_store_dword v2, v3, {srd(sWS)}, s98 offen")
        e(f"s_mov_b64 exec, s[100:101]")

    def endif_stop(k):
        if STOP == k:
            e("s_waitcnt vmcnt(0) lgkmcnt(0)")
            e("s_branch L_end")

    def poll(voff, soff, tgt, vtmp):
        L = a.new("L_poll"); D = a.new("L_pdone")
        e(f"s_mov_b32 s{sCNT}, {POLL_LIMIT}")
        e(f"s_cmp_eq_u32 s{sFAIL}, 0")
        e(f"s_cbranch_scc0 {D}")
        a.lab(L)
        e(f"buffer_load_dword v{vtmp}, v{voff}, {srd(sWS)}, s{soff} offen sc1")
        e("s_waitcnt vmcnt(0)")
        e(f"v_cmp_gt_u32 vcc, s{tgt}, v{vtmp}")
        e(f"s_cbranch_vccz {D}")
        e(f"s_sub_u32 s{sCNT}, s{sCNT}, 1")
        e(f"s_cbranch_scc0 {L}")
        e(f"s_mov_b32 s{sFAIL}, 1")
        a.lab(D)

    def moded(fn):
        F = a.new("L_fast"); J = a.new("L_join")
        e(f"s_cmp_eq_u32 s{sMODE}, 1")
        e(f"s_cbranch_scc1 {F}")
        fn(" sc1")
        e(f"s_branch {J}")
        a.lab(F)
        fn("")
        a.lab(J)

    def team_flag(val_sreg, vt):
        e(f"v_mov_b32 v{vt}, s{val_sreg}")
        e(f"v_mov_b32 v{vt+1}, 0")
        e("s_mov_b64 exec, 1")
        moded(lambda fl: e(f"buffer_store_dword v{vt}, v{vt+1}, {srd(sWS)}, s{sMYF} offen{fl}"))
        e("s_mov_b64 exec, -1")

    def team_wait(delta, vt):
        e(f"s_lshl_b32 s{sTGT}, s{sL}, 2")
        e(f"s_add_u32 s{sTGT}, s{sTGT}, {1 + delta}")
        e(f"v_lshlrev_b32 v{vt}, 2, v{vLANE}")
        poll(vt, sTEAM, sTGT, vt + 1)

    def team_signal(delta, vt):
        e(f"s_lshl_b32 s{sT0}, s{sL}, 2")
        e(f"s_add_u32 s{sT0}, s{sT0}, {1 + delta}")
        team_flag(sT0, vt)

    def tr_base_common(vrow, vcol, vt):
        e(f"v_lshrrev_b32 v{vrow}, 5, v{vLANE}")
        e(f"v_lshlrev_b32 v{vrow}, 2, v{vrow}")
        e(f"v_bfe_u32 v{vt}, v{vLANE}, 2, 2")
        e(f"v_add_u32 v{vrow}, v{vrow}, v{vt}")
        e(f"v_bfe_u32 v{vcol}, v{vLANE}, 4, 1")
        e(f"v_lshlrev_b32 v{vcol}, 5, v{vcol}")
        e(f"v_and_b32 v{vt}, 3, v{vLANE}")
        e(f"v_lshlrev_b32 v{vt}, 3, v{vt}")
        e(f"v_add_u32 v{vcol}, v{vcol}, v{vt}")

    def dma_loop(srd_reg, voff, soff_reg, soff_step, lds_step, count):
        L = a.new("L_dma")
        e(f"s_mov_b32 s{sCNT}, {count}")
        a.lab(L)
        e(f"buffer_load_dwordx4 v{voff}, {srd(srd_reg)}, s{soff_reg} offen lds")
        e(f"s_add_u32 m0, m0, {lds_step}")
        e(f"s_add_u32 s{soff_reg}, s{soff_reg}, {soff_step}")
        e(f"s_sub_u32 s{sCNT}, s{sCNT}, 1")
        e(f"s_cmp_lg_u32 s{sCNT}, 0")
        e(f"s_cbranch_scc1 {L}")

    def dma_wqkv():
        S = a.new("L_skip")
        e(f"s_cmp_lt_u32 s{sW}, 5"); e(f"s_cbranch_scc1 {S}")
        e(f"v_lshrrev_b32 v2, 2, v{vLANE}")
        e(f"v_mul_u32_u24 v2, 3072, v2")
        e(f"v_and_b32 v3, 3, v{vLANE}")
        e(f"v_lshl_add_u32 v2, v3, 4, v2")
        e(f"s_sub_u32 s{sT0}, s{sW}, 5")
        e(f"s_lshl_b32 s{sT0+1}, s{sT0}, 10")
        e(f"s_lshl_b32 s{sT0+2}, s{sI}, 6")
        e(f"s_add_u32 s{sT0+1}, s{sT0+1}, s{sT0+2}")
        e(f"s_lshl_b32 m0, s{sT0}, 15")
        dma_loop(sWQ, 2, sT0+1, 16*3072, 1024, 32)
        a.lab(S)

    def dma_n64_voff(v, vt):
        e(f"v_lshrrev_b32 v{v}, 3, v{vLANE}")
        e(f"v_lshlrev_b32 v{v}, 10, v{v}")
        e(f"v_lshrrev_b32 v{vt}, 2, v{vLANE}")
        e(f"v_lshrrev_b32 v{vt+1}, 4, v{vLANE}")
        e(f"v_xor_b32 v{vt}, v{vt}, v{vt+1}")
        e(f"v_and_b32 v{vt}, 1, v{vt}")
        e(f"v_lshl_add_u32 v{v}, v{vt}, 6, v{v}")
        e(f"v_and_b32 v{vt}, 3, v{vLANE}")
        e(f"v_lshl_add_u32 v{v}, v{vt}, 4, v{v}")

    def dma_wo():
        dma_n64_voff(2, 3)
        e(f"s_sub_u32 s{sT0}, s{sW}, 4")
        e(f"s_and_b32 s{sT0+1}, s{sI}, 7")
        e(f"s_lshl_b32 s{sT0+1}, s{sT0+1}, 7")
        e(f"s_lshl_b32 s{sT0+2}, s{sT0}, 17")
        e(f"s_add_u32 s{sT0+1}, s{sT0+1}, s{sT0+2}")
        e(f"s_lshl_b32 s{sT0+2}, s{sT0}, 14")
        e(f"s_add_u32 m0, s{sT0+2}, {L_WO}")
        dma_loop(sWO, 2, sT0+1, 8192, 1024, 16)

    def dma_w1():
        e(f"v_lshrrev_b32 v2, 4, v{vLANE}")
        e(f"v_bfe_u32 v3, v{vLANE}, 2, 2")
        e(f"v_xor_b32 v3, v3, v2")
        e(f"v_mul_u32_u24 v2, 3584, v2")
        e(f"v_lshl_add_u32 v2, v3, 6, v2")
        e(f"v_and_b32 v3, 3, v{vLANE}")
        e(f"v_lshl_add_u32 v2, v3, 4, v2")
        e(f"s_sub_u32 s{sT0}, s{sW}, 4")
        e(f"s_lshl_b32 s{sT0+1}, s{sI}, 8")
        e(f"s_mul_i32 s{sT0+2}, s{sT0}, {32*4*3584}")
        e(f"s_add_u32 s{sT0+1}, s{sT0+1}, s{sT0+2}")
        e(f"s_lshl_b32 m0, s{sT0}, 15")
        dma_loop(sW1, 2, sT0+1, 4*3584, 1024, 32)

    def dma_w2_chunk(q, first):
        if first: dma_n64_voff(2, 3)
        e(f"s_sub_u32 s{sT0}, s{sW}, 4")
        e(f"s_lshr_b32 s{sT0+1}, s{sT0}, 1")
        e(f"s_and_b32 s{sT0+2}, s{sT0}, 1")
        e(f"s_mul_i32 s{sT0+3}, s{sT0+1}, {896*1024}")
        e(f"s_lshl_b32 s{sT0+4}, s{sT0+2}, 16")
        e(f"s_add_u32 s{sT0+3}, s{sT0+3}, s{sT0+4}")
        e(f"s_and_b32 s{sT0+4}, s{sI}, 7")
        e(f"s_lshl_b32 s{sT0+4}, s{sT0+4}, 7")
        e(f"s_add_u32 s{sT0+3}, s{sT0+3}, s{sT0+4}")
        e(f"s_add_u32 s{sT0+3}, s{sT0+3}, {q*128*1024}")
        e(f"s_lshl_b32 s{sT0+4}, s{sT0}, 13")
        e(f"s_add_u32 m0, s{sT0+4}, {(q%4)*32768}")
        dma_loop(sW2, 2, sT0+3, 8192, 1024, 8)

    def colsum(nt_kind):
        S = a.new("L_cs_skip")
        e(f"s_cmp_lg_u32 s{sL}, 0"); e(f"s_cbranch_scc1 {S}")
        if nt_kind == "qkv":
            e(f"s_cmp_eq_u32 s{sW}, 7"); e(f"s_cbranch_scc1 {S}")
        tr_base_common(4, 5, 6)
        e(f"s_sub_u32 s{sT0}, s{sW}, 4")
        if nt_kind == "qkv":
            e(f"v_lshl_add_u32 v4, v4, 6, v5")
            e(f"s_lshl_b32 s{sT0+1}, s{sT0}, 15")
            e(f"v_add_u32 v4, s{sT0+1}, v4")
            step, second, cs = 1024, 512, L_CS1
        else:
            e(f"v_and_b32 v6, 3, v4")
            e(f"v_xor_b32 v6, s{sT0}, v6")
            e(f"v_lshl_add_u32 v5, v6, 6, v5")
            e(f"v_lshl_add_u32 v4, v4, 8, v5")
            step, second, cs = 4096, 2048, L_CS4
        for r in range(8, 12): e(f"v_mov_b32 v{r}, 0")
        L = a.new("L_cs")
        e(f"s_mov_b32 s{sCNT}, 32")
        a.lab(L)
        e(f"ds_read_b64_tr_b16 v[12:13], v4")
        e(f"ds_read_b64_tr_b16 v[14:15], v4 offset:{second}")
        e(f"v_add_u32 v4, {step}, v4")
        e("s_waitcnt lgkmcnt(0)")
        for d in range(4):
            e(f"v_lshlrev_b32 v16, 16, v{12+d}")
            e(f"v_and_b32 v17, 0xffff0000, v{12+d}")
            e(f"v_pk_add_f32 v[{8+2*(d%2)}:{9+2*(d%2)}], v[{8+2*(d%2)}:{9+2*(d%2)}], v[16:17]")
        e(f"s_sub_u32 s{sCNT}, s{sCNT}, 1")
        e(f"s_cmp_lg_u32 s{sCNT}, 0")
        e(f"s_cbranch_scc1 {L}")
        e("v_add_f32 v8, v8, v9"); e("v_add_f32 v10, v10, v11"); e("v_add_f32 v8, v8, v10")
        e("v_mov_b32 v9, v8"); a.nop(2)
        e("v_permlane32_swap_b32 v9, v8"); a.nop(1)
        e("v_add_f32 v8, v8, v9")
        e(f"s_lshl_b32 s{sT0+1}, s{sT0}, 7")
        e(f"s_add_u32 s{sT0+1}, s{sT0+1}, {cs}")
        e(f"v_lshl_add_u32 v10, v{vLANE}, 2, s{sT0+1}")
        e(f"s_mov_b64 exec, {sp(sM32)}")
        e("ds_write_b32 v10, v8")
        e("s_mov_b64 exec, -1")
        e("s_waitcnt lgkmcnt(0)")
        a.lab(S)

    def load_stats(st_base, vdst, voff):
        e(f"v_lshrrev_b32 v{voff}, 5, v{vLANE}")
        e(f"v_lshlrev_b32 v{voff}, 11, v{voff}")
        e(f"v_and_b32 v{voff+1}, 31, v{vLANE}")
        e(f"v_lshl_add_u32 v{voff}, v{voff+1}, 3, v{voff}")
        e(f"s_lshl_b32 s{sT0+5}, s{sT0+4}, 12")
        e(f"s_add_u32 s{sT0+5}, s{sT0+5}, {st_base}")
        for k in range(8):
            e(f"buffer_load_dwordx2 v[{vdst+2*k}:{vdst+2*k+1}], v{voff}, {srd(sWS)}, s{sT0+5} offen offset:{k*256} sc1")

    def finish_stats(vsrc, vA, vB, vt):
        for k in (1, 3, 5, 7):
            e(f"v_pk_add_f32 v[{vsrc+2*(k-1)}:{vsrc+2*(k-1)+1}], v[{vsrc+2*(k-1)}:{vsrc+2*(k-1)+1}], v[{vsrc+2*k}:{vsrc+2*k+1}]")
        e(f"v_pk_add_f32 v[{vsrc}:{vsrc+1}], v[{vsrc}:{vsrc+1}], v[{vsrc+4}:{vsrc+5}]")
        e(f"v_pk_add_f32 v[{vsrc+8}:{vsrc+9}], v[{vsrc+8}:{vsrc+9}], v[{vsrc+12}:{vsrc+13}]")
        e(f"v_pk_add_f32 v[{vsrc}:{vsrc+1}], v[{vsrc}:{vsrc+1}], v[{vsrc+8}:{vsrc+9}]")
        e(f"v_mov_b32 v{vsrc+2}, v{vsrc}")
        e(f"v_mov_b32 v{vsrc+3}, v{vsrc+1}")
        a.nop(2)
        e(f"v_permlane32_swap_b32 v{vsrc+2}, v{vsrc}")
        e(f"v_permlane32_swap_b32 v{vsrc+3}, v{vsrc+1}")
        a.nop(1)
        e(f"v_pk_add_f32 v[{vsrc}:{vsrc+1}], v[{vsrc}:{vsrc+1}], v[{vsrc+2}:{vsrc+3}]")
        e(f"v_mul_f32 v{vsrc}, {f2u(1/512):#x}, v{vsrc}")
        e(f"v_mul_f32 v{vsrc+1}, {f2u(1/512):#x}, v{vsrc+1}")
        e(f"v_fma_f32 v{vsrc+1}, -v{vsrc}, v{vsrc}, v{vsrc+1}")
        e(f"v_max_f32 v{vsrc+1}, 0, v{vsrc+1}")
        e(f"v_add_f32 v{vsrc+1}, {f2u(1e-5):#x}, v{vsrc+1}")
        e(f"v_rsq_f32 v{vA}, v{vsrc+1}")
        a.nop(1)
        e(f"v_mul_f32 v{vB}, v{vsrc}, v{vA}")

    def load_x(base, nsteps_total, s0, n, vdst, tile_sreg):
        e(f"s_mul_i32 s{sT0+6}, s{tile_sreg}, {nsteps_total*1024}")
        e(f"s_add_u32 s{sT0+6}, s{sT0+6}, {base}")
        if isinstance(s0, tuple):
            e(f"s_lshl_b32 s{sT0+7}, s{s0[1]}, 10")
            e(f"s_add_u32 s{sT0+6}, s{sT0+6}, s{sT0+7}")
        elif s0:
            e(f"s_add_u32 s{sT0+6}, s{sT0+6}, {s0*1024}")
        for k in range(n):
            if k and k % 4 == 0:
                e(f"s_add_u32 s{sT0+6}, s{sT0+6}, 4096")
            e(f"buffer_load_dwordx4 v[{vdst+4*k}:{vdst+4*k+3}], v{vL16}, {srd(sWS)}, s{sT0+6} offen offset:{(k%4)*1024} sc1")

    e("s_cmp_ge_u32 s2, 256")
    e("s_cbranch_scc1 L_end")
    e(f"s_load_dwordx16 s[{sKA}:{sKA+15}], s[0:1], 0")
    e(f"s_load_dwordx4 s[{sKA+16}:{sKA+19}], s[0:1], 64")
    e(f"s_load_dwordx2 s[{sKA+20}:{sKA+21}], s[0:1], 80")
    e(f"v_lshrrev_b32 v2, 6, v0")
    e(f"v_and_b32 v{vLANE}, 63, v0")
    e(f"v_readfirstlane_b32 s{sW}, v2")
    e(f"v_lshlrev_b32 v{vL16}, 4, v{vLANE}")
    e(f"s_and_b32 s{sB}, s2, 7")
    e(f"s_lshl_b32 s{sB}, s{sB}, 1")
    e(f"s_lshr_b32 s{sT0}, s2, 7")
    e(f"s_or_b32 s{sB}, s{sB}, s{sT0}")
    e(f"s_bfe_u32 s{sI}, s2, 0x40003")
    e(f"s_mov_b32 s{sL}, 0")
    e(f"s_mov_b32 s{sFAIL}, 0")
    e(f"s_mov_b32 s{sKVO}, 0")
    e(f"s_mov_b32 s{sM16}, 0x0000ffff"); e(f"s_mov_b32 s{sM16+1}, 0x0000ffff")
    e(f"s_mov_b32 s{sM32}, -1"); e(f"s_mov_b32 s{sM32+1}, 0")
    e(f"s_getreg_b32 s{sXCC}, hwreg(HW_REG_XCC_ID, 0, 4)")
    e(f"s_lshl_b32 s{sTEAM}, s{sB}, 8")
    if TF: e(f"s_add_u32 s{sTEAM}, s{sTEAM}, {TF}")
    e(f"s_lshl_b32 s{sMYF}, s{sI}, 4")
    e(f"s_add_u32 s{sMYF}, s{sMYF}, s{sTEAM}")
    e(f"s_and_b32 s{sT0}, s{sW}, 3")
    e(f"s_lshl_b32 s{sT0}, s{sT0}, 2")
    e(f"s_add_u32 s{sMYF}, s{sMYF}, s{sT0}")
    e("s_waitcnt lgkmcnt(0)")
    def mk(dst, src, size):
        e(f"s_mov_b32 s{dst}, s{src}")
        e(f"s_and_b32 s{dst+1}, s{src+1}, 0xffff")
        e(f"s_mov_b32 s{dst+2}, {size}")
        e(f"s_mov_b32 s{dst+3}, 0x00020000")
    mk(sX, sKA+0, 2048*512*2)
    mk(sWQ, sKA+2, 512*1536*2)
    mk(sWO, sKA+4, 512*512*2)
    mk(sW1, sKA+8, 512*1792*2)
    mk(sW2, sKA+12, 1792*512*2)
    mk(sOUT, sKA+16, 2048*512*2)
    mk(sDBG, sKA+18, 256)
    mk(sWS, sKA+20, 0x10000000)
    stamp(0)
    e(f"s_cmp_ge_u32 s{sW}, 4")
    e("s_cbranch_scc1 L_pro_helper")
    e(f"s_lshl_b32 s{sT0}, s{sB}, 7")
    e(f"s_lshl_b32 s{sT0+1}, s{sI}, 3")
    e(f"s_add_u32 s{sT0}, s{sT0}, s{sT0+1}")
    e(f"s_lshl_b32 s{sT0+1}, s{sW}, 1")
    e(f"s_add_u32 s{sT0}, s{sT0}, s{sT0+1}")
    e(f"s_lshl_b32 s{sT0+1}, s{sT0}, 10")
    e(f"buffer_load_dwordx4 v[8:11], v{vL16}, {srd(sX)}, s{sT0+1} offen")
    e(f"buffer_load_dwordx4 v[12:15], v{vL16}, {srd(sX)}, s{sT0+1} offen offset:1024")
    Lw1, Lw2, Lw3, Ltab = a.new("L_w1"), a.new("L_w2"), a.new("L_w3"), a.new("L_tabdone")
    e(f"v_and_b32 v16, 31, v{vLANE}")
    e(f"v_lshrrev_b32 v17, 5, v{vLANE}")
    e(f"v_lshlrev_b32 v17, 2, v17")
    e(f"v_sub_u32 v16, v16, v17")
    e(f"v_mov_b32 v18, 0")
    e(f"v_mov_b32 v19, {NEG:#x}")
    e(f"s_cmp_eq_u32 s{sW}, 3"); e(f"s_cbranch_scc1 {Lw3}")
    e(f"s_cmp_eq_u32 s{sW}, 2"); e(f"s_cbranch_scc1 {Lw2}")
    e(f"s_cmp_eq_u32 s{sW}, 1"); e(f"s_cbranch_scc1 {Lw1}")
    for (lab, base, inv) in ((None, L_MD, False), (Lw1, L_MF, True)):
        if lab: a.lab(lab)
        for g in range(4):
            for i in range(4):
                e(f"v_cmp_le_i32 vcc, {8*g+i}, v16")
                a.nop(2)
                if not inv: e(f"v_cndmask_b32 v{20+i}, v19, v18, vcc")
                else:       e(f"v_cndmask_b32 v{20+i}, v18, v19, vcc")
            e(f"v_add_u32 v24, {base + g*1024}, v{vL16}")
            e(f"ds_write_b128 v24, v[20:23]")
            a.nop(2)
        e(f"s_branch {Ltab}")
    a.lab(Lw2)
    e(f"v_mov_b32 v25, 0xffff"); e(f"v_mov_b32 v26, 0xffff0000")
    for half in range(2):
        for dd in range(4):
            d = half*4 + dd
            r0, r1 = 2*d, 2*d+1
            c0 = 8*(r0 >> 2) + (r0 & 3); c1 = 8*(r1 >> 2) + (r1 & 3)
            e(f"v_cmp_le_i32 vcc, {c0}, v16"); a.nop(2)
            e(f"v_cndmask_b32 v27, v18, v25, vcc")
            e(f"v_cmp_le_i32 vcc, {c1}, v16"); a.nop(2)
            e(f"v_cndmask_b32 v28, v18, v26, vcc")
            e(f"v_or_b32 v{20+dd}, v27, v28")
        e(f"v_add_u32 v24, {L_MB + half*1024}, v{vL16}")
        e(f"ds_write_b128 v24, v[20:23]")
        a.nop(2)
    e(f"s_branch {Ltab}")
    a.lab(Lw3)
    mk(sTS, sKA+10, 1792*2)
    e(f"v_lshlrev_b32 v20, 1, v{vLANE}")
    e(f"s_lshl_b32 s{sT0+2}, s{sI}, 8")
    e(f"buffer_load_ushort v21, v20, {srd(sTS)}, s{sT0+2} offen")
    e(f"buffer_load_ushort v22, v20, {srd(sTS)}, s{sT0+2} offen offset:128")
    mk(sTS, sKA+14, 512*2)
    e(f"s_and_b32 s{sT0+2}, s{sI}, 7")
    e(f"s_lshl_b32 s{sT0+2}, s{sT0+2}, 7")
    e(f"buffer_load_ushort v23, v20, {srd(sTS)}, s{sT0+2} offen")
    e("s_waitcnt vmcnt(0)")
    e("v_lshlrev_b32 v21, 16, v21"); e("v_lshlrev_b32 v22, 16, v22"); e("v_lshlrev_b32 v23, 16, v23")
    e(f"v_lshlrev_b32 v24, 2, v{vLANE}")
    e(f"v_add_u32 v24, {L_B1}, v24")
    e(f"ds_write_b32 v24, v21")
    e(f"ds_write_b32 v24, v22 offset:256")
    e(f"ds_write_b32 v24, v23 offset:512")
    a.lab(Ltab)
    e("s_waitcnt lgkmcnt(0)")
    e("s_barrier")
    e(f"v_mov_b32 v16, {L_MODE}")
    e(f"ds_read_b32 v17, v16")
    e("s_waitcnt lgkmcnt(0)")
    e(f"v_readfirstlane_b32 s{sMODE}, v17")
    e("s_waitcnt vmcnt(0)")
    e(f"s_lshl_b32 s{sT0+2}, s{sB}, 2")
    e(f"s_lshr_b32 s{sT0+3}, s{sI}, 2")
    e(f"s_add_u32 s{sT0+2}, s{sT0+2}, s{sT0+3}")
    e(f"s_and_b32 s{sT0+3}, s{sI}, 3")
    e(f"s_lshl_b32 s{sT0+3}, s{sT0+3}, 3")
    e(f"s_lshl_b32 s{sT0+4}, s{sW}, 1")
    e(f"s_add_u32 s{sT0+3}, s{sT0+3}, s{sT0+4}")
    e(f"v_lshrrev_b32 v20, 1, v{vLANE}")
    e(f"v_lshlrev_b32 v20, 10, v20")
    e(f"v_and_b32 v21, 1, v{vLANE}")
    e(f"v_lshl_add_u32 v20, v21, 3, v20")
    e(f"s_lshl_b32 s{sT0+5}, s{sT0+2}, 15")
    e(f"s_lshl_b32 s{sT0+6}, s{sT0+3}, 4")
    e(f"s_add_u32 s{sT0+5}, s{sT0+5}, s{sT0+6}")
    e(f"s_add_u32 s{sT0+5}, s{sT0+5}, {XF}")
    e(f"v_lshrrev_b32 v21, 2, v{vLANE}")
    e(f"v_lshlrev_b32 v21, 8, v21")
    e(f"s_lshl_b32 s{sT0+6}, s{sT0+2}, 12")
    e(f"s_lshl_b32 s{sT0+7}, s{sT0+3}, 3")
    e(f"s_add_u32 s{sT0+6}, s{sT0+6}, s{sT0+7}")
    e(f"s_add_u32 s{sT0+6}, s{sT0+6}, {ST1}")
    for rr in range(2):
        x = 8 + 4*rr
        sv = 24 + 2*rr
        e(f"v_mov_b32 v{sv}, 0"); e(f"v_mov_b32 v{sv+1}, 0")
        for d in range(4):
            e(f"v_lshlrev_b32 v30, 16, v{x+d}")
            e(f"v_and_b32 v31, 0xffff0000, v{x+d}")
            e(f"v_add_f32 v{sv}, v{sv}, v30"); e(f"v_fmac_f32 v{sv+1}, v30, v30")
            e(f"v_add_f32 v{sv}, v{sv}, v31"); e(f"v_fmac_f32 v{sv+1}, v31, v31")
        for qp in ("[1,0,3,2]", "[2,3,0,1]"):
            a.nop(2)
            e(f"v_add_f32_dpp v{sv}, v{sv}, v{sv} quad_perm:{qp} row_mask:0xf bank_mask:0xf")
            e(f"v_add_f32_dpp v{sv+1}, v{sv+1}, v{sv+1} quad_perm:{qp} row_mask:0xf bank_mask:0xf")
    def p0_stores(fl):
        for rr in range(2):
            x = 8 + 4*rr
            e(f"buffer_store_dwordx2 v[{x}:{x+1}], v20, {srd(sWS)}, s{sT0+5} offen offset:{rr*16}{fl}")
            e(f"buffer_store_dwordx2 v[{x+2}:{x+3}], v20, {srd(sWS)}, s{sT0+5} offen offset:{512+rr*16}{fl}")
        e(f"s_mov_b32 s{sT0+8}, 0x11111111"); e(f"s_mov_b32 s{sT0+9}, 0x11111111")
        e(f"s_mov_b64 exec, s[{sT0+8}:{sT0+9}]")
        for rr in range(2):
            e(f"buffer_store_dwordx2 v[{24+2*rr}:{25+2*rr}], v21, {srd(sWS)}, s{sT0+6} offen offset:{rr*8}{fl}")
        e("s_mov_b64 exec, -1")
    moded(p0_stores)
    e("s_waitcnt vmcnt(0)")
    e(f"s_mov_b32 s{sT0}, 1")
    team_flag(sT0, 20)
    e("s_branch L_layer")
    a.lab("L_pro_helper")
    dma_wqkv()
    Lreg = a.new("L_noreg")
    e(f"s_cmp_lg_u32 s{sW}, 4"); e(f"s_cbranch_scc1 {Lreg}")
    e("v_mov_b32 v4, 0"); e("v_mov_b32 v5, 0"); e("v_mov_b32 v6, 0"); e("v_mov_b32 v7, 0"); e("v_mov_b32 v8, 0")
    e("s_mov_b64 exec, 1")
    e(f"s_lshl_b32 s{sT0}, s{sI}, 4")
    e(f"s_add_u32 s{sT0+1}, s{sT0}, s{sTEAM}")
    e(f"buffer_store_dwordx4 v[4:7], v8, {srd(sWS)}, s{sT0+1} offen sc1")
    e(f"s_lshl_b32 s{sT0+1}, s{sB}, 8")
    e(f"s_add_u32 s{sT0+1}, s{sT0+1}, s{sT0}")
    e(f"s_add_u32 s{sT0+1}, s{sT0+1}, {KVF}")
    e(f"buffer_store_dwordx4 v[4:7], v8, {srd(sWS)}, s{sT0+1} offen sc1")
    e("s_waitcnt vmcnt(0)")
    e(f"s_add_u32 s{sT0}, s{sXCC}, 1")
    e(f"v_mov_b32 v4, s{sT0}")
    e(f"s_lshl_b32 s{sT0+1}, s{sB}, 4")
    e(f"s_add_u32 s{sT0+1}, s{sT0+1}, s{sI}")
    e(f"buffer_store_byte v4, v8, {srd(sDBG)}, s{sT0+1} offen sc1")
    e("s_mov_b64 exec, -1")
    e(f"v_min_u32 v4, 11, v{vLANE}")
    e(f"s_lshl_b32 s{sT0+1}, s{sB}, 2")
    e(f"s_sub_u32 s{sT0+1}, s{sT0+1}, 8")
    e(f"v_add_u32 v4, s{sT0+1}, v4")
    e(f"v_max_i32 v4, 0, v4")
    e(f"v_lshlrev_b32 v4, 2, v4")
    e(f"s_mul_i32 s{sT0+2}, s{sT0}, 0x01010101")
    Lp, Ld = a.new("L_rpoll"), a.new("L_rdone")
    e(f"s_mov_b32 s{sCNT}, {POLL_LIMIT}")
    a.lab(Lp)
    e(f"buffer_load_dword v5, v4, {srd(sDBG)}, 0 offen sc1")
    e("s_waitcnt vmcnt(0)")
    e("v_add_u32 v6, 0x7f7f7f7f, v5")
    e("v_and_b32 v6, 0x80808080, v6")
    e("v_cmp_ne_u32 vcc, 0x80808080, v6")
    e(f"s_cbranch_vccz {Ld}")
    e("s_sleep 2")
    e(f"s_sub_u32 s{sCNT}, s{sCNT}, 1")
    e(f"s_cbranch_scc0 {Lp}")
    e(f"s_mov_b32 s{sFAIL}, 1")
    a.lab(Ld)
    e(f"v_cmp_eq_u32 vcc, s{sT0+2}, v5")
    e(f"s_and_b32 s{sT0+3}, vcc_lo, 0xf00")
    e(f"s_cmp_eq_u32 s{sT0+3}, 0xf00")
    e(f"s_cselect_b32 s{sMODE}, 1, 0")
    if args.slow: e(f"s_mov_b32 s{sMODE}, 0")
    e(f"v_mov_b32 v5, s{sMODE}")
    e(f"v_mov_b32 v4, {L_MODE}")
    e("ds_write_b32 v4, v5")
    e("s_waitcnt lgkmcnt(0)")
    a.lab(Lreg)
    e("s_barrier")
    e(f"v_mov_b32 v16, {L_MODE}")
    e(f"ds_read_b32 v17, v16")
    e("s_waitcnt lgkmcnt(0)")
    e(f"v_readfirstlane_b32 s{sMODE}, v17")

    a.lab("L_layer")
    endif_stop(0)
    stamp(1)
    e(f"s_cmp_ge_u32 s{sW}, 4")
    e("s_cbranch_scc1 L_p1_helper")
    vX = 64; vAcc = 16; vWf = 192
    team_wait(0, 4)
    stamp(2)
    e(f"s_lshl_b32 s{sT0+4}, s{sB}, 2")
    e(f"s_add_u32 s{sT0+4}, s{sT0+4}, s{sW}")
    Lnr = a.new("L_nores")
    e(f"s_cmp_lg_u32 s{sL}, 0"); e(f"s_cbranch_scc1 {Lnr}")
    e(f"s_lshl_b32 s{sT0}, s{sB}, 2")
    e(f"s_lshr_b32 s{sT0+1}, s{sI}, 3"); e(f"s_lshl_b32 s{sT0+1}, s{sT0+1}, 1")
    e(f"s_add_u32 s{sT0}, s{sT0}, s{sT0+1}")
    e(f"s_and_b32 s{sT0+1}, s{sW}, 1"); e(f"s_add_u32 s{sT0}, s{sT0}, s{sT0+1}")
    e(f"s_lshl_b32 s{sT0}, s{sT0}, 15")
    e(f"s_and_b32 s{sT0+1}, s{sI}, 7"); e(f"s_lshl_b32 s{sT0+1}, s{sT0+1}, 12")
    e(f"s_add_u32 s{sT0}, s{sT0}, s{sT0+1}")
    e(f"s_lshr_b32 s{sT0+1}, s{sW}, 1"); e(f"s_lshl_b32 s{sT0+1}, s{sT0+1}, 11")
    e(f"s_add_u32 s{sT0}, s{sT0}, s{sT0+1}")
    e(f"s_add_u32 s{sT0}, s{sT0}, {XF}")
    e(f"buffer_load_dwordx4 v[{vRES}:{vRES+3}], v{vL16}, {srd(sWS)}, s{sT0} offen sc1")
    e(f"buffer_load_dwordx4 v[{vRES+4}:{vRES+7}], v{vL16}, {srd(sWS)}, s{sT0} offen offset:1024 sc1")
    a.lab(Lnr)
    load_stats(ST1, 216, 4)
    load_x(XF, 32, 0, 32, vX, sT0+4)
    tr_base_common(4, 5, 6)
    e("v_lshl_add_u32 v4, v4, 6, v5")
    e("v_add_u32 v5, 65536, v4")
    e("s_barrier")
    stamp(3)
    def wread(tile, s, dst):
        b = 4 if tile < 2 else 5
        off = (tile % 2) * 32768 + s * 1024
        e(f"ds_read_b64_tr_b16 v[{dst}:{dst+1}], v{b} offset:{off}")
        e(f"ds_read_b64_tr_b16 v[{dst+2}:{dst+3}], v{b} offset:{off+512}")
    for t in range(3): wread(t, 0, vWf + 4*t)
    for s in range(32):
        cur = vWf + 12*(s % 2); nxt = vWf + 12*((s+1) % 2)
        e(f"s_waitcnt vmcnt({31-s})")
        for t in range(3):
            last = (s == 31)
            e(f"s_waitcnt lgkmcnt({4 if not last else 2*(2-t)})")
            acc = vAcc + 16*t
            c = "0" if s == 0 else f"v[{acc}:{acc+15}]"
            x = vX + 4*s; w = cur + 4*t
            if t < 2: e(f"v_mfma_f32_32x32x16_bf16 v[{acc}:{acc+15}], v[{w}:{w+3}], v[{x}:{x+3}], {c}")
            else:     e(f"v_mfma_f32_32x32x16_bf16 v[{acc}:{acc+15}], v[{x}:{x+3}], v[{w}:{w+3}], {c}")
            if not last: wread(t, s+1, nxt + 4*t)
    stamp(4)
    e("s_barrier")
    vA, vB = 8, 9
    finish_stats(216, vA, vB, 10)
    e(f"s_lshl_b32 s{sT0}, s{sW}, 8"); e(f"s_add_u32 s{sT0}, s{sT0}, {L_STA}")
    e(f"v_and_b32 v10, 31, v{vLANE}")
    e(f"v_lshl_add_u32 v10, v10, 2, s{sT0}")
    e(f"ds_write_b32 v10, v{vA}")
    e(f"ds_write_b32 v10, v{vB} offset:128")
    e(f"v_lshrrev_b32 v11, 5, v{vLANE}")
    e(f"v_lshlrev_b32 v11, 4, v11")
    e(f"v_add_u32 v12, {L_CS1}, v11")
    for t in range(2):
        for g in range(4):
            e(f"ds_read_b128 v[{64+16*t+4*g}:{67+16*t+4*g}], v12 offset:{t*128 + g*32}")
    e(f"v_and_b32 v13, 31, v{vLANE}")
    e(f"v_lshlrev_b32 v13, 2, v13")
    e(f"v_add_u32 v13, {L_CS1+256}, v13")
    e(f"ds_read_b32 v14, v13")
    e(f"v_add_u32 v13, s{sT0}, v11")
    for g in range(4):
        e(f"ds_read_b128 v[{96+4*g}:{99+4*g}], v13 offset:{g*32}")
        e(f"ds_read_b128 v[{112+4*g}:{115+4*g}], v13 offset:{128+g*32}")
    e(f"v_mul_f32 v6, {f2u(QSCALE):#x}, v{vA}")
    e(f"v_mul_f32 v7, {f2u(QSCALE):#x}, v{vB}")
    e("s_waitcnt lgkmcnt(0)")
    for t, (ra, rb) in enumerate(((6, 7), (vA, vB))):
        acc = vAcc + 16*t; cs = 64 + 16*t
        for r in range(16):
            e(f"v_mul_f32 v{acc+r}, v{acc+r}, v{ra}")
            e(f"v_fma_f32 v{acc+r}, -v{rb}, v{cs+r}, v{acc+r}")
        for d in range(8):
            e(f"v_cvt_pk_bf16_f32 v{128+8*t+d}, v{acc+2*d}, v{acc+2*d+1}")
    acc = vAcc + 32
    for r in range(16):
        e(f"v_mul_f32 v{acc+r}, v{acc+r}, v{96+r}")
        e(f"v_fma_f32 v{acc+r}, -v{112+r}, v14, v{acc+r}")
    for d in range(8):
        e(f"v_cvt_pk_bf16_f32 v{144+d}, v{acc+2*d}, v{acc+2*d+1}")
    e(f"s_lshl_b32 s{sT0}, s{sW}, 11")
    e(f"v_add_u32 v10, s{sT0}, v{vL16}")
    e(f"ds_write_b128 v10, v[128:131] offset:{L_QST}")
    e(f"ds_write_b128 v10, v[132:135] offset:{L_QST+1024}")
    e(f"ds_write_b128 v10, v[136:139] offset:{L_KST+16*1024}")
    e(f"ds_write_b128 v10, v[140:143] offset:{L_KST+17*1024}")
    e(f"ds_write_b128 v10, v[144:147] offset:{L_VST+16*1024}")
    e(f"ds_write_b128 v10, v[148:151] offset:{L_VST+17*1024}")
    e(f"s_lshl_b32 s{sT0+4}, s{sB}, 2")
    e(f"s_add_u32 s{sT0+4}, s{sT0+4}, s{sW}")
    e(f"s_lshl_b32 s{sT0}, s{sT0+4}, 15")
    e(f"s_lshl_b32 s{sT0+1}, s{sI}, 11")
    e(f"s_add_u32 s{sT0}, s{sT0}, s{sT0+1}")
    e(f"s_add_u32 s{sT0}, s{sT0}, s{sKVO}")
    e(f"s_add_u32 s{sT0+1}, s{sT0}, {VF}")
    e(f"s_add_u32 s{sT0}, s{sT0}, {KF}")
    e(f"buffer_store_dwordx4 v[136:139], v{vL16}, {srd(sWS)}, s{sT0} offen sc1")
    e(f"buffer_store_dwordx4 v[140:143], v{vL16}, {srd(sWS)}, s{sT0} offen offset:1024 sc1")
    e(f"buffer_store_dwordx4 v[144:147], v{vL16}, {srd(sWS)}, s{sT0+1} offen sc1")
    e(f"buffer_store_dwordx4 v[148:151], v{vL16}, {srd(sWS)}, s{sT0+1} offen offset:1024 sc1")
    if args.dbgq:
        e(f"s_lshl_b32 s{sT0}, s{sT0+4}, 15"); e(f"s_lshl_b32 s{sT0+1}, s{sI}, 11")
        e(f"s_add_u32 s{sT0}, s{sT0}, s{sT0+1}"); e(f"s_add_u32 s{sT0}, s{sT0}, {OF}")
        e(f"buffer_store_dwordx4 v[128:131], v{vL16}, {srd(sWS)}, s{sT0} offen sc1")
        e(f"buffer_store_dwordx4 v[132:135], v{vL16}, {srd(sWS)}, s{sT0} offen offset:1024 sc1")
    e("s_waitcnt vmcnt(0)")
    e(f"s_lshl_b32 s{sT0}, s{sB}, 8"); e(f"s_lshl_b32 s{sT0+1}, s{sI}, 4")
    e(f"s_add_u32 s{sT0}, s{sT0}, s{sT0+1}"); e(f"s_lshl_b32 s{sT0+1}, s{sW}, 2")
    e(f"s_add_u32 s{sT0}, s{sT0}, s{sT0+1}"); e(f"s_add_u32 s{sT0}, s{sT0}, {KVF}")
    e(f"s_add_u32 s{sT0+1}, s{sL}, 1")
    e(f"v_mov_b32 v10, s{sT0+1}"); e("v_mov_b32 v11, 0")
    e("s_mov_b64 exec, 1")
    e(f"buffer_store_dword v10, v11, {srd(sWS)}, s{sT0} offen sc1")
    e("s_mov_b64 exec, -1")
    stamp(5)
    if STOP == 1:
        e("s_waitcnt vmcnt(0) lgkmcnt(0)"); e("s_barrier"); e("s_branch L_end")
    Lnokv = a.new("L_nokv")
    e(f"s_cmp_eq_u32 s{sB}, 0"); e(f"s_cbranch_scc1 {Lnokv}")
    e(f"v_bfe_u32 v10, v{vLANE}, 2, 1")
    e(f"s_sub_u32 s{sT0}, s{sB}, 1")
    e(f"v_sub_u32 v10, s{sT0}, v10")
    e(f"v_max_i32 v10, 0, v10")
    e(f"v_lshlrev_b32 v10, 8, v10")
    e(f"v_and_b32 v11, 3, v{vLANE}")
    e(f"v_lshl_add_u32 v10, v11, 2, v10")
    e(f"s_lshl_b32 s{sT0}, s{sI}, 4"); e(f"s_add_u32 s{sT0}, s{sT0}, {KVF}")
    e(f"s_add_u32 s{sTGT}, s{sL}, 1")
    poll(10, sT0, sTGT, 11)
    for zz in range(2):
        Ls = a.new("L_skipz")
        e(f"s_lshl_b32 s{sT0}, s{sB}, 2")
        e(f"s_lshl_b32 s{sT0+1}, s{sW}, 1")
        e(f"s_add_u32 s{sT0}, s{sT0}, s{sT0+1}")
        e(f"s_add_u32 s{sT0}, s{sT0}, {zz}")
        e(f"s_sub_u32 s{sT0}, s{sT0}, 8")
        e(f"s_cbranch_scc1 {Ls}")
        e(f"s_lshl_b32 s{sT0}, s{sT0}, 15")
        e(f"s_lshl_b32 s{sT0+2}, s{sI}, 11")
        e(f"s_add_u32 s{sT0}, s{sT0}, s{sT0+2}")
        e(f"s_add_u32 s{sT0}, s{sT0}, s{sKVO}")
        e(f"s_add_u32 s{sT0+2}, s{sT0}, {VF}")
        e(f"s_add_u32 s{sT0}, s{sT0}, {KF}")
        e(f"s_lshl_b32 s{sT0+1}, s{sW}, 12")
        e(f"s_add_u32 m0, s{sT0+1}, {L_KST + zz*2048}")
        e("s_nop 0")
        e(f"buffer_load_dwordx4 v{vL16}, {srd(sWS)}, s{sT0} offen sc1 lds")
        e(f"buffer_load_dwordx4 v{vL16}, {srd(sWS)}, s{sT0} offen offset:1024 sc1 lds")
        e(f"s_add_u32 m0, s{sT0+1}, {L_VST + zz*2048}")
        e("s_nop 0")
        e(f"buffer_load_dwordx4 v{vL16}, {srd(sWS)}, s{sT0+2} offen sc1 lds")
        e(f"buffer_load_dwordx4 v{vL16}, {srd(sWS)}, s{sT0+2} offen offset:1024 sc1 lds")
        a.lab(Ls)
    a.lab(Lnokv)
    e("s_waitcnt vmcnt(0) lgkmcnt(0)")
    e("s_barrier")
    e("s_branch L_p2")
    a.lab("L_p1_helper")
    e("s_waitcnt vmcnt(0)")
    e("s_barrier")
    colsum("qkv")
    e("s_barrier")
    if STOP == 1:
        e("s_barrier"); e("s_branch L_end")
    dma_wo()
    e("s_barrier")
    a.lab("L_p2")
    stamp(6)
    vQ = 4; vK = 8; vV = 44; vS = 60; vP = 92; vO = 100; vCb = 116; vMD = 132; vMF = 148; vMB = 164; vM = 172
    vAK, vAV, vAQ = 176, 177, 178
    e(f"s_and_b32 s{sT0}, s{sW}, 3")
    e(f"s_lshr_b32 s{sT0+1}, s{sW}, 2")
    e(f"s_lshl_b32 s{sN}, s{sB}, 2")
    e(f"s_add_u32 s{sN}, s{sN}, s{sT0}")
    e(f"s_add_u32 s{sN}, s{sN}, 1")
    e(f"s_min_u32 s{sN}, s{sN}, 9")
    e(f"s_lshl_b32 s{sT0+2}, s{sT0}, 11")
    e(f"s_lshl_b32 s{sT0+3}, s{sT0+1}, 10")
    e(f"s_add_u32 s{sT0+4}, s{sT0+2}, s{sT0+3}")
    e(f"v_add_u32 v{vAK}, s{sT0+4}, v{vL16}")
    e(f"s_lshl_b32 s{sT0+3}, s{sT0+1}, 8")
    e(f"s_add_u32 s{sT0+4}, s{sT0+2}, s{sT0+3}")
    e(f"v_add_u32 v{vAV}, s{sT0+4}, v{vL16}")
    e(f"ds_read_b128 v[{vQ}:{vQ+3}], v{vAK} offset:{L_QST}")
    for j in range(9):
        e(f"ds_read_b128 v[{vK+4*j}:{vK+4*j+3}], v{vAK} offset:{L_KST + (8-j)*2048}")
    e(f"v_add_u32 v{vAQ}, {L_MD}, v{vL16}")
    for g in range(4):
        e(f"ds_read_b128 v[{vMD+4*g}:{vMD+4*g+3}], v{vAQ} offset:{g*1024}")
    for g in range(4):
        e(f"ds_read_b128 v[{vMF+4*g}:{vMF+4*g+3}], v{vAQ} offset:{4096+g*1024}")
    for g in range(2):
        e(f"ds_read_b128 v[{vMB+4*g}:{vMB+4*g+3}], v{vAQ} offset:{8192+g*1024}")
    for r in range(16): e(f"v_mov_b32 v{vV+r}, 0x3f803f80")
    e(f"v_mov_b32 v{vM}, {NEG:#x}")
    e("s_waitcnt lgkmcnt(0)")
    def smfma(j, c):
        S = vS + 16*(j % 2)
        e(f"v_mfma_f32_32x32x16_bf16 v[{S}:{S+15}], v[{vK+4*j}:{vK+4*j+3}], v[{vQ}:{vQ+3}], {c}")
    Lp1 = a.new("L_p1done")
    smfma(0, f"v[{vMD}:{vMD+15}]")
    for j in range(9):
        if j < 8:
            Ls = a.new("L_s")
            e(f"s_cmp_le_u32 s{sN}, {j+1}"); e(f"s_cbranch_scc1 {Ls}")
            smfma(j+1, f"v[{vMF}:{vMF+15}]" if j+1 == 8 else "0")
            a.lab(Ls)
        a.nop(12 if j == 0 else 2)
        S = vS + 16*(j % 2)
        for k in range(8):
            e(f"v_max3_f32 v{vM}, v{S+2*k}, v{S+2*k+1}, v{vM}")
        if j < 8:
            e(f"s_cmp_le_u32 s{sN}, {j+1}"); e(f"s_cbranch_scc1 {Lp1}")
    a.lab(Lp1)
    e(f"v_mov_b32 v{vM+1}, v{vM}"); a.nop(2)
    e(f"v_permlane32_swap_b32 v{vM+1}, v{vM}"); a.nop(1)
    e(f"v_max_f32 v{vM}, v{vM}, v{vM+1}")
    e(f"v_sub_f32 v{vM}, 0, v{vM}")
    for r in range(16): e(f"v_mov_b32 v{vCb+r}, v{vM}")
    def vread(j):
        V = vV + 8*(j % 2)
        e(f"s_mov_b64 exec, {sp(sM16)}")
        e(f"ds_read_b128 v[{V}:{V+3}], v{vAV} offset:{L_VST + (8-j)*2048}")
        e(f"ds_read_b128 v[{V+4}:{V+7}], v{vAV} offset:{L_VST + (8-j)*2048 + 1024}")
        e("s_mov_b64 exec, -1")
    Lp2 = a.new("L_p2done")
    a.nop(2)
    smfma(0, f"v[{vCb}:{vCb+15}]")
    vread(0)
    for j in range(9):
        if j < 8:
            Ls = a.new("L_s")
            e(f"s_cmp_le_u32 s{sN}, {j+1}"); e(f"s_cbranch_scc1 {Ls}")
            smfma(j+1, f"v[{vCb}:{vCb+15}]")
            vread(j+1)
            a.lab(Ls)
        if j == 0: a.nop(12)
        S = vS + 16*(j % 2); V = vV + 8*(j % 2)
        for r in range(16): e(f"v_exp_f32 v{S+r}, v{S+r}")
        for d in range(8): e(f"v_cvt_pk_bf16_f32 v{vP+d}, v{S+2*d}, v{S+2*d+1}")
        if j == 0:
            for d in range(8): e(f"v_and_b32 v{vP+d}, v{vP+d}, v{vMB+d}")
        if j == 8:
            for d in range(8): e(f"v_bfi_b32 v{vP+d}, v{vMB+d}, 0, v{vP+d}")
        if j < 8:
            Lw = a.new("L_w"); Lw2 = a.new("L_w2")
            e(f"s_cmp_le_u32 s{sN}, {j+1}"); e(f"s_cbranch_scc1 {Lw}")
            e("s_waitcnt lgkmcnt(2)"); e(f"s_branch {Lw2}")
            a.lab(Lw); e("s_waitcnt lgkmcnt(0)"); a.lab(Lw2)
        else:
            e("s_waitcnt lgkmcnt(0)")
        a.nop(1)
        c0 = "0" if j == 0 else f"v[{vO}:{vO+15}]"
        e(f"v_mfma_f32_32x32x16_bf16 v[{vO}:{vO+15}], v[{V}:{V+3}], v[{vP}:{vP+3}], {c0}")
        e(f"v_mfma_f32_32x32x16_bf16 v[{vO}:{vO+15}], v[{V+4}:{V+7}], v[{vP+4}:{vP+7}], v[{vO}:{vO+15}]")
        if j < 8:
            e(f"s_cmp_le_u32 s{sN}, {j+1}"); e(f"s_cbranch_scc1 {Lp2}")
    a.lab(Lp2)
    a.nop(14)
    e(f"v_rcp_f32 v{vM}, v{vO+8}"); a.nop(1)
    for r in range(8): e(f"v_mul_f32 v{vO+r}, v{vO+r}, v{vM}")
    for d in range(4): e(f"v_cvt_pk_bf16_f32 v{vP+d}, v{vO+2*d}, v{vO+2*d+1}")
    e(f"s_and_b32 s{sT0}, s{sW}, 3"); e(f"s_lshr_b32 s{sT0+1}, s{sW}, 2")
    e(f"s_lshl_b32 s{sT0+2}, s{sB}, 2"); e(f"s_add_u32 s{sT0+2}, s{sT0+2}, s{sT0}")
    e(f"s_lshl_b32 s{sT0+2}, s{sT0+2}, 15")
    e(f"s_lshl_b32 s{sT0+3}, s{sI}, 11"); e(f"s_add_u32 s{sT0+2}, s{sT0+2}, s{sT0+3}")
    e(f"s_lshl_b32 s{sT0+3}, s{sT0+1}, 10"); e(f"s_add_u32 s{sT0+2}, s{sT0+2}, s{sT0+3}")
    e(f"s_add_u32 s{sT0+2}, s{sT0+2}, {OF}")
    moded(lambda fl: e(f"buffer_store_dwordx4 v[{vP}:{vP+3}], v{vL16}, {srd(sWS)}, s{sT0+2} offen{fl}"))
    e("s_waitcnt vmcnt(0)")
    e("s_barrier")
    stamp(7)
    e(f"s_cmp_ge_u32 s{sW}, 4")
    e("s_cbranch_scc1 L_p3_helper")
    team_signal(1, 4)
    endif_stop(2)

    def tile_ids():
        e(f"s_lshl_b32 s{sT0+4}, s{sB}, 2")
        e(f"s_lshr_b32 s{sT0+1}, s{sI}, 3"); e(f"s_lshl_b32 s{sT0+1}, s{sT0+1}, 1")
        e(f"s_add_u32 s{sT0+4}, s{sT0+4}, s{sT0+1}")
        e(f"s_and_b32 s{sT0+1}, s{sW}, 1"); e(f"s_add_u32 s{sT0+4}, s{sT0+4}, s{sT0+1}")
        e(f"s_lshr_b32 s{sT0+3}, s{sW}, 1")

    def n64_bases(vmine, vother, lds_base_sreg_or_imm):
        tr_base_common(vmine, vother, 6)
        e(f"v_bfe_u32 v6, v{vmine}, 1, 1")
        e(f"v_lshl_add_u32 v{vother}, v{vmine}, 7, v{vother}")
        e(f"s_lshr_b32 s{sT0+3}, s{sW}, 1")
        e(f"v_xor_b32 v6, s{sT0+3}, v6")
        e(f"v_lshl_add_u32 v{vmine}, v6, 6, v{vother}")
        e(f"v_xor_b32 v6, 1, v6")
        e(f"v_lshl_add_u32 v{vother}, v6, 6, v{vother}")
        if isinstance(lds_base_sreg_or_imm, int):
            if lds_base_sreg_or_imm:
                e(f"v_add_u32 v{vmine}, {lds_base_sreg_or_imm}, v{vmine}")
                e(f"v_add_u32 v{vother}, {lds_base_sreg_or_imm}, v{vother}")
        else:
            e(f"v_add_u32 v{vmine}, {lds_base_sreg_or_imm}, v{vmine}")
            e(f"v_add_u32 v{vother}, {lds_base_sreg_or_imm}, v{vother}")

    def exchange_and_epilogue(is_p5):
        accM, accO = 16, 32
        a.nop(12)
        e(f"s_lshl_b32 s{sT0}, s{sW}, 12"); e(f"s_add_u32 s{sT0}, s{sT0}, {L_EX}")
        e(f"v_add_u32 v6, s{sT0}, v{vL16}")
        for q in range(4):
            e(f"ds_write_b128 v6, v[{accO+4*q}:{accO+4*q+3}] offset:{q*1024}")
        e("s_waitcnt lgkmcnt(0)")
        e("s_barrier")
        e(f"s_xor_b32 s{sT0}, s{sW}, 2"); e(f"s_lshl_b32 s{sT0}, s{sT0}, 12"); e(f"s_add_u32 s{sT0}, s{sT0}, {L_EX}")
        e(f"v_add_u32 v6, s{sT0}, v{vL16}")
        for q in range(4):
            e(f"ds_read_b128 v[{accO+4*q}:{accO+4*q+3}], v6 offset:{q*1024}")
        if is_p5:
            e(f"v_lshrrev_b32 v7, 5, v{vLANE}"); e(f"v_lshlrev_b32 v7, 4, v7")
            e(f"s_lshr_b32 s{sT0}, s{sW}, 1"); e(f"s_lshl_b32 s{sT0}, s{sT0}, 7"); e(f"s_add_u32 s{sT0}, s{sT0}, {L_B2}")
            e(f"v_add_u32 v7, s{sT0}, v7")
            for g in range(4):
                e(f"ds_read_b128 v[{48+4*g}:{51+4*g}], v7 offset:{g*32}")
        e("s_waitcnt lgkmcnt(0)")
        for r in range(16): e(f"v_add_f32 v{accM+r}, v{accM+r}, v{accO+r}")
        if is_p5:
            for r in range(16): e(f"v_add_f32 v{accM+r}, v{accM+r}, v{48+r}")
        for d in range(8):
            e(f"v_lshlrev_b32 v6, 16, v{vRES+d}")
            e(f"v_and_b32 v7, 0xffff0000, v{vRES+d}")
            e(f"v_add_f32 v{accM+2*d}, v{accM+2*d}, v6")
            e(f"v_add_f32 v{accM+2*d+1}, v{accM+2*d+1}, v7")
        for d in range(8):
            e(f"v_cvt_pk_bf16_f32 v{vRES+d}, v{accM+2*d}, v{accM+2*d+1}")
        e(f"v_mov_b32 v8, 0"); e(f"v_mov_b32 v9, 0")
        for r in range(16):
            e(f"v_add_f32 v8, v8, v{accM+r}")
            e(f"v_fmac_f32 v9, v{accM+r}, v{accM+r}")
        e("v_mov_b32 v10, v8"); e("v_mov_b32 v11, v9"); a.nop(2)
        e("v_permlane32_swap_b32 v10, v8"); e("v_permlane32_swap_b32 v11, v9"); a.nop(1)
        e("v_add_f32 v8, v8, v10"); e("v_add_f32 v9, v9, v11")
        tile_ids()
        e(f"s_lshl_b32 s{sT0}, s{sT0+4}, 15")
        e(f"s_and_b32 s{sT0+1}, s{sI}, 7"); e(f"s_lshl_b32 s{sT0+2}, s{sT0+1}, 12")
        e(f"s_add_u32 s{sT0}, s{sT0}, s{sT0+2}")
        e(f"s_lshl_b32 s{sT0+2}, s{sT0+3}, 11"); e(f"s_add_u32 s{sT0}, s{sT0}, s{sT0+2}")
        e(f"s_add_u32 s{sT0}, s{sT0}, {XF if is_p5 else X2F}")
        e(f"s_lshl_b32 s{sT0+5}, s{sT0+4}, 12")
        e(f"s_lshl_b32 s{sT0+2}, s{sT0+1}, 9"); e(f"s_add_u32 s{sT0+5}, s{sT0+5}, s{sT0+2}")
        e(f"s_lshl_b32 s{sT0+2}, s{sT0+3}, 8"); e(f"s_add_u32 s{sT0+5}, s{sT0+5}, s{sT0+2}")
        e(f"s_add_u32 s{sT0+5}, s{sT0+5}, {ST1 if is_p5 else ST2}")
        e(f"v_and_b32 v10, 31, v{vLANE}"); e(f"v_lshlrev_b32 v10, 3, v10")
        def st(fl):
            e(f"buffer_store_dwordx4 v[{vRES}:{vRES+3}], v{vL16}, {srd(sWS)}, s{sT0} offen{fl}")
            e(f"buffer_store_dwordx4 v[{vRES+4}:{vRES+7}], v{vL16}, {srd(sWS)}, s{sT0} offen offset:1024{fl}")
            e(f"s_mov_b64 exec, {sp(sM32)}")
            e(f"buffer_store_dwordx2 v[8:9], v10, {srd(sWS)}, s{sT0+5} offen{fl}")
            e("s_mov_b64 exec, -1")
        if is_p5:
            Lfin, Lj = a.new("L_final"), a.new("L_fj")
            e(f"s_cmp_eq_u32 s{sL}, 1"); e(f"s_cbranch_scc1 {Lfin}")
            moded(st)
            e("s_waitcnt vmcnt(0)")
            team_signal(4, 4)
            e(f"s_branch {Lj}")
            a.lab(Lfin)
            e(f"v_and_b32 v10, 31, v{vLANE}"); e(f"v_lshlrev_b32 v10, 10, v10")
            e(f"v_lshrrev_b32 v11, 5, v{vLANE}"); e(f"v_lshl_add_u32 v10, v11, 3, v10")
            e(f"s_lshl_b32 s{sT0}, s{sT0+4}, 15")
            e(f"s_lshl_b32 s{sT0+2}, s{sT0+1}, 7"); e(f"s_add_u32 s{sT0}, s{sT0}, s{sT0+2}")
            e(f"s_lshl_b32 s{sT0+2}, s{sT0+3}, 6"); e(f"s_add_u32 s{sT0}, s{sT0}, s{sT0+2}")
            for g in range(4):
                e(f"buffer_store_dwordx2 v[{vRES+2*g}:{vRES+2*g+1}], v10, {srd(sOUT)}, s{sT0} offen offset:{g*16}")
            a.lab(Lj)
        else:
            moded(st)
            e("s_waitcnt vmcnt(0)")
            team_signal(2, 4)

    team_wait(1, 4)
    stamp(8)
    tile_ids()
    e(f"s_lshl_b32 s{sT0+2}, s{sT0+3}, 4")
    load_x(OF, 32, ('s', sT0+2), 16, 64, sT0+4)
    e(f"s_lshl_b32 s{sT0+8}, s{sT0+3}, 15"); e(f"s_add_u32 s{sT0+8}, s{sT0+8}, {L_WO}")
    n64_bases(4, 5, f"s{sT0+8}")
    vWf = 48
    vWf = 128
    DIST = 2
    def wread3(s, base_off=0):
        dst = vWf + 8*(s % 3)
        off = base_off + s*2048
        e(f"ds_read_b64_tr_b16 v[{dst}:{dst+1}], v4 offset:{off}")
        e(f"ds_read_b64_tr_b16 v[{dst+2}:{dst+3}], v4 offset:{off+1024}")
        e(f"ds_read_b64_tr_b16 v[{dst+4}:{dst+5}], v5 offset:{off}")
        e(f"ds_read_b64_tr_b16 v[{dst+6}:{dst+7}], v5 offset:{off+1024}")
    wread3(0); wread3(1)
    for s in range(16):
        e(f"s_waitcnt vmcnt({15-s})")
        rem = min(2, 15 - s)
        if s + 2 < 16: wread3(s + 2)
        n_after = 4 * min(2, 15 - s)
        e(f"s_waitcnt lgkmcnt({min(n_after, 15)})")
        w = vWf + 8*(s % 3); x = 64 + 4*s
        c0 = "0" if s == 0 else "v[16:31]"; c1 = "0" if s == 0 else "v[32:47]"
        e(f"v_mfma_f32_32x32x16_bf16 v[16:31], v[{w}:{w+3}], v[{x}:{x+3}], {c0}")
        e(f"v_mfma_f32_32x32x16_bf16 v[32:47], v[{w+4}:{w+7}], v[{x}:{x+3}], {c1}")
    stamp(9)
    exchange_and_epilogue(False)
    stamp(10)
    endif_stop(3)
    e("s_branch L_p4_compute")
    a.lab("L_p3_helper")
    if STOP == 2:
        e("s_branch L_end")
    e("s_barrier")
    if STOP == 3:
        e("s_branch L_end")
    Lno1 = a.new("L_now1")
    e(f"s_cmp_ge_u32 s{sI}, 14"); e(f"s_cbranch_scc1 {Lno1}")
    dma_w1()
    a.lab(Lno1)
    e("s_waitcnt vmcnt(0)")
    e("s_barrier")
    Lno2 = a.new("L_nocs")
    e(f"s_cmp_ge_u32 s{sI}, 14"); e(f"s_cbranch_scc1 {Lno2}")
    colsum("n128")
    a.lab(Lno2)
    e("s_barrier")
    if STOP == 4:
        e("s_branch L_end")
    for q in range(4): dma_w2_chunk(q, q == 0)
    e("s_waitcnt vmcnt(0)")
    e("s_barrier")
    for q in range(6):
        if q >= 3: e(f"s_waitcnt vmcnt({8*(5-q)})")
        e("s_barrier")
        if q < 3: dma_w2_chunk(q + 4, False)
    e("s_barrier")
    Lh = a.new("L_hnext")
    e(f"s_cmp_eq_u32 s{sL}, 1"); e("s_cbranch_scc1 L_end")
    dma_wqkv()
    e("s_branch L_next_layer")

    a.lab("L_p4_compute")
    Lidle, Lp4e = a.new("L_p4idle"), a.new("L_p4end")
    e(f"s_cmp_ge_u32 s{sI}, 14"); e(f"s_cbranch_scc1 {Lidle}")
    team_wait(2, 4)
    stamp(11)
    vX = 80; vAcc = 16; vWf = 208
    e(f"s_lshl_b32 s{sT0+4}, s{sB}, 2")
    e(f"s_add_u32 s{sT0+4}, s{sT0+4}, s{sW}")
    load_stats(ST2, 232, 4)
    load_x(X2F, 32, 0, 32, vX, sT0+4)
    tr_base_common(4, 5, 6)
    e("v_lshl_add_u32 v5, v4, 8, v5")
    e("v_and_b32 v8, 3, v4")
    for ft in range(4):
        e(f"v_xor_b32 v9, {ft}, v8")
        e(f"v_lshl_add_u32 v{10+ft}, v9, 6, v5")
    e("s_barrier")
    stamp(12)
    def wread4(ft, s, dst):
        off = (s % 16) * 4096
        e(f"ds_read_b64_tr_b16 v[{dst}:{dst+1}], v{10+ft} offset:{off}")
        e(f"ds_read_b64_tr_b16 v[{dst+2}:{dst+3}], v{10+ft} offset:{off+2048}")
    NS = 6
    seq = [(s, ft) for s in range(32) for ft in range(4)]
    def slot(n): return vWf + 4*(n % NS)
    PRE = NS - 1
    def issue(n):
        s, ft = seq[n]
        if s == 16 and ft == 0: pass
        if s >= 16 and s % 16 == 0 and False: pass
        wread4(ft, s, slot(n))
    def issue2(n):
        s, ft = seq[n]
        if s == 16: e(f"v_add_u32 v{10+ft}, 65536, v{10+ft}")
        wread4(ft, s, slot(n))
    for n in range(PRE): issue2(n)
    for n, (s, ft) in enumerate(seq):
        if ft == 0: e(f"s_waitcnt vmcnt({31-s})")
        ahead = min(PRE - 1, len(seq) - 1 - n)
        e(f"s_waitcnt lgkmcnt({2*ahead})")
        acc = vAcc + 16*ft; x = vX + 4*s; w = slot(n)
        c = "0" if s == 0 else f"v[{acc}:{acc+15}]"
        e(f"v_mfma_f32_32x32x16_bf16 v[{acc}:{acc+15}], v[{w}:{w+3}], v[{x}:{x+3}], {c}")
        if n + PRE < len(seq): issue2(n + PRE)
    stamp(13)
    e("s_barrier")
    vA, vB = 8, 9
    finish_stats(232, vA, vB, 4)
    e(f"v_lshrrev_b32 v4, 5, v{vLANE}"); e("v_lshlrev_b32 v4, 4, v4")
    e(f"v_add_u32 v5, {L_CS4}, v4")
    e(f"s_lshl_b32 s{sT0+4}, s{sB}, 2"); e(f"s_add_u32 s{sT0+4}, s{sT0+4}, s{sW}")
    e(f"s_mul_i32 s{sT0}, s{sT0+4}, {112*1024}")
    e(f"s_lshl_b32 s{sT0+1}, s{sI}, 13"); e(f"s_add_u32 s{sT0}, s{sT0}, s{sT0+1}")
    e(f"s_add_u32 s{sT0}, s{sT0}, {HF}")
    for ft in range(4):
        acc = vAcc + 16*ft
        cs = 80 + 32*(ft % 2); bb = cs + 16
        for g in range(4):
            e(f"ds_read_b128 v[{cs+4*g}:{cs+4*g+3}], v5 offset:{ft*128 + g*32}")
            e(f"ds_read_b128 v[{bb+4*g}:{bb+4*g+3}], v5 offset:{512 + ft*128 + g*32}")
        e("s_waitcnt lgkmcnt(0)")
        for r in range(16):
            e(f"v_fma_f32 v{acc+r}, v{acc+r}, v{vA}, v{bb+r}")
            e(f"v_fma_f32 v{acc+r}, -v{vB}, v{cs+r}, v{acc+r}")
            e(f"v_max_f32 v{acc+r}, 0, v{acc+r}")
            e(f"v_mul_f32 v{acc+r}, v{acc+r}, v{acc+r}")
        for d in range(8):
            e(f"v_cvt_pk_bf16_f32 v{144+8*ft+d}, v{acc+2*d}, v{acc+2*d+1}")
    def st4(fl):
        for ft in range(4):
            if ft == 2: e(f"s_add_u32 s{sT0}, s{sT0}, 4096")
            e(f"buffer_store_dwordx4 v[{144+8*ft}:{147+8*ft}], v{vL16}, {srd(sWS)}, s{sT0} offen offset:{(ft%2)*2048}{fl}")
            e(f"buffer_store_dwordx4 v[{148+8*ft}:{151+8*ft}], v{vL16}, {srd(sWS)}, s{sT0} offen offset:{(ft%2)*2048+1024}{fl}")
    moded(st4)
    e("s_waitcnt vmcnt(0)")
    e(f"s_branch {Lp4e}")
    a.lab(Lidle)
    e("s_barrier")
    e("s_barrier")
    a.lab(Lp4e)
    team_signal(3, 4)
    stamp(14)
    endif_stop(4)

    team_wait(3, 4)
    stamp(15)
    tile_ids()
    e(f"s_mul_i32 s{sT0+2}, s{sT0+3}, 56")
    NX = 28
    e(f"s_mul_i32 s{sT0+9}, s{sT0+4}, {112*1024}")
    e(f"s_add_u32 s{sT0+9}, s{sT0+9}, {HF}")
    e(f"s_lshl_b32 s{sT0+7}, s{sT0+2}, 10")
    e(f"s_add_u32 s{sT0+9}, s{sT0+9}, s{sT0+7}")
    def xload(k):
        if k and k % 4 == 0: e(f"s_add_u32 s{sT0+9}, s{sT0+9}, 4096")
        d = 64 + 4*(k % NX)
        e(f"buffer_load_dwordx4 v[{d}:{d+3}], v{vL16}, {srd(sWS)}, s{sT0+9} offen offset:{(k%4)*1024} sc1")
    for k in range(NX): xload(k)
    e(f"s_lshl_b32 s{sT0+8}, s{sT0+3}, 14")
    n64_bases(4, 5, f"s{sT0+8}")
    vWf = 176
    e("s_barrier")
    stamp(16)
    def wread5(s):
        q, ss = divmod(s, 8)
        dst = vWf + 8*(s % 3)
        off = (q % 4)*32768 + ss*2048
        if off >= 65536:
            b0, b1, off = 8, 9, off - 65536
        else:
            b0, b1 = 4, 5
        e(f"ds_read_b64_tr_b16 v[{dst}:{dst+1}], v{b0} offset:{off}")
        e(f"ds_read_b64_tr_b16 v[{dst+2}:{dst+3}], v{b0} offset:{off+1024}")
        e(f"ds_read_b64_tr_b16 v[{dst+4}:{dst+5}], v{b1} offset:{off}")
        e(f"ds_read_b64_tr_b16 v[{dst+6}:{dst+7}], v{b1} offset:{off+1024}")
    e("v_add_u32 v8, 65536, v4"); e("v_add_u32 v9, 65536, v5")
    for q in range(7):
        s0 = 8*q
        wread5(s0); wread5(s0+1)
        for ss in range(8):
            s = s0 + ss
            issued = min(56, s + NX)
            e(f"s_waitcnt vmcnt({issued - s - 1})")
            if ss + 2 < 8: wread5(s + 2)
            e(f"s_waitcnt lgkmcnt({4*min(2, 7-ss)})")
            w = vWf + 8*(s % 3); x = 64 + 4*(s % NX)
            c0 = "0" if s == 0 else "v[16:31]"; c1 = "0" if s == 0 else "v[32:47]"
            e(f"v_mfma_f32_32x32x16_bf16 v[16:31], v[{w}:{w+3}], v[{x}:{x+3}], {c0}")
            e(f"v_mfma_f32_32x32x16_bf16 v[32:47], v[{w+4}:{w+7}], v[{x}:{x+3}], {c1}")
            if s + NX < 56: xload(s + NX)
        if q < 6: e("s_barrier")
    stamp(17)
    exchange_and_epilogue(True)
    stamp(18)
    e(f"s_cmp_eq_u32 s{sL}, 1"); e("s_cbranch_scc1 L_end")
    a.lab("L_next_layer")
    if STOP == 5:
        e("s_waitcnt vmcnt(0) lgkmcnt(0)"); e("s_branch L_end")
    e(f"s_mov_b32 s{sL}, 1")
    e(f"s_mov_b32 s{sKVO}, {LSTRIDE}")
    e("s_branch L_layer")
    a.lab("L_end")
    e("s_endpgm")
    return a.text()

HEADER = """; Fused 2-layer (sliding-window attention + squared-ReLU MLP) megakernel for gfx950.
; @launch grid=(256,1,1) block=(512,1,1) lds=163840
.amdgcn_target "amdgcn-amd-amdhsa--gfx950"
.text
.globl {n}_kernel
.p2align 8
.type {n}_kernel,@function
{n}_kernel:
"""
FOOTER = """.section .rodata,"a"
.p2align 6
.amdhsa_kernel {n}_kernel
  .amdhsa_next_free_vgpr 256
  .amdhsa_next_free_sgpr 102
  .amdhsa_accum_offset 256
  .amdhsa_group_segment_fixed_size 0
  .amdhsa_kernarg_size 88
  .amdhsa_user_sgpr_count 2
  .amdhsa_user_sgpr_kernarg_segment_ptr 1
  .amdhsa_system_sgpr_workgroup_id_x 1
.end_amdhsa_kernel
"""
if __name__ == "__main__":
    ap = argparse.ArgumentParser()
    ap.add_argument("--stop", type=int, default=-1)
    ap.add_argument("--slow", action="store_true")
    ap.add_argument("--stamps", action="store_true")
    ap.add_argument("--dbgq", action="store_true")
    ap.add_argument("-o", default="/dev/stdout")
    args = ap.parse_args()
    body = build(args)
    open(args.o, "w").write(HEADER.format(n=NAME) + body + FOOTER.format(n=NAME))
```

```python
import sys, argparse, struct

NAME = "interleave_layers__sliding_block__dense_activation_squared_relu__prompt"

CTRL = 0x0
C_KV  = 1024
STAMP= 0x20000
XF   = 0x100000
X2F  = 0x300000
OF   = 0x500000
ST1  = 0x700000
ST2  = 0x740000
KF   = 0x800000
VF   = 0xC00000
HF   = 0x1000000
LSTRIDE = 0x200000

L_KST  = 0
L_VST  = 24576
L_QST  = 49152
L_WO   = 65536
L_EX   = 131072
L_STA  = 147456
L_MD   = 151552
L_MF   = L_MD + 4096
L_MB   = L_MF + 4096
L_CS1  = L_MB + 2048
L_CS4  = L_CS1 + 512
L_B1   = L_CS4 + 512
L_B2   = L_B1 + 512
L_MODE = L_B2 + 256
LDS_BYTES = 163840
assert L_MODE + 16 <= LDS_BYTES

NEG = 0xF149F2CA
QSCALE = 0.25 * 1.4426950408889634
def f2u(f): return struct.unpack("<I", struct.pack("<f", f))[0]

sWS, sWQ, sWO, sW1, sW2, sX, sOUT, sDBG, sTS = 8, 12, 16, 20, 24, 28, 32, 36, 40
sB, sI, sW, sMODE, sL, sTEAM, sMYF, sFAIL = 44, 45, 46, 47, 48, 49, 50, 51
sT0 = 52
sKA = 64
sM16, sM32 = 86, 88
sTGT, sCNT, sXCC, sN, sKVO, sNONCE = 90, 91, 92, 93, 94, 95
sXS = 61
sW1S = 60
def srd(x): return f"s[{x}:{x+3}]"
def sp(x): return f"s[{x}:{x+1}]"
def V(a, n=1): return f"v{a}" if n == 1 else f"v[{a}:{a+n-1}]"

vLANE, vL16 = 0, 1
vRES = 248
vSTG = 180

class Asm:
    def __init__(self): self.l = []; self.uid = 0
    def e(self, s): self.l.append("  " + s)
    def lab(self, s): self.l.append(s + ":")
    def new(self, p="L"):
        self.uid += 1; return f"{p}_{self.uid}"
    def text(self): return "\n".join(self.l) + "\n"
    def nop(self, n):
        while n > 0:
            k = min(n, 16); self.e(f"s_nop {k-1}"); n -= k

def build(args):
    a = Asm(); e = a.e
    STOP = args.stop
    POLL_LIMIT = 1 << 18
    XA = args.xahead
    MF = "v_mfma_f32_32x32x16_bf16"

    def fstamp(name):
        if not args.fine or name not in args.fine.split(","): return
        k = args.fine.split(",").index(name)
        e(f"s_memrealtime s[{64+2*k}:{65+2*k}]" if args.rt else f"s_memtime s[{64+2*k}:{65+2*k}]")

    def poll(voff, soff, tgt, vtmp, sleep=1):
        L = a.new("L_poll"); D = a.new("L_pdone")
        e(f"s_mov_b32 s{sCNT}, {POLL_LIMIT}")
        e(f"s_cmp_eq_u32 s{sFAIL}, 0"); e(f"s_cbranch_scc0 {D}")
        a.lab(L)
        e(f"buffer_load_dword v{vtmp}, v{voff}, {srd(sWS)}, s{soff} offen sc1")
        e("s_waitcnt vmcnt(0)")
        e(f"v_cmp_gt_u32 vcc, s{tgt}, v{vtmp}")
        e(f"s_cbranch_vccz {D}")
        if sleep: e(f"s_sleep {sleep}")
        e(f"s_sub_u32 s{sCNT}, s{sCNT}, 1"); e(f"s_cbranch_scc0 {L}")
        e(f"s_mov_b32 s{sFAIL}, 1")
        a.lab(D)

    def poll64(voff, soff, tgt, vtmp, sleep=2):
        L = a.new("L_poll"); D = a.new("L_pdone")
        e(f"s_mov_b32 s{sCNT}, {POLL_LIMIT}")
        e(f"s_cmp_eq_u32 s{sFAIL}, 0"); e(f"s_cbranch_scc0 {D}")
        a.lab(L)
        e(f"buffer_load_dwordx2 v[{vtmp}:{vtmp+1}], v{voff}, {srd(sWS)}, s{soff} offen sc1")
        e("s_waitcnt vmcnt(0)")
        e(f"v_subrev_u32 v{vtmp+2}, s{tgt}, v{vtmp+1}")
        e(f"v_cmp_ne_u32 vcc, s{sNONCE}, v{vtmp}")
        e(f"v_cmp_lt_u32 s[{sT0+10}:{sT0+11}], 31, v{vtmp+2}")
        e(f"s_or_b64 vcc, vcc, s[{sT0+10}:{sT0+11}]")
        e(f"s_cbranch_vccz {D}")
        if sleep: e(f"s_sleep {sleep}")
        e(f"s_sub_u32 s{sCNT}, s{sCNT}, 1"); e(f"s_cbranch_scc0 {L}")
        e(f"s_mov_b32 s{sFAIL}, 1")
        a.lab(D)

    def nonce_poll(v):
        L = a.new("L_npoll"); D = a.new("L_ndone")
        e(f"v_mov_b32 v{v}, 0")
        e(f"s_mov_b32 s{sCNT}, {POLL_LIMIT}")
        a.lab(L)
        e(f"buffer_load_dword v{v+1}, v{v}, {srd(sDBG)}, 0 offen sc1")
        e("s_waitcnt vmcnt(0)")
        e(f"v_readfirstlane_b32 s{sNONCE}, v{v+1}")
        e(f"s_cmp_lg_u32 s{sNONCE}, 0"); e(f"s_cbranch_scc1 {D}")
        e("s_sleep 2")
        e(f"s_sub_u32 s{sCNT}, s{sCNT}, 1"); e(f"s_cbranch_scc0 {L}")
        e(f"s_mov_b32 s{sFAIL}, 1")
        a.lab(D)

    def moded(fn):
        F = a.new("L_fast"); J = a.new("L_join")
        e(f"s_cmp_eq_u32 s{sMODE}, 1"); e(f"s_cbranch_scc1 {F}")
        fn(" sc1"); e(f"s_branch {J}")
        a.lab(F); fn(""); a.lab(J)

    def team_wait(delta, vt):
        e(f"s_lshl_b32 s{sTGT}, s{sL}, 2")
        e(f"s_add_u32 s{sTGT}, s{sTGT}, {delta}")
        e(f"v_lshlrev_b32 v{vt}, 2, v{vLANE}")
        poll(vt, sTEAM, sTGT, vt + 1)

    def team_signal(delta, vt):
        e(f"s_lshl_b32 s{sT0}, s{sL}, 2")
        e(f"s_add_u32 s{sT0}, s{sT0}, {delta}")
        e(f"v_mov_b32 v{vt}, s{sT0}"); e(f"v_mov_b32 v{vt+1}, 0")
        e("s_mov_b64 exec, 1")
        moded(lambda fl: e(f"buffer_store_dword v{vt}, v{vt+1}, {srd(sWS)}, s{sMYF} offen{fl}"))
        e("s_mov_b64 exec, -1")

    def tr_base_common(vrow, vcol, vt):
        e(f"v_lshrrev_b32 v{vrow}, 5, v{vLANE}")
        e(f"v_lshlrev_b32 v{vrow}, 2, v{vrow}")
        e(f"v_bfe_u32 v{vt}, v{vLANE}, 2, 2")
        e(f"v_add_u32 v{vrow}, v{vrow}, v{vt}")
        e(f"v_bfe_u32 v{vcol}, v{vLANE}, 4, 1")
        e(f"v_lshlrev_b32 v{vcol}, 5, v{vcol}")
        e(f"v_and_b32 v{vt}, 3, v{vLANE}")
        e(f"v_lshlrev_b32 v{vt}, 3, v{vt}")
        e(f"v_add_u32 v{vcol}, v{vcol}, v{vt}")

    def voff_qkv(v, vt):
        e(f"v_lshrrev_b32 v{v}, 2, v{vLANE}")
        e(f"v_mul_u32_u24 v{v}, 3072, v{v}")
        e(f"v_and_b32 v{vt}, 3, v{vLANE}")
        e(f"v_lshl_add_u32 v{v}, v{vt}, 4, v{v}")
    def voff_n64(v, vt):
        e(f"v_lshrrev_b32 v{v}, 3, v{vLANE}")
        e(f"v_lshlrev_b32 v{v}, 10, v{v}")
        e(f"v_lshrrev_b32 v{vt}, 2, v{vLANE}")
        e(f"v_lshrrev_b32 v{vt+1}, 4, v{vLANE}")
        e(f"v_xor_b32 v{vt}, v{vt}, v{vt+1}")
        e(f"v_and_b32 v{vt}, 1, v{vt}")
        e(f"v_lshl_add_u32 v{v}, v{vt}, 6, v{v}")
        e(f"v_and_b32 v{vt}, 3, v{vLANE}")
        e(f"v_lshl_add_u32 v{v}, v{vt}, 4, v{v}")
    def voff_n128(v, vt):
        e(f"v_lshrrev_b32 v{v}, 4, v{vLANE}")
        e(f"v_bfe_u32 v{vt}, v{vLANE}, 2, 2")
        e(f"v_xor_b32 v{vt}, v{vt}, v{v}")
        e(f"v_mul_u32_u24 v{v}, 3584, v{v}")
        e(f"v_lshl_add_u32 v{v}, v{vt}, 6, v{v}")
        e(f"v_and_b32 v{vt}, 3, v{vLANE}")
        e(f"v_lshl_add_u32 v{v}, v{vt}, 4, v{v}")

    def dma_loop(srd_reg, voff, soff_reg, soff_step, lds_step, count, sleep=0):
        L = a.new("L_dma")
        e(f"s_mov_b32 s{sCNT}, {count}")
        a.lab(L)
        e(f"buffer_load_dwordx4 v{voff}, {srd(srd_reg)}, s{soff_reg} offen lds")
        if sleep: e(f"s_sleep {sleep}")
        e(f"s_add_u32 m0, m0, {lds_step}")
        e(f"s_add_u32 s{soff_reg}, s{soff_reg}, {soff_step}")
        e(f"s_sub_u32 s{sCNT}, s{sCNT}, 1"); e(f"s_cmp_lg_u32 s{sCNT}, 0"); e(f"s_cbranch_scc1 {L}")

    def dma_wqkv(first, count):
        S = a.new("L_skip")
        e(f"s_cmp_lt_u32 s{sW}, 5"); e(f"s_cbranch_scc1 {S}")
        voff_qkv(2, 3)
        e(f"s_sub_u32 s{sT0}, s{sW}, 5")
        e(f"s_lshl_b32 s{sT0+1}, s{sT0}, 10")
        e(f"s_lshl_b32 s{sT0+2}, s{sI}, 6")
        e(f"s_add_u32 s{sT0+1}, s{sT0+1}, s{sT0+2}")
        if first: e(f"s_add_u32 s{sT0+1}, s{sT0+1}, {first*16*3072}")
        e(f"s_lshl_b32 s{sT0}, s{sT0}, 15")
        e(f"s_add_u32 m0, s{sT0}, {first*1024}")
        dma_loop(sWQ, 2, sT0+1, 16*3072, 1024, count)
        a.lab(S)

    def colsum_init(kind):
        tr_base_common(4, 5, 6)
        e(f"s_sub_u32 s{sT0}, s{sW}, 4")
        if kind == "qkv":
            e(f"v_lshl_add_u32 v4, v4, 6, v5")
            e(f"s_lshl_b32 s{sT0+1}, s{sT0}, 15")
            e(f"v_add_u32 v4, s{sT0+1}, v4")
        else:
            e(f"v_and_b32 v6, 3, v4")
            e(f"v_xor_b32 v6, s{sT0}, v6")
            e(f"v_lshl_add_u32 v5, v6, 6, v5")
            e(f"v_lshl_add_u32 v4, v4, 8, v5")
        for r in range(8, 12): e(f"v_mov_b32 v{r}, 0")
    def colsum_chunk(kind, tmp, extra=None):
        step, second = (1024, 512) if kind == "qkv" else (4096, 2048)
        for k in range(8):
            e(f"ds_read_b64_tr_b16 v[{tmp+4*k}:{tmp+4*k+1}], v4 offset:{k*step}")
            e(f"ds_read_b64_tr_b16 v[{tmp+4*k+2}:{tmp+4*k+3}], v4 offset:{k*step+second}")
        e(f"v_add_u32 v4, {8*step}, v4")
        for k in range(8):
            if extra: extra(k)
            e(f"s_waitcnt lgkmcnt({14-2*k})")
            for d in range(4):
                r = tmp + 4*k + d
                e(f"v_lshlrev_b32 v12, 16, v{r}")
                e(f"v_and_b32 v13, 0xffff0000, v{r}")
                e(f"v_pk_add_f32 v[{8+2*(d%2)}:{9+2*(d%2)}], v[{8+2*(d%2)}:{9+2*(d%2)}], v[12:13]")
    def colsum_fin(kind):
        cs = L_CS1 if kind == "qkv" else L_CS4
        e("v_add_f32 v8, v8, v9"); e("v_add_f32 v10, v10, v11"); e("v_add_f32 v8, v8, v10")
        e("v_mov_b32 v9, v8"); a.nop(2)
        e("v_permlane32_swap_b32 v9, v8"); a.nop(1)
        e("v_add_f32 v8, v8, v9")
        e(f"s_sub_u32 s{sT0}, s{sW}, 4")
        e(f"s_lshl_b32 s{sT0+1}, s{sT0}, 7"); e(f"s_add_u32 s{sT0+1}, s{sT0+1}, {cs}")
        e(f"v_lshl_add_u32 v10, v{vLANE}, 2, s{sT0+1}")
        e(f"s_mov_b64 exec, {sp(sM32)}"); e("ds_write_b32 v10, v8"); e("s_mov_b64 exec, -1")
        e("s_waitcnt lgkmcnt(0)")

    def load_stats(st_base, vdst, voff, tile_sreg):
        e(f"v_lshrrev_b32 v{voff}, 5, v{vLANE}")
        e(f"v_lshlrev_b32 v{voff}, 11, v{voff}")
        e(f"v_and_b32 v{voff+1}, 31, v{vLANE}")
        e(f"v_lshl_add_u32 v{voff}, v{voff+1}, 3, v{voff}")
        e(f"s_lshl_b32 s{sT0+5}, s{tile_sreg}, 12")
        e(f"s_add_u32 s{sT0+5}, s{sT0+5}, {st_base}")
        for k in range(8):
            e(f"buffer_load_dwordx2 v[{vdst+2*k}:{vdst+2*k+1}], v{voff}, {srd(sWS)}, s{sT0+5} offen offset:{k*256} sc1")

    def reduce_partials(vsrc):
        for k in (1, 3, 5, 7):
            e(f"v_pk_add_f32 v[{vsrc+2*(k-1)}:{vsrc+2*(k-1)+1}], v[{vsrc+2*(k-1)}:{vsrc+2*(k-1)+1}], v[{vsrc+2*k}:{vsrc+2*k+1}]")
        e(f"v_pk_add_f32 v[{vsrc}:{vsrc+1}], v[{vsrc}:{vsrc+1}], v[{vsrc+4}:{vsrc+5}]")
        e(f"v_pk_add_f32 v[{vsrc+8}:{vsrc+9}], v[{vsrc+8}:{vsrc+9}], v[{vsrc+12}:{vsrc+13}]")
        e(f"v_pk_add_f32 v[{vsrc}:{vsrc+1}], v[{vsrc}:{vsrc+1}], v[{vsrc+8}:{vsrc+9}]")
    def finish_stats(vsrc, vA, vB):
        e(f"v_mov_b32 v{vsrc+2}, v{vsrc}"); e(f"v_mov_b32 v{vsrc+3}, v{vsrc+1}")
        a.nop(2)
        e(f"v_permlane32_swap_b32 v{vsrc+2}, v{vsrc}"); e(f"v_permlane32_swap_b32 v{vsrc+3}, v{vsrc+1}")
        a.nop(1)
        e(f"v_pk_add_f32 v[{vsrc}:{vsrc+1}], v[{vsrc}:{vsrc+1}], v[{vsrc+2}:{vsrc+3}]")
        e(f"v_mul_f32 v{vsrc}, {f2u(1/512):#x}, v{vsrc}")
        e(f"v_mul_f32 v{vsrc+1}, {f2u(1/512):#x}, v{vsrc+1}")
        e(f"v_fma_f32 v{vsrc+1}, -v{vsrc}, v{vsrc}, v{vsrc+1}")
        e(f"v_max_f32 v{vsrc+1}, 0, v{vsrc+1}")
        e(f"v_add_f32 v{vsrc+1}, {f2u(1e-5):#x}, v{vsrc+1}")
        e(f"v_rsq_f32 v{vA}, v{vsrc+1}")
        a.nop(1)
        e(f"v_mul_f32 v{vB}, v{vsrc}, v{vA}")

    def x_setup(base, nsteps_total, s0_sreg, tile_sreg):
        e(f"s_mul_i32 s{sXS}, s{tile_sreg}, {nsteps_total*1024}")
        e(f"s_add_u32 s{sXS}, s{sXS}, {base}")
        if s0_sreg is not None:
            e(f"s_lshl_b32 s{sT0+7}, s{s0_sreg}, 10")
            e(f"s_add_u32 s{sXS}, s{sXS}, s{sT0+7}")
    def x_load(k, dst):
        if k and k % 4 == 0: e(f"s_add_u32 s{sXS}, s{sXS}, 4096")
        e(f"buffer_load_dwordx4 v[{dst}:{dst+3}], v{vL16}, {srd(sWS)}, s{sXS} offen offset:{(k%4)*1024} sc1")

    def tile_ids():
        e(f"s_lshl_b32 s{sT0+4}, s{sB}, 2")
        e(f"s_lshr_b32 s{sT0+1}, s{sI}, 3"); e(f"s_lshl_b32 s{sT0+1}, s{sT0+1}, 1")
        e(f"s_add_u32 s{sT0+4}, s{sT0+4}, s{sT0+1}")
        e(f"s_and_b32 s{sT0+1}, s{sW}, 1"); e(f"s_add_u32 s{sT0+4}, s{sT0+4}, s{sT0+1}")
        e(f"s_lshr_b32 s{sT0+3}, s{sW}, 1")

    e("s_cmp_ge_u32 s2, 256"); e("s_cbranch_scc1 L_end")
    e(f"s_load_dwordx16 s[{sKA}:{sKA+15}], s[0:1], 0")
    e(f"s_load_dwordx4 s[{sKA+16}:{sKA+19}], s[0:1], 64")
    e(f"s_load_dwordx2 s[{sKA+20}:{sKA+21}], s[0:1], 80")
    e(f"v_lshrrev_b32 v2, 6, v0")
    e(f"v_and_b32 v{vLANE}, 63, v0")
    e(f"v_readfirstlane_b32 s{sW}, v2")
    e(f"v_lshlrev_b32 v{vL16}, 4, v{vLANE}")
    e(f"s_and_b32 s{sB}, s2, 7"); e(f"s_lshl_b32 s{sB}, s{sB}, 1")
    e(f"s_lshr_b32 s{sT0}, s2, 7"); e(f"s_or_b32 s{sB}, s{sB}, s{sT0}")
    e(f"s_bfe_u32 s{sI}, s2, 0x40003")
    e(f"s_mov_b32 s{sL}, 0"); e(f"s_mov_b32 s{sFAIL}, 0"); e(f"s_mov_b32 s{sKVO}, 0"); e(f"s_mov_b32 s{sMODE}, 0"); e(f"s_mov_b32 s{sNONCE}, 0")
    e(f"s_mov_b32 s{sM16}, 0x0000ffff"); e(f"s_mov_b32 s{sM16+1}, 0x0000ffff")
    e(f"s_mov_b32 s{sM32}, -1"); e(f"s_mov_b32 s{sM32+1}, 0")
    e(f"s_getreg_b32 s{sXCC}, hwreg(HW_REG_XCC_ID, 0, 4)")
    e(f"s_lshl_b32 s{sTEAM}, s{sB}, 12")
    e(f"s_lshl_b32 s{sMYF}, s{sI}, 4"); e(f"s_add_u32 s{sMYF}, s{sMYF}, s{sTEAM}")
    e(f"s_and_b32 s{sT0}, s{sW}, 3"); e(f"s_lshl_b32 s{sT0}, s{sT0}, 2"); e(f"s_add_u32 s{sMYF}, s{sMYF}, s{sT0}")
    e("s_waitcnt lgkmcnt(0)")
    def mk(dst, src, size):
        e(f"s_mov_b32 s{dst}, s{src}"); e(f"s_and_b32 s{dst+1}, s{src+1}, 0xffff")
        e(f"s_mov_b32 s{dst+2}, {size}"); e(f"s_mov_b32 s{dst+3}, 0x00020000")
    mk(sX, sKA+0, 2048*512*2); mk(sWQ, sKA+2, 512*1536*2); mk(sWO, sKA+4, 512*512*2)
    mk(sW1, sKA+8, 512*1792*2); mk(sW2, sKA+12, 1792*512*2); mk(sOUT, sKA+16, 2048*512*2)
    mk(sDBG, sKA+18, 256); mk(sWS, sKA+20, 0x10000000)
    e(f"s_cmp_ge_u32 s{sW}, 4"); e("s_cbranch_scc1 L_pro_helper")

    vX = 64; vAcc = 16; vWf = 192
    vXO = 14
    Lnb = a.new("L_nobias")
    e(f"s_cmp_lg_u32 s{sW}, 3"); e(f"s_cbranch_scc1 {Lnb}")
    mk(sTS, sKA+10, 1792*2)
    e(f"v_lshlrev_b32 v20, 1, v{vLANE}")
    e(f"s_lshl_b32 s{sT0+2}, s{sI}, 8")
    e(f"buffer_load_ushort v21, v20, {srd(sTS)}, s{sT0+2} offen")
    e(f"buffer_load_ushort v22, v20, {srd(sTS)}, s{sT0+2} offen offset:128")
    mk(sTS, sKA+14, 512*2)
    e(f"s_and_b32 s{sT0+2}, s{sI}, 7"); e(f"s_lshl_b32 s{sT0+2}, s{sT0+2}, 7")
    e(f"buffer_load_ushort v23, v20, {srd(sTS)}, s{sT0+2} offen")
    a.lab(Lnb)
    fstamp("start")
    tile_ids()
    e(f"v_and_b32 v10, 31, v{vLANE}"); e(f"v_lshlrev_b32 v10, 10, v10")
    e(f"v_lshrrev_b32 v11, 5, v{vLANE}")
    e(f"v_lshl_add_u32 v{vXO}, v11, 4, v10")
    e(f"v_lshl_add_u32 v10, v11, 3, v10")
    e(f"s_lshl_b32 s{sT0}, s{sT0+4}, 15")
    e(f"s_and_b32 s{sT0+1}, s{sI}, 7"); e(f"s_lshl_b32 s{sT0+1}, s{sT0+1}, 7"); e(f"s_add_u32 s{sT0}, s{sT0}, s{sT0+1}")
    e(f"s_lshl_b32 s{sT0+1}, s{sT0+3}, 6"); e(f"s_add_u32 s{sT0}, s{sT0}, s{sT0+1}")
    for g in range(4):
        e(f"buffer_load_dwordx2 v[{vRES+2*g}:{vRES+2*g+1}], v10, {srd(sX)}, s{sT0} offen offset:{g*16}")
    e(f"s_lshl_b32 s{sXS}, s{sB}, 2"); e(f"s_add_u32 s{sXS}, s{sXS}, s{sW}"); e(f"s_lshl_b32 s{sXS}, s{sXS}, 15")
    XA0 = args.xahead0
    def x0_load(k): e(f"buffer_load_dwordx4 v[{vX+4*k}:{vX+4*k+3}], v{vXO}, {srd(sX)}, s{sXS} offen offset:{k*32}")
    for k in range(XA0): x0_load(k)
    Lw1, Lw2, Lw3, Ltab = a.new("L_w1"), a.new("L_w2"), a.new("L_w3"), a.new("L_tabdone")
    e(f"v_and_b32 v16, 31, v{vLANE}"); e(f"v_lshrrev_b32 v17, 5, v{vLANE}"); e(f"v_lshlrev_b32 v17, 2, v17")
    e(f"v_sub_u32 v16, v16, v17")
    e(f"v_mov_b32 v18, 0"); e(f"v_mov_b32 v19, {NEG:#x}")
    e(f"s_cmp_eq_u32 s{sW}, 3"); e(f"s_cbranch_scc1 {Lw3}")
    e(f"s_cmp_eq_u32 s{sW}, 2"); e(f"s_cbranch_scc1 {Lw2}")
    e(f"s_cmp_eq_u32 s{sW}, 1"); e(f"s_cbranch_scc1 {Lw1}")
    for (lab, base, inv) in ((None, L_MD, False), (Lw1, L_MF, True)):
        if lab: a.lab(lab)
        for g in range(4):
            for i in range(4):
                e(f"v_cmp_le_i32 vcc, {8*g+i}, v16"); a.nop(2)
                e(f"v_cndmask_b32 v{24+i}, v19, v18, vcc" if not inv else f"v_cndmask_b32 v{24+i}, v18, v19, vcc")
            e(f"v_add_u32 v28, {base + g*1024}, v{vL16}")
            e(f"ds_write_b128 v28, v[24:27]"); a.nop(2)
        e(f"s_branch {Ltab}")
    a.lab(Lw2)
    e(f"v_mov_b32 v29, 0xffff"); e(f"v_mov_b32 v30, 0xffff0000")
    for half in range(2):
        for dd in range(4):
            d = half*4 + dd; r0, r1 = 2*d, 2*d+1
            c0 = 8*(r0 >> 2) + (r0 & 3); c1 = 8*(r1 >> 2) + (r1 & 3)
            e(f"v_cmp_le_i32 vcc, {c0}, v16"); a.nop(2); e(f"v_cndmask_b32 v31, v18, v29, vcc")
            e(f"v_cmp_le_i32 vcc, {c1}, v16"); a.nop(2); e(f"v_cndmask_b32 v32, v18, v30, vcc")
            e(f"v_or_b32 v{24+dd}, v31, v32")
        e(f"v_add_u32 v28, {L_MB + half*1024}, v{vL16}")
        e(f"ds_write_b128 v28, v[24:27]"); a.nop(2)
    e(f"s_branch {Ltab}")
    a.lab(Lw3)
    e(f"s_waitcnt vmcnt({4 + XA0})")
    e("v_lshlrev_b32 v21, 16, v21"); e("v_lshlrev_b32 v22, 16, v22"); e("v_lshlrev_b32 v23, 16, v23")
    e(f"v_lshlrev_b32 v24, 2, v{vLANE}"); e(f"v_add_u32 v24, {L_B1}, v24")
    e(f"ds_write_b32 v24, v21"); e(f"ds_write_b32 v24, v22 offset:256"); e(f"ds_write_b32 v24, v23 offset:512")
    a.lab(Ltab)

    def wread1(tile, s, dst):
        b = 4 if tile < 2 else 5
        off = (tile % 2) * 32768 + s * 1024
        e(f"ds_read_b64_tr_b16 v[{dst}:{dst+1}], v{b} offset:{off}")
        e(f"ds_read_b64_tr_b16 v[{dst+2}:{dst+3}], v{b} offset:{off+512}")
    ORDER1 = (1, 2, 0)
    def p1_bases():
        tr_base_common(4, 5, 6)
        e("v_lshl_add_u32 v4, v4, 6, v5"); e("v_add_u32 v5, 65536, v4")
    def p1_mfma(t, s, cur):
        acc = vAcc + 16*t; c = "0" if s == 0 else V(acc, 16); x = vX + 4*s; w = cur + 4*t
        if t < 2: e(f"{MF} {V(acc,16)}, {V(w,4)}, {V(x,4)}, {c}")
        else:     e(f"{MF} {V(acc,16)}, {V(x,4)}, {V(w,4)}, {c}")

    p1_bases()
    for r in range(8, 12): e(f"v_mov_b32 v{r}, 0")
    def prep0(s):
        x = vX + 4*s; ops = [f"v_permlane32_swap_b32 v{x}, v{x+2}", f"v_permlane32_swap_b32 v{x+1}, v{x+3}"]
        for d in range(4):
            ops += [f"v_lshlrev_b32 v12, 16, v{x+d}", f"v_and_b32 v13, 0xffff0000, v{x+d}",
                    f"v_add_f32 v8, v8, v12", f"v_fmac_f32 v10, v12, v12", f"v_add_f32 v9, v9, v13", f"v_fmac_f32 v11, v13, v13"]
        return ops
    e("s_barrier")
    fstamp("p1B")
    for t in ORDER1: wread1(t, 0, vWf + 4*t)
    e(f"s_waitcnt vmcnt({XA0-1})")
    fstamp("p1x0")
    x0_load(XA0)
    for op in prep0(0): e(op)
    for s in range(32):
        cur = vWf + 12*(s % 2); nxt = vWf + 12*((s+1) % 2)
        if s % 8 == 7 and s < 31: e("s_barrier")
        ops = []
        if s < 31:
            issued = min(32, XA0 + 1 + s)
            e(f"s_waitcnt vmcnt({issued - (s+1) - 1})")
            if s + 1 + XA0 < 32: x0_load(s + 1 + XA0)
            ops = prep0(s+1)
        for n, t in enumerate(ORDER1):
            last = (s == 31)
            e(f"s_waitcnt lgkmcnt({4 if not last else 2*(2-n)})")
            p1_mfma(t, s, cur)
            if not last: wread1(t, s+1, nxt + 4*t)
            lo, hi = (len(ops)*n)//3, (len(ops)*(n+1))//3
            for op in ops[lo:hi]: e(op)
    e("v_add_f32 v8, v8, v9"); e("v_add_f32 v9, v10, v11")
    e("v_mov_b32 v216, v8"); e("v_mov_b32 v217, v9")
    e("s_branch L_p1_epi")

    a.lab("L_p1_l1")
    team_wait(0, 4)
    fstamp("p1poll")
    e(f"s_lshl_b32 s{sT0+4}, s{sB}, 2"); e(f"s_add_u32 s{sT0+4}, s{sT0+4}, s{sW}")
    load_stats(ST1, 216, 4, sT0+4)
    x_setup(XF, 32, None, sT0+4)
    for k in range(XA): x_load(k, vX + 4*k)
    p1_bases()
    e("s_barrier")
    for t in ORDER1: wread1(t, 0, vWf + 4*t)
    for s in range(32):
        cur = vWf + 12*(s % 2); nxt = vWf + 12*((s+1) % 2)
        if s % 8 == 7 and s < 31: e("s_barrier")
        e(f"s_waitcnt vmcnt({min(XA, 32-s)-1})")
        if s + XA < 32: x_load(s + XA, vX + 4*(s + XA))
        for n, t in enumerate(ORDER1):
            last = (s == 31)
            e(f"s_waitcnt lgkmcnt({4 if not last else 2*(2-n)})")
            p1_mfma(t, s, cur)
            if not last: wread1(t, s+1, nxt + 4*t)
    reduce_partials(216)

    a.lab("L_p1_epi")
    fstamp("p1main")
    e("s_barrier")
    e("v_mov_b32 v14, 0")
    e(f"buffer_load_dword v15, v14, {srd(sDBG)}, 0 offen sc1")
    vA, vB = 8, 10
    e(f"v_lshrrev_b32 v7, 5, v{vLANE}"); e(f"v_lshlrev_b32 v7, 4, v7")
    e(f"v_add_u32 v6, {L_CS1}, v7")
    for t in range(2):
        for g in range(4): e(f"ds_read_b128 {V(64+16*t+4*g,4)}, v6 offset:{t*128 + g*32}")
    e(f"v_and_b32 v6, 31, v{vLANE}"); e(f"v_lshlrev_b32 v6, 2, v6"); e(f"v_add_u32 v13, {L_CS1+256}, v6")
    e(f"ds_read_b32 v12, v13")
    finish_stats(216, vA, vB)
    e(f"s_lshl_b32 s{sT0}, s{sW}, 8"); e(f"s_add_u32 s{sT0}, s{sT0}, {L_STA}")
    e(f"v_add_u32 v6, s{sT0}, v6")
    e(f"ds_write_b32 v6, v{vA}"); e(f"ds_write_b32 v6, v{vB} offset:128")
    e(f"v_add_u32 v7, s{sT0}, v7")
    for g in range(4):
        e(f"ds_read_b128 {V(96+4*g,4)}, v7 offset:{g*32}")
        e(f"ds_read_b128 {V(112+4*g,4)}, v7 offset:{128+g*32}")
    e(f"s_lshl_b32 s{sT0+4}, s{sB}, 2"); e(f"s_add_u32 s{sT0+4}, s{sT0+4}, s{sW}")
    e(f"s_lshl_b32 s{sT0}, s{sT0+4}, 15"); e(f"s_lshl_b32 s{sT0+1}, s{sI}, 11")
    e(f"s_add_u32 s{sT0}, s{sT0}, s{sT0+1}"); e(f"s_add_u32 s{sT0}, s{sT0}, s{sKVO}")
    e(f"s_add_u32 s{sT0+1}, s{sT0}, {VF}"); e(f"s_add_u32 s{sT0}, s{sT0}, {KF}")
    e(f"s_lshl_b32 s{sT0+2}, s{sW}, 11"); e(f"v_add_u32 v6, s{sT0+2}, v{vL16}")
    def ln_tile_T(acc, cs, A, B, out):
        for p in range(8):
            e(f"v_pk_mul_f32 {V(acc+2*p,2)}, {V(acc+2*p,2)}, {V(A,2)} op_sel_hi:[1,0]")
            e(f"v_pk_fma_f32 {V(acc+2*p,2)}, {V(cs+2*p,2)}, {V(B,2)}, {V(acc+2*p,2)} op_sel_hi:[1,0,1] neg_lo:[0,1,0] neg_hi:[0,1,0]")
        for d in range(8): e(f"v_cvt_pk_bf16_f32 v{out+d}, v{acc+2*d}, v{acc+2*d+1}")
    e("s_waitcnt lgkmcnt(8)")
    ln_tile_T(vAcc+16, 80, vA, vB, 136)
    e(f"buffer_store_dwordx4 {V(136,4)}, v{vL16}, {srd(sWS)}, s{sT0} offen sc1")
    e(f"buffer_store_dwordx4 {V(140,4)}, v{vL16}, {srd(sWS)}, s{sT0} offen offset:1024 sc1")
    e("s_waitcnt lgkmcnt(0)")
    acc = vAcc + 32
    for p in range(8):
        e(f"v_pk_mul_f32 {V(acc+2*p,2)}, {V(acc+2*p,2)}, {V(96+2*p,2)}")
        e(f"v_pk_fma_f32 {V(acc+2*p,2)}, {V(112+2*p,2)}, {V(12,2)}, {V(acc+2*p,2)} op_sel_hi:[1,0,1] neg_lo:[1,0,0] neg_hi:[1,0,0]")
    for d in range(8): e(f"v_cvt_pk_bf16_f32 v{144+d}, v{acc+2*d}, v{acc+2*d+1}")
    e(f"buffer_store_dwordx4 {V(144,4)}, v{vL16}, {srd(sWS)}, s{sT0+1} offen sc1")
    e(f"buffer_store_dwordx4 {V(148,4)}, v{vL16}, {srd(sWS)}, s{sT0+1} offen offset:1024 sc1")
    e(f"v_mul_f32 v152, {f2u(QSCALE):#x}, v{vA}"); e(f"v_mul_f32 v154, {f2u(QSCALE):#x}, v{vB}")
    ln_tile_T(vAcc, 64, 152, 154, 128)
    e(f"ds_write_b128 v6, {V(128,4)} offset:{L_QST}"); e(f"ds_write_b128 v6, {V(132,4)} offset:{L_QST+1024}")
    e(f"ds_write_b128 v6, {V(136,4)} offset:{L_KST+16*1024}"); e(f"ds_write_b128 v6, {V(140,4)} offset:{L_KST+17*1024}")
    e(f"ds_write_b128 v6, {V(144,4)} offset:{L_VST+16*1024}"); e(f"ds_write_b128 v6, {V(148,4)} offset:{L_VST+17*1024}")
    if args.dbgq:
        e(f"s_lshl_b32 s{sT0}, s{sT0+4}, 15"); e(f"s_lshl_b32 s{sT0+1}, s{sI}, 11")
        e(f"s_add_u32 s{sT0}, s{sT0}, s{sT0+1}"); e(f"s_add_u32 s{sT0}, s{sT0}, {OF}")
        e(f"buffer_store_dwordx4 {V(128,4)}, v{vL16}, {srd(sWS)}, s{sT0} offen sc1")
        e(f"buffer_store_dwordx4 {V(132,4)}, v{vL16}, {srd(sWS)}, s{sT0} offen offset:1024 sc1")
    fstamp("p1pre")
    e("s_waitcnt vmcnt(0)")
    fstamp("p1drain")
    Lhn = a.new("L_havenonce")
    e(f"v_readfirstlane_b32 s{sNONCE}, v15")
    e(f"s_cmp_lg_u32 s{sNONCE}, 0"); e(f"s_cbranch_scc1 {Lhn}")
    nonce_poll(14)
    a.lab(Lhn)
    e(f"s_lshl_b32 s{sT0}, s{sI}, 7"); e(f"s_add_u32 s{sT0}, s{sT0}, s{sTEAM}")
    e(f"s_lshl_b32 s{sT0+1}, s{sW}, 3"); e(f"s_add_u32 s{sT0}, s{sT0}, s{sT0+1}"); e(f"s_add_u32 s{sT0}, s{sT0}, {C_KV}")
    e(f"s_add_u32 s{sT0+1}, s{sL}, 1")
    e(f"v_mov_b32 v10, s{sNONCE}"); e(f"v_mov_b32 v11, s{sT0+1}"); e("v_mov_b32 v12, 0")
    e("s_mov_b64 exec, 1")
    e(f"buffer_store_dwordx2 v[10:11], v12, {srd(sWS)}, s{sT0} offen sc1")
    e("s_mov_b64 exec, -1")
    if STOP == 1:
        e("s_waitcnt vmcnt(0) lgkmcnt(0)"); e("s_barrier"); e("s_branch L_end")
    Lnokv = a.new("L_nokv")
    e(f"s_lshr_b32 s{sT0}, s{sW}, 1"); e(f"s_add_u32 s{sT0}, s{sT0}, s{sB}"); e(f"s_sub_u32 s{sT0}, s{sT0}, 2")
    e(f"s_cbranch_scc1 {Lnokv}")
    e(f"s_lshl_b32 s{sT0}, s{sT0}, 12")
    e(f"s_lshl_b32 s{sT0+1}, s{sI}, 7"); e(f"s_add_u32 s{sT0}, s{sT0}, s{sT0+1}")
    e(f"s_lshl_b32 s{sT0+1}, s{sW}, 4"); e(f"s_and_b32 s{sT0+1}, s{sT0+1}, 16")
    e(f"s_add_u32 s{sT0}, s{sT0}, s{sT0+1}"); e(f"s_add_u32 s{sT0}, s{sT0}, {C_KV}")
    e(f"v_and_b32 v10, 1, v{vLANE}"); e(f"v_lshlrev_b32 v10, 3, v10")
    e(f"s_add_u32 s{sTGT}, s{sL}, 1")
    poll64(10, sT0, sTGT, 12, sleep=1)
    fstamp("kvpoll")
    for zz in range(2):
        e(f"s_lshl_b32 s{sT0}, s{sB}, 2"); e(f"s_lshl_b32 s{sT0+1}, s{sW}, 1")
        e(f"s_add_u32 s{sT0}, s{sT0}, s{sT0+1}"); e(f"s_add_u32 s{sT0}, s{sT0}, {zz}"); e(f"s_sub_u32 s{sT0}, s{sT0}, 8")
        e(f"s_lshl_b32 s{sT0}, s{sT0}, 15"); e(f"s_lshl_b32 s{sT0+2}, s{sI}, 11")
        e(f"s_add_u32 s{sT0}, s{sT0}, s{sT0+2}"); e(f"s_add_u32 s{sT0}, s{sT0}, s{sKVO}")
        e(f"s_add_u32 s{sT0+2}, s{sT0}, {VF}"); e(f"s_add_u32 s{sT0}, s{sT0}, {KF}")
        e(f"s_lshl_b32 s{sT0+1}, s{sW}, 12")
        e(f"s_add_u32 m0, s{sT0+1}, {L_KST + zz*2048}"); e("s_nop 0")
        e(f"buffer_load_dwordx4 v{vL16}, {srd(sWS)}, s{sT0} offen sc1 lds")
        e(f"buffer_load_dwordx4 v{vL16}, {srd(sWS)}, s{sT0} offen offset:1024 sc1 lds")
        e(f"s_add_u32 m0, s{sT0+1}, {L_VST + zz*2048}"); e("s_nop 0")
        e(f"buffer_load_dwordx4 v{vL16}, {srd(sWS)}, s{sT0+2} offen sc1 lds")
        e(f"buffer_load_dwordx4 v{vL16}, {srd(sWS)}, s{sT0+2} offen offset:1024 sc1 lds")
    a.lab(Lnokv)
    e("s_waitcnt vmcnt(0) lgkmcnt(0)")
    e("s_barrier")
    e("s_branch L_p2")

    a.lab("L_pro_helper")
    dma_wqkv(0, 32)
    Lreg = a.new("L_noreg"); Lnl = a.new("L_noleader"); Lnn = a.new("L_nononce")
    e(f"s_cmp_lg_u32 s{sW}, 4"); e(f"s_cbranch_scc1 {Lreg}")
    e(f"s_cmp_lg_u32 s2, 0"); e(f"s_cbranch_scc1 {Lnn}")
    e(f"s_memrealtime s[{sT0}:{sT0+1}]"); e("s_waitcnt lgkmcnt(0)")
    e(f"s_or_b32 s{sT0}, s{sT0}, 1")
    e(f"v_mov_b32 v4, s{sT0}"); e("v_mov_b32 v8, 0")
    e("s_mov_b64 exec, 1"); e(f"buffer_store_dword v4, v8, {srd(sDBG)}, 0 offen sc1"); e("s_mov_b64 exec, -1")
    a.lab(Lnn)
    e(f"s_cmp_lg_u32 s{sI}, 0"); e(f"s_cbranch_scc1 {Lnl}")
    e("v_mov_b32 v4, 0"); e(f"v_lshlrev_b32 v5, 2, v{vLANE}")
    e(f"buffer_store_dword v4, v5, {srd(sWS)}, s{sTEAM} offen sc1")
    a.lab(Lnl)
    e(f"v_lshlrev_b32 v9, 21, v{vLANE}"); e(f"s_mov_b64 exec, 0xfff")
    e(f"buffer_load_dword v241, v9, {srd(sWS)}, 0 offen"); e("s_mov_b64 exec, -1")
    e(f"s_lshl_b32 s{sT0}, s2, 11")
    for k in range(2): e(f"buffer_load_dwordx4 v[240:243], v{vL16}, {srd(sWO)}, s{sT0} offen offset:{k*1024}")
    e(f"s_mul_i32 s{sT0}, s2, 7168")
    for k in range(7):
        if k == 4: e(f"s_add_u32 s{sT0}, s{sT0}, 4096")
        e(f"buffer_load_dwordx4 v[240:243], v{vL16}, {srd(sW1)}, s{sT0} offen offset:{(k%4)*1024}")
        e(f"buffer_load_dwordx4 v[240:243], v{vL16}, {srd(sW2)}, s{sT0} offen offset:{(k%4)*1024}")
    a.lab(Lreg)
    Lplain, Lc1 = a.new("L_plain"), a.new("L_c1")
    e(f"s_cmp_eq_u32 s{sW}, 7"); e(f"s_cbranch_scc1 {Lplain}")
    colsum_init("qkv"); e("s_setprio 2")
    for q in range(4):
        e(f"s_waitcnt vmcnt({24-8*q})"); e("s_barrier"); colsum_chunk("qkv", 16)
    colsum_fin("qkv"); e("s_setprio 0")
    e(f"s_branch {Lc1}")
    a.lab(Lplain)
    for q in range(4):
        e(f"s_waitcnt vmcnt({24-8*q})"); e("s_barrier")
    a.lab(Lc1)
    e("s_barrier")
    if STOP == 1:
        e("s_barrier"); e("s_branch L_end")
    Lnr = a.new("L_noreg2")
    e(f"s_cmp_lg_u32 s{sW}, 4"); e(f"s_cbranch_scc1 {Lnr}")
    nonce_poll(4)
    e(f"s_add_u32 s{sT0}, s{sXCC}, 1")
    e(f"v_mov_b32 v6, s{sNONCE}"); e(f"v_mov_b32 v7, s{sT0}"); e("v_mov_b32 v8, 0")
    e(f"s_lshl_b32 s{sT0+1}, s{sI}, 7"); e(f"s_add_u32 s{sT0+1}, s{sT0+1}, s{sTEAM}")
    e("s_mov_b64 exec, 1")
    e(f"buffer_store_dwordx2 v[6:7], v8, {srd(sWS)}, s{sT0+1} offen offset:{C_KV+32} sc1")
    e("s_mov_b64 exec, -1")
    e(f"s_mov_b32 s{sTGT}, 1")
    e(f"v_and_b32 v4, 15, v{vLANE}"); e(f"v_lshlrev_b32 v4, 7, v4")
    e(f"s_add_u32 s{sT0}, s{sTEAM}, {C_KV+32}")
    e(f"v_mov_b32 v7, 0")
    poll64(4, sT0, sTGT, 6, sleep=2)
    e(f"s_add_u32 s{sT0}, s{sXCC}, 1")
    e(f"v_cmp_ne_u32 vcc, s{sT0}, v7")
    e(f"s_cmp_eq_u64 vcc, 0"); e(f"s_cselect_b32 s{sMODE}, 1, 0")
    if args.slow: e(f"s_mov_b32 s{sMODE}, 0")
    e(f"v_mov_b32 v5, s{sMODE}"); e(f"v_mov_b32 v4, {L_MODE}")
    e("ds_write_b32 v4, v5"); e("s_waitcnt lgkmcnt(0)")
    a.lab(Lnr)
    e("s_barrier")
    e("s_branch L_p2")
    a.lab("L_p1_helper_l1")
    e("s_waitcnt vmcnt(0)"); e("s_barrier")
    dma_wqkv(8, 24)
    for q in range(1, 4):
        e(f"s_waitcnt vmcnt({24-8*q})"); e("s_barrier")
    e("s_barrier")
    e("s_barrier")

    a.lab("L_p2")
    fstamp("p2start")
    vQ = 4; vK = 8; vV = 44; vS = 60; vP = 108; vO = 116; vCb = 132; vMB = 148; vM = 156
    vAK, vAV, vAQ, vWO, vW1 = 158, 159, 160, 161, 162
    e(f"v_mov_b32 v{vAQ}, {L_MODE}"); e(f"ds_read_b32 v{vM}, v{vAQ}")
    e(f"s_and_b32 s{sT0}, s{sW}, 3"); e(f"s_lshr_b32 s{sT0+1}, s{sW}, 2")
    e(f"s_lshl_b32 s{sN}, s{sB}, 2"); e(f"s_add_u32 s{sN}, s{sN}, s{sT0}"); e(f"s_add_u32 s{sN}, s{sN}, 1"); e(f"s_min_u32 s{sN}, s{sN}, 9")
    e(f"s_lshl_b32 s{sT0+2}, s{sT0}, 11"); e(f"s_lshl_b32 s{sT0+3}, s{sT0+1}, 10"); e(f"s_add_u32 s{sT0+4}, s{sT0+2}, s{sT0+3}")
    e(f"v_add_u32 v{vAK}, s{sT0+4}, v{vL16}")
    e(f"s_lshl_b32 s{sT0+3}, s{sT0+1}, 8"); e(f"s_add_u32 s{sT0+4}, s{sT0+2}, s{sT0+3}")
    e(f"v_add_u32 v{vAV}, s{sT0+4}, v{vL16}")
    e(f"ds_read_b128 {V(vQ,4)}, v{vAK} offset:{L_QST}")
    for j in range(9): e(f"ds_read_b128 {V(vK+4*j,4)}, v{vAK} offset:{L_KST + (8-j)*2048}")
    e(f"v_add_u32 v{vAQ}, {L_MD}, v{vL16}")
    for g in range(4): e(f"ds_read_b128 {V(vS+4*g,4)}, v{vAQ} offset:{g*1024}")
    for g in range(2): e(f"ds_read_b128 {V(vMB+4*g,4)}, v{vAQ} offset:{8192+g*1024}")
    voff_n64(vWO, vP); voff_n128(vW1, vP)
    e(f"s_and_b32 s{sT0+5}, s{sI}, 7"); e(f"s_lshl_b32 s{sT0+5}, s{sT0+5}, 7")
    e(f"s_lshl_b32 s{sT0+6}, s{sW}, 16"); e(f"s_add_u32 s{sT0+5}, s{sT0+5}, s{sT0+6}")
    e(f"s_lshl_b32 s{sT0+6}, s{sW}, 13"); e(f"s_add_u32 m0, s{sT0+6}, {L_WO}")
    e(f"s_lshl_b32 s{sW1S}, s{sI}, 8"); e(f"s_mul_i32 s{sT0+6}, s{sW}, {16*4*3584}"); e(f"s_add_u32 s{sW1S}, s{sW1S}, s{sT0+6}")
    def wo_dma():
        e(f"buffer_load_dwordx4 v{vWO}, {srd(sWO)}, s{sT0+5} offen lds")
        e(f"s_add_u32 m0, m0, 1024"); e(f"s_add_u32 s{sT0+5}, s{sT0+5}, 8192")
    def w1_load(k):
        e(f"buffer_load_dwordx4 {V(vSTG+4*k,4)}, v{vW1}, {srd(sW1)}, s{sW1S} offen")
        e(f"s_add_u32 s{sW1S}, s{sW1S}, {4*3584}")
    for r in range(16): e(f"v_mov_b32 v{vV+r}, 0x3f803f80")
    e("s_waitcnt lgkmcnt(0)")
    e(f"v_readfirstlane_b32 s{sMODE}, v{vM}")
    e(f"v_mov_b32 v{vM}, {NEG:#x}")
    def Sb(j): return vS + 16*(j % 3)
    def smfma(j, c): e(f"{MF} {V(Sb(j),16)}, {V(vK+4*j,4)}, {V(vQ,4)}, {c}")
    def vread(j):
        Vb = vV + 8*(j % 2)
        e(f"s_mov_b64 exec, {sp(sM16)}")
        e(f"ds_read_b128 {V(Vb,4)}, v{vAV} offset:{L_VST + (8-j)*2048}")
        e(f"ds_read_b128 {V(Vb+4,4)}, v{vAV} offset:{L_VST + (8-j)*2048 + 1024}")
        e("s_mov_b64 exec, -1")
    def mf_read(j):
        for g in range(4): e(f"ds_read_b128 {V(Sb(j)+4*g,4)}, v{vAQ} offset:{4096+g*1024}")
    def maxes(j):
        for k in range(8): e(f"v_max3_f32 v{vM}, v{Sb(j)+2*k}, v{Sb(j)+2*k+1}, v{vM}")
    def finish_max():
        e(f"v_mov_b32 v{vM+1}, v{vM}"); a.nop(2)
        e(f"v_permlane32_swap_b32 v{vM+1}, v{vM}"); a.nop(1)
        e(f"v_max_f32 v{vM}, v{vM}, v{vM+1}")
        e(f"v_sub_f32 v{vM}, 0, v{vM}")
        for r in range(16): e(f"v_mov_b32 v{vCb+r}, v{vM}")
        a.nop(2)
    def tile2(j, first):
        S = Sb(j); Vb = vV + 8*(j % 2)
        for r in range(8): e(f"v_exp_f32 v{S+r}, v{S+r}")
        for d in range(4): e(f"v_cvt_pk_bf16_f32 v{vP+d}, v{S+2*d}, v{S+2*d+1}")
        if j == 0:
            for d in range(4): e(f"v_and_b32 v{vP+d}, v{vP+d}, v{vMB+d}")
        if j == 8:
            for d in range(4): e(f"v_bfi_b32 v{vP+d}, v{vMB+d}, 0, v{vP+d}")
        for r in range(8, 16): e(f"v_exp_f32 v{S+r}, v{S+r}")
    def tile2b(j, first):
        S = Sb(j); Vb = vV + 8*(j % 2)
        e(f"{MF} {V(vO,16)}, {V(Vb,4)}, {V(vP,4)}, {'0' if first else V(vO,16)}")
        for d in range(4, 8): e(f"v_cvt_pk_bf16_f32 v{vP+d}, v{S+2*d}, v{S+2*d+1}")
        if j == 0:
            for d in range(4, 8): e(f"v_and_b32 v{vP+d}, v{vP+d}, v{vMB+d}")
        if j == 8:
            for d in range(4, 8): e(f"v_bfi_b32 v{vP+d}, v{vMB+d}, 0, v{vP+d}")
        a.nop(2)
        e(f"{MF} {V(vO,16)}, {V(Vb+4,4)}, {V(vP+4,4)}, {V(vO,16)}")

    Lgen, Lfin = a.new("L_att_gen"), a.new("L_att_fin")
    e(f"s_cmp_lt_u32 s{sN}, 9"); e(f"s_cbranch_scc1 {Lgen}")
    for j in range(11):
        if j <= 8:
            if j == 8: e("s_waitcnt lgkmcnt(0)")
            smfma(j, V(Sb(j), 16) if j in (0, 8) else "0")
            if j < 8: wo_dma()
        if j == 2: a.nop(10)
        if j >= 2: maxes(j - 2)
        if j == 7: mf_read(8)
    finish_max()
    smfma(0, V(vCb,16)); smfma(1, V(vCb,16)); vread(0)
    a.nop(10)
    for j in range(9):
        if j + 2 <= 8: smfma(j + 2, V(vCb,16))
        if j + 1 <= 8: vread(j + 1)
        if j < 8: w1_load(2*j);
        tile2(j, j == 0)
        if j < 8: w1_load(2*j + 1)
        e(f"s_waitcnt lgkmcnt({2 if j < 8 else 0})")
        tile2b(j, j == 0)
    e(f"s_branch {Lfin}")
    a.lab(Lgen)
    for k in range(8): wo_dma()
    for k in range(16): w1_load(k)
    Lp1 = a.new("L_p1done")
    for j in range(8):
        smfma(j, V(Sb(j), 16) if j == 0 else "0")
        a.nop(14)
        maxes(j)
        e(f"s_cmp_le_u32 s{sN}, {j+1}"); e(f"s_cbranch_scc1 {Lp1}")
    a.lab(Lp1)
    finish_max()
    Lp2 = a.new("L_p2done")
    for j in range(8):
        smfma(j, V(vCb,16)); vread(j)
        a.nop(12)
        tile2(j, j == 0)
        e("s_waitcnt lgkmcnt(0)")
        tile2b(j, j == 0)
        e(f"s_cmp_le_u32 s{sN}, {j+1}"); e(f"s_cbranch_scc1 {Lp2}")
    a.lab(Lp2)
    a.lab(Lfin)
    a.nop(14)
    e(f"v_rcp_f32 v{vM}, v{vO+8}"); a.nop(1)
    for r in range(8): e(f"v_mul_f32 v{vO+r}, v{vO+r}, v{vM}")
    for d in range(4): e(f"v_cvt_pk_bf16_f32 v{vP+d}, v{vO+2*d}, v{vO+2*d+1}")
    e(f"s_and_b32 s{sT0}, s{sW}, 3"); e(f"s_lshr_b32 s{sT0+1}, s{sW}, 2")
    e(f"s_lshl_b32 s{sT0+2}, s{sB}, 2"); e(f"s_add_u32 s{sT0+2}, s{sT0+2}, s{sT0}"); e(f"s_lshl_b32 s{sT0+2}, s{sT0+2}, 15")
    e(f"s_lshl_b32 s{sT0+3}, s{sI}, 11"); e(f"s_add_u32 s{sT0+2}, s{sT0+2}, s{sT0+3}")
    e(f"s_lshl_b32 s{sT0+3}, s{sT0+1}, 10"); e(f"s_add_u32 s{sT0+2}, s{sT0+2}, s{sT0+3}")
    e(f"s_add_u32 s{sT0+2}, s{sT0+2}, {OF}")
    moded(lambda fl: e(f"buffer_store_dwordx4 {V(vP,4)}, v{vL16}, {srd(sWS)}, s{sT0+2} offen{fl}"))
    fstamp("p2pre")
    e("s_waitcnt vmcnt(0)")
    e("s_barrier")
    fstamp("p2end")
    e(f"s_cmp_ge_u32 s{sW}, 4"); e("s_cbranch_scc1 L_p3_helper")
    team_signal(1, 4)
    e(f"s_lshl_b32 s{sT0}, s{sW}, 14"); e(f"v_add_u32 v6, s{sT0}, v{vL16}")
    for k in range(16): e(f"ds_write_b128 v6, {V(vSTG+4*k,4)} offset:{k*1024}")
    if STOP == 2:
        e("s_waitcnt vmcnt(0) lgkmcnt(0)"); e("s_branch L_end")

    def n64_bases(vmine, vother, lds_base_sreg):
        tr_base_common(vmine, vother, 6)
        e(f"v_bfe_u32 v6, v{vmine}, 1, 1")
        e(f"v_lshl_add_u32 v{vother}, v{vmine}, 7, v{vother}")
        e(f"s_lshr_b32 s{sT0+3}, s{sW}, 1")
        e(f"v_xor_b32 v6, s{sT0+3}, v6")
        e(f"v_lshl_add_u32 v{vmine}, v6, 6, v{vother}")
        e(f"v_xor_b32 v6, 1, v6")
        e(f"v_lshl_add_u32 v{vother}, v6, 6, v{vother}")
        e(f"v_add_u32 v{vmine}, s{lds_base_sreg}, v{vmine}")
        e(f"v_add_u32 v{vother}, s{lds_base_sreg}, v{vother}")
    def unpack_res(dst, bias):
        for d in range(8):
            e(f"v_lshlrev_b32 v{dst+2*d}, 16, v{vRES+d}")
            e(f"v_and_b32 v{dst+2*d+1}, 0xffff0000, v{vRES+d}")
        if bias is not None:
            for p in range(8): e(f"v_pk_add_f32 {V(dst+2*p,2)}, {V(dst+2*p,2)}, {V(bias+2*p,2)}")

    def exchange_and_epilogue(is_p5):
        accM, accO = 16, 32
        nm = "p5" if is_p5 else "p3"
        a.nop(12)
        e(f"s_lshl_b32 s{sT0}, s{sW}, 12"); e(f"s_add_u32 s{sT0}, s{sT0}, {L_EX}")
        e(f"v_add_u32 v6, s{sT0}, v{vL16}")
        for q in range(4): e(f"ds_write_b128 v6, {V(accO+4*q,4)} offset:{q*1024}")
        tile_ids()
        e(f"s_lshl_b32 s{sT0}, s{sT0+4}, 15")
        e(f"s_and_b32 s{sT0+1}, s{sI}, 7"); e(f"s_lshl_b32 s{sT0+2}, s{sT0+1}, 12"); e(f"s_add_u32 s{sT0}, s{sT0}, s{sT0+2}")
        e(f"s_lshl_b32 s{sT0+2}, s{sT0+3}, 11"); e(f"s_add_u32 s{sT0}, s{sT0}, s{sT0+2}")
        e(f"s_add_u32 s{sT0}, s{sT0}, {XF if is_p5 else X2F}")
        e(f"s_lshl_b32 s{sT0+5}, s{sT0+4}, 12")
        e(f"s_lshl_b32 s{sT0+2}, s{sT0+1}, 9"); e(f"s_add_u32 s{sT0+5}, s{sT0+5}, s{sT0+2}")
        e(f"s_lshl_b32 s{sT0+2}, s{sT0+3}, 8"); e(f"s_add_u32 s{sT0+5}, s{sT0+5}, s{sT0+2}")
        e(f"s_add_u32 s{sT0+5}, s{sT0+5}, {ST1 if is_p5 else ST2}")
        e(f"s_xor_b32 s{sT0+6}, s{sW}, 2"); e(f"s_lshl_b32 s{sT0+6}, s{sT0+6}, 12"); e(f"s_add_u32 s{sT0+6}, s{sT0+6}, {L_EX}")
        e(f"v_add_u32 v7, s{sT0+6}, v{vL16}")
        e(f"v_and_b32 v10, 31, v{vLANE}"); e(f"v_lshlrev_b32 v10, 3, v10")
        e("s_waitcnt lgkmcnt(0)")
        e("s_barrier")
        fstamp(nm + "x")
        for q in range(4): e(f"ds_read_b128 {V(accO+4*q,4)}, v7 offset:{q*1024}")
        for q in range(4):
            e(f"s_waitcnt lgkmcnt({3-q})")
            e(f"v_pk_add_f32 {V(accM+4*q,2)}, {V(accM+4*q,2)}, {V(accO+4*q,2)}")
            e(f"v_pk_add_f32 {V(accM+4*q+2,2)}, {V(accM+4*q+2,2)}, {V(accO+4*q+2,2)}")
        for d in range(8): e(f"v_cvt_pk_bf16_f32 v{vRES+d}, v{accM+2*d}, v{accM+2*d+1}")
        def st_data(fl):
            e(f"buffer_store_dwordx4 {V(vRES,4)}, v{vL16}, {srd(sWS)}, s{sT0} offen{fl}")
            e(f"buffer_store_dwordx4 {V(vRES+4,4)}, v{vL16}, {srd(sWS)}, s{sT0} offen offset:1024{fl}")
        def stats():
            e(f"v_pk_mul_f32 {V(32,2)}, {V(accM,2)}, {V(accM,2)}")
            e(f"v_pk_add_f32 {V(34,2)}, {V(accM,2)}, {V(accM+2,2)}")
            e(f"v_pk_fma_f32 {V(32,2)}, {V(accM+2,2)}, {V(accM+2,2)}, {V(32,2)}")
            for p in range(2, 8):
                e(f"v_pk_add_f32 {V(34,2)}, {V(34,2)}, {V(accM+2*p,2)}")
                e(f"v_pk_fma_f32 {V(32,2)}, {V(accM+2*p,2)}, {V(accM+2*p,2)}, {V(32,2)}")
            e("v_add_f32 v8, v34, v35"); e("v_add_f32 v9, v32, v33")
            e("v_mov_b32 v12, v8"); e("v_mov_b32 v13, v9"); a.nop(2)
            e("v_permlane32_swap_b32 v12, v8"); e("v_permlane32_swap_b32 v13, v9"); a.nop(1)
            e(f"v_pk_add_f32 {V(8,2)}, {V(8,2)}, {V(12,2)}")
        def st_stats(fl):
            e(f"s_mov_b64 exec, {sp(sM32)}")
            e(f"buffer_store_dwordx2 v[8:9], v10, {srd(sWS)}, s{sT0+5} offen{fl}")
            e("s_mov_b64 exec, -1")
        def normal(delta):
            moded(st_data); stats(); moded(st_stats)
            fstamp(nm + "pre")
            e("s_waitcnt vmcnt(0)")
            fstamp(nm + "drain")
            team_signal(delta, 4)
        if is_p5:
            Lf, Lj = a.new("L_final"), a.new("L_fj")
            e(f"s_cmp_eq_u32 s{sL}, 1"); e(f"s_cbranch_scc1 {Lf}")
            normal(4)
            e(f"s_branch {Lj}")
            a.lab(Lf)
            e(f"v_and_b32 v10, 31, v{vLANE}"); e(f"v_lshlrev_b32 v10, 10, v10")
            e(f"v_lshrrev_b32 v11, 5, v{vLANE}"); e(f"v_lshl_add_u32 v10, v11, 3, v10")
            e(f"s_lshl_b32 s{sT0}, s{sT0+4}, 15")
            e(f"s_lshl_b32 s{sT0+2}, s{sT0+1}, 7"); e(f"s_add_u32 s{sT0}, s{sT0}, s{sT0+2}")
            e(f"s_lshl_b32 s{sT0+2}, s{sT0+3}, 6"); e(f"s_add_u32 s{sT0}, s{sT0}, s{sT0+2}")
            for g in range(4):
                e(f"buffer_store_dwordx2 {V(vRES+2*g,2)}, v10, {srd(sOUT)}, s{sT0} offen offset:{g*16}")
            e("s_branch L_end")
            a.lab(Lj)
        else:
            normal(2)

    unpack_res(48, None)
    e("s_waitcnt lgkmcnt(0)")
    team_wait(1, 4)
    fstamp("p3poll")
    tile_ids()
    e(f"s_lshl_b32 s{sT0+2}, s{sT0+3}, 4")
    x_setup(OF, 32, sT0+2, sT0+4)
    for k in range(XA): x_load(k, 64 + 4*k)
    e(f"s_lshl_b32 s{sT0+8}, s{sT0+3}, 15"); e(f"s_add_u32 s{sT0+8}, s{sT0+8}, {L_WO}")
    n64_bases(4, 5, sT0+8)
    vWf = 128
    def wread3(s):
        dst = vWf + 8*(s % 3); off = s*2048
        e(f"ds_read_b64_tr_b16 {V(dst,2)}, v4 offset:{off}"); e(f"ds_read_b64_tr_b16 {V(dst+2,2)}, v4 offset:{off+1024}")
        e(f"ds_read_b64_tr_b16 {V(dst+4,2)}, v5 offset:{off}"); e(f"ds_read_b64_tr_b16 {V(dst+6,2)}, v5 offset:{off+1024}")
    wread3(0); wread3(1)
    for s in range(16):
        e(f"s_waitcnt vmcnt({min(XA, 16-s)-1})")
        if s == 0: fstamp("p3x0")
        if s + XA < 16: x_load(s + XA, 64 + 4*(s + XA))
        if s + 2 < 16: wread3(s + 2)
        e(f"s_waitcnt lgkmcnt({4*min(2, 15-s)})")
        w = vWf + 8*(s % 3); x = 64 + 4*s
        e(f"{MF} v[16:31], {V(w,4)}, {V(x,4)}, {'v[48:63]' if s == 0 else 'v[16:31]'}")
        e(f"{MF} v[32:47], {V(w+4,4)}, {V(x,4)}, {'0' if s == 0 else 'v[32:47]'}")
    fstamp("p3main")
    exchange_and_epilogue(False)
    if STOP == 3:
        e("s_waitcnt vmcnt(0) lgkmcnt(0)"); e("s_branch L_end")
    e("s_branch L_p4_compute")

    a.lab("L_p3_helper")
    if STOP == 2: e("s_branch L_end")
    e("s_barrier")
    if STOP == 3: e("s_branch L_end")
    e(f"s_lshl_b32 s{sT0}, s{sW}, 14"); e(f"v_add_u32 v6, s{sT0}, v{vL16}")
    for k in range(16): e(f"ds_write_b128 v6, {V(vSTG+4*k,4)} offset:{k*1024}")
    voff_n64(2, 3)
    e(f"s_sub_u32 s{sT0}, s{sW}, 4")
    e(f"s_lshr_b32 s{sT0+1}, s{sT0}, 1"); e(f"s_and_b32 s{sT0+2}, s{sT0}, 1")
    e(f"s_mul_i32 s{sW1S}, s{sT0+1}, {896*1024}"); e(f"s_lshl_b32 s{sT0+4}, s{sT0+2}, 16"); e(f"s_add_u32 s{sW1S}, s{sW1S}, s{sT0+4}")
    e(f"s_and_b32 s{sT0+4}, s{sI}, 7"); e(f"s_lshl_b32 s{sT0+4}, s{sT0+4}, 7"); e(f"s_add_u32 s{sW1S}, s{sW1S}, s{sT0+4}")
    e("s_waitcnt lgkmcnt(0)")
    e("s_barrier")
    def w2_load(q, k, sleep=0):
        e(f"buffer_load_dwordx4 {V(16+32*q+4*k,4)}, v2, {srd(sW2)}, s{sW1S} offen")
        e(f"s_add_u32 s{sW1S}, s{sW1S}, {8192 if k < 7 else 128*1024 - 7*8192}")
        if sleep: e(f"s_sleep {sleep}")
    Lcs, Lw2d = a.new("L_cs4"), a.new("L_w2done")
    e(f"s_cmp_lg_u32 s{sL}, 0"); e(f"s_cbranch_scc1 {Lcs}")
    colsum_init("n128"); e("s_setprio 2")
    for q in range(4): colsum_chunk("n128", 208, extra=lambda k, q=q: w2_load(q, k))
    colsum_fin("n128"); e("s_setprio 0")
    for q in range(4, 7):
        for k in range(8): w2_load(q, k, args.w2sleep)
    e(f"s_branch {Lw2d}")
    a.lab(Lcs)
    for q in range(7):
        for k in range(8): w2_load(q, k, args.w2sleep)
    a.lab(Lw2d)
    e("s_barrier")
    if STOP == 4: e("s_branch L_end")
    e(f"s_sub_u32 s{sT0}, s{sW}, 4"); e(f"s_lshl_b32 s{sT0}, s{sT0}, 13"); e(f"v_add_u32 v6, s{sT0}, v{vL16}")
    e("v_add_u32 v7, 65536, v6")
    for q in range(7):
        e(f"s_waitcnt vmcnt({8*(6-q)})")
        slot = (q % 4) * 32768
        for k in range(8):
            e(f"ds_write_b128 v{6 if slot < 65536 else 7}, {V(16+32*q+4*k,4)} offset:{slot % 65536 + k*1024}")
        e("s_waitcnt lgkmcnt(0)")
        e("s_barrier")
    e("s_barrier")
    e(f"s_cmp_eq_u32 s{sL}, 1"); e("s_cbranch_scc1 L_end")
    if STOP == 5: e("s_branch L_end")
    dma_wqkv(0, 8)
    e(f"s_mov_b32 s{sL}, 1"); e(f"s_mov_b32 s{sKVO}, {LSTRIDE}")
    e("s_branch L_p1_helper_l1")

    a.lab("L_p4_compute")
    Lidle, Lp4e = a.new("L_p4idle"), a.new("L_p4end")
    e(f"s_cmp_ge_u32 s{sI}, 14"); e(f"s_cbranch_scc1 {Lidle}")
    team_wait(2, 4)
    fstamp("p4poll")
    vX = 80; vAcc = 16; vWf = 208
    e(f"s_lshl_b32 s{sT0+4}, s{sB}, 2"); e(f"s_add_u32 s{sT0+4}, s{sT0+4}, s{sW}")
    load_stats(ST2, 232, 4, sT0+4)
    x_setup(X2F, 32, None, sT0+4)
    for k in range(XA): x_load(k, vX + 4*k)
    tr_base_common(4, 5, 6)
    e("v_lshl_add_u32 v5, v4, 8, v5"); e("v_and_b32 v8, 3, v4")
    for ft in range(4):
        e(f"v_xor_b32 v9, {ft}, v8"); e(f"v_lshl_add_u32 v{10+ft}, v9, 6, v5")
    e("s_barrier")
    NS = 6; PRE = NS - 1
    seq = [(s, ft) for s in range(32) for ft in range(4)]
    def slot4(n): return vWf + 4*(n % NS)
    def issue4(n):
        s, ft = seq[n]
        if s == 16: e(f"v_add_u32 v{10+ft}, 65536, v{10+ft}")
        off = (s % 16) * 4096; dst = slot4(n)
        e(f"ds_read_b64_tr_b16 {V(dst,2)}, v{10+ft} offset:{off}")
        e(f"ds_read_b64_tr_b16 {V(dst+2,2)}, v{10+ft} offset:{off+2048}")
    for n in range(PRE): issue4(n)
    for n, (s, ft) in enumerate(seq):
        if ft == 0:
            e(f"s_waitcnt vmcnt({min(XA, 32-s)-1})")
            if s == 0: fstamp("p4x0")
            if s + XA < 32: x_load(s + XA, vX + 4*(s + XA))
        e(f"s_waitcnt lgkmcnt({2*min(PRE - 1, len(seq) - 1 - n)})")
        acc = vAcc + 16*ft; x = vX + 4*s; w = slot4(n)
        e(f"{MF} {V(acc,16)}, {V(w,4)}, {V(x,4)}, {'0' if s == 0 else V(acc,16)}")
        if n + PRE < len(seq): issue4(n + PRE)
    fstamp("p4main")
    e("s_barrier")
    vA, vB = 4, 6
    e(f"v_lshrrev_b32 v8, 5, v{vLANE}"); e("v_lshlrev_b32 v8, 4, v8"); e(f"v_add_u32 v8, {L_CS4}, v8")
    for ft in range(4):
        for g in range(4):
            e(f"ds_read_b128 {V(80+32*ft+4*g,4)}, v8 offset:{ft*128 + g*32}")
            if ft < 1 or True:
                pass
    a.l = a.l[:-16]
    def cs_reads(ft):
        for g in range(4):
            e(f"ds_read_b128 {V(80+32*ft+4*g,4)}, v8 offset:{ft*128 + g*32}")
            e(f"ds_read_b128 {V(96+32*ft+4*g,4)}, v8 offset:{512 + ft*128 + g*32}")
    cs_reads(0)
    reduce_partials(232); finish_stats(232, vA, vB)
    e(f"s_lshl_b32 s{sT0+4}, s{sB}, 2"); e(f"s_add_u32 s{sT0+4}, s{sT0+4}, s{sW}")
    e(f"s_mul_i32 s{sT0}, s{sT0+4}, {112*1024}")
    e(f"s_lshl_b32 s{sT0+1}, s{sI}, 13"); e(f"s_add_u32 s{sT0}, s{sT0}, s{sT0+1}"); e(f"s_add_u32 s{sT0}, s{sT0}, {HF}")
    for ft in range(4):
        acc = vAcc + 16*ft; cs = 80 + 32*ft; bb = cs + 16
        e("s_waitcnt lgkmcnt(0)")
        if ft < 3: cs_reads(ft + 1)
        for p in range(8):
            r = acc + 2*p
            e(f"v_pk_fma_f32 {V(r,2)}, {V(r,2)}, {V(vA,2)}, {V(bb+2*p,2)} op_sel_hi:[1,0,1]")
            e(f"v_pk_fma_f32 {V(r,2)}, {V(cs+2*p,2)}, {V(vB,2)}, {V(r,2)} op_sel_hi:[1,0,1] neg_lo:[0,1,0] neg_hi:[0,1,0]")
            e(f"v_max_f32 v{r}, 0, v{r}"); e(f"v_max_f32 v{r+1}, 0, v{r+1}")
            e(f"v_pk_mul_f32 {V(r,2)}, {V(r,2)}, {V(r,2)}")
        out = 208 + 8*ft
        for d in range(8): e(f"v_cvt_pk_bf16_f32 v{out+d}, v{acc+2*d}, v{acc+2*d+1}")
        if ft == 2: e(f"s_add_u32 s{sT0}, s{sT0}, 4096")
        def st4(fl, ft=ft, out=out):
            e(f"buffer_store_dwordx4 {V(out,4)}, v{vL16}, {srd(sWS)}, s{sT0} offen offset:{(ft%2)*2048}{fl}")
            e(f"buffer_store_dwordx4 {V(out+4,4)}, v{vL16}, {srd(sWS)}, s{sT0} offen offset:{(ft%2)*2048+1024}{fl}")
        moded(st4)
    fstamp("p4pre")
    e("s_waitcnt vmcnt(0)")
    fstamp("p4drain")
    e(f"s_branch {Lp4e}")
    a.lab(Lidle)
    e("s_barrier"); e("s_barrier")
    a.lab(Lp4e)
    team_signal(3, 4)
    if STOP == 4:
        e("s_waitcnt vmcnt(0) lgkmcnt(0)"); e("s_branch L_end")

    e(f"v_lshrrev_b32 v7, 5, v{vLANE}"); e(f"v_lshlrev_b32 v7, 4, v7")
    e(f"s_lshr_b32 s{sT0}, s{sW}, 1"); e(f"s_lshl_b32 s{sT0}, s{sT0}, 7"); e(f"s_add_u32 s{sT0}, s{sT0}, {L_B2}")
    e(f"v_add_u32 v7, s{sT0}, v7")
    for g in range(4): e(f"ds_read_b128 {V(32+4*g,4)}, v7 offset:{g*32}")
    e("s_waitcnt lgkmcnt(0)")
    unpack_res(48, 32)
    team_wait(3, 4)
    fstamp("p5poll")
    tile_ids()
    e(f"s_mul_i32 s{sT0+2}, s{sT0+3}, 56")
    NX = args.xahead5
    x_setup(HF, 112, sT0+2, sT0+4)
    def x5(k): x_load(k, 64 + 4*(k % NX))
    for k in range(NX): x5(k)
    e(f"s_lshl_b32 s{sT0+8}, s{sT0+3}, 14")
    n64_bases(4, 5, sT0+8)
    e("v_add_u32 v8, 65536, v4"); e("v_add_u32 v9, 65536, v5")
    vWf = 176
    def wread5(s):
        q, ss = divmod(s, 8); dst = vWf + 8*(s % 3); off = (q % 4)*32768 + ss*2048
        b0, b1 = (8, 9) if off >= 65536 else (4, 5); off %= 65536
        e(f"ds_read_b64_tr_b16 {V(dst,2)}, v{b0} offset:{off}"); e(f"ds_read_b64_tr_b16 {V(dst+2,2)}, v{b0} offset:{off+1024}")
        e(f"ds_read_b64_tr_b16 {V(dst+4,2)}, v{b1} offset:{off}"); e(f"ds_read_b64_tr_b16 {V(dst+6,2)}, v{b1} offset:{off+1024}")
    for q in range(7):
        e("s_barrier")
        if q == 0: fstamp("p5B")
        s0 = 8*q
        wread5(s0); wread5(s0+1)
        for ss in range(8):
            s = s0 + ss
            e(f"s_waitcnt vmcnt({min(56, s + NX) - s - 1})")
            if ss + 2 < 8: wread5(s + 2)
            e(f"s_waitcnt lgkmcnt({4*min(2, 7-ss)})")
            w = vWf + 8*(s % 3); x = 64 + 4*(s % NX)
            e(f"{MF} v[16:31], {V(w,4)}, {V(x,4)}, {'v[48:63]' if s == 0 else 'v[16:31]'}")
            e(f"{MF} v[32:47], {V(w+4,4)}, {V(x,4)}, {'0' if s == 0 else 'v[32:47]'}")
            if s + NX < 56: x5(s + NX)
    fstamp("p5main")
    exchange_and_epilogue(True)
    if STOP == 5:
        e("s_waitcnt vmcnt(0) lgkmcnt(0)"); e("s_branch L_end")
    e(f"s_mov_b32 s{sL}, 1"); e(f"s_mov_b32 s{sKVO}, {LSTRIDE}")
    e("s_branch L_p1_l1")
    a.lab("L_end")
    if args.fine:
        n = len(args.fine.split(","))
        e("s_waitcnt lgkmcnt(0)")
        e("s_cmp_ge_u32 s2, 256"); e("s_cbranch_scc1 L_end2")
        e(f"s_lshl_b32 s98, s2, 3"); e(f"s_add_u32 s98, s98, s{sW}"); e(f"s_lshl_b32 s98, s98, 8"); e(f"s_add_u32 s98, s98, {STAMP}")
        e("v_mov_b32 v3, 0"); e("s_mov_b64 exec, 1")
        for k in range(n):
            e(f"v_mov_b32 v2, s{64+2*k}")
            e(f"buffer_store_dword v2, v3, {srd(sWS)}, s98 offen offset:{4*k}"); e("s_nop 1")
        a.lab("L_end2")
    e("s_endpgm")
    return a.text()

HEADER = """; Fused 2-layer (sliding-window attention + squared-ReLU MLP) megakernel for gfx950.
; @launch grid=(256,1,1) block=(512,1,1) lds=163840
.amdgcn_target "amdgcn-amd-amdhsa--gfx950"
.text
.globl {n}_kernel
.p2align 8
.type {n}_kernel,@function
{n}_kernel:
"""
FOOTER = """.section .rodata,"a"
.p2align 6
.amdhsa_kernel {n}_kernel
  .amdhsa_next_free_vgpr 256
  .amdhsa_next_free_sgpr 102
  .amdhsa_accum_offset 256
  .amdhsa_group_segment_fixed_size 0
  .amdhsa_kernarg_size 88
  .amdhsa_user_sgpr_count 2
  .amdhsa_user_sgpr_kernarg_segment_ptr 1
  .amdhsa_system_sgpr_workgroup_id_x 1
.end_amdhsa_kernel
"""
def parse(argv=None):
    ap = argparse.ArgumentParser()
    ap.add_argument("--stop", type=int, default=-1)
    ap.add_argument("--slow", action="store_true")
    ap.add_argument("--dbgq", action="store_true")
    ap.add_argument("--rt", action="store_true")
    ap.add_argument("--fine", default="")
    ap.add_argument("--xahead", type=int, default=8)
    ap.add_argument("--xahead0", type=int, default=12)
    ap.add_argument("--xahead5", type=int, default=12)
    ap.add_argument("--w2sleep", type=int, default=0)
    ap.add_argument("-o", default="/dev/stdout")
    return ap.parse_args(argv)
if __name__ == "__main__":
    args = parse()
    open(args.o, "w").write(HEADER.format(n=NAME) + build(args) + FOOTER.format(n=NAME))
```

```python
import sys, argparse, struct

NAME = "interleave_layers__sliding_block__dense_activation_squared_relu__prompt"

CTRL = 0x0
C_KV  = 1024
REGA = 0x18000
STAMP= 0x20000
XF   = 0x100000
X2F  = 0x300000
OF   = 0x500000
ST1  = 0x700000
ST2  = 0x740000
KF   = 0x800000
VF   = 0xC00000
HF   = 0x1000000
LSTRIDE = 0x200000
PKQ  = 0x1800000
PKO  = 0x1A00000
PK1  = 0x1B00000
PK2  = 0x1D00000

L_KST  = 0
L_VST  = 24576
L_QST  = 49152
L_WO   = 65536
L_EX   = 131072
L_STA  = 147456
L_MD   = 151552
L_MF   = L_MD + 4096
L_MB   = L_MF + 4096
L_CS1  = L_MB + 2048
L_CS4  = L_CS1 + 512
L_B1   = L_CS4 + 512
L_B2   = L_B1 + 512
L_MODE = L_B2 + 256
LDS_BYTES = 163840
assert L_MODE + 16 <= LDS_BYTES

NEG = 0xF149F2CA
QSCALE = 0.25 * 1.4426950408889634
def f2u(f): return struct.unpack("<I", struct.pack("<f", f))[0]

sWS, sWQ, sWO, sW1, sW2, sX, sOUT, sDBG, sTS = 8, 12, 16, 20, 24, 28, 32, 36, 40
sB, sI, sW, sMODE, sL, sTEAM, sMYF, sFAIL = 44, 45, 46, 47, 48, 49, 50, 51
sT0 = 52
sKA = 64
sM16, sM32 = 86, 88
sTGT, sCNT, sXCC, sN, sKVO, sNONCE = 90, 91, 92, 93, 94, 95
sXS = 61
sW1S = 60
def srd(x): return f"s[{x}:{x+3}]"
def sp(x): return f"s[{x}:{x+1}]"
def V(a, n=1): return f"v{a}" if n == 1 else f"v[{a}:{a+n-1}]"

vLANE, vL16 = 0, 1
vRES = 248
vSTG = 180

class Asm:
    def __init__(self): self.l = []; self.uid = 0
    def e(self, s): self.l.append("  " + s)
    def lab(self, s): self.l.append(s + ":")
    def new(self, p="L"):
        self.uid += 1; return f"{p}_{self.uid}"
    def text(self): return "\n".join(self.l) + "\n"
    def nop(self, n):
        while n > 0:
            k = min(n, 16); self.e(f"s_nop {k-1}"); n -= k

def build(args):
    a = Asm(); e = a.e
    STOP = args.stop
    POLL_LIMIT = 1 << 18
    XA = args.xahead
    MF = "v_mfma_f32_32x32x16_bf16"

    def fstamp(name):
        if not args.fine or name not in args.fine.split(","): return
        k = args.fine.split(",").index(name)
        if name.endswith("cnt"): return
        e(f"s_memrealtime s[{64+2*k}:{65+2*k}]" if args.rt else f"s_memtime s[{64+2*k}:{65+2*k}]")

    def poll(voff, soff, tgt, vtmp, sleep=1):
        L = a.new("L_poll"); D = a.new("L_pdone")
        e(f"s_mov_b32 s{sCNT}, {POLL_LIMIT}")
        e(f"s_cmp_eq_u32 s{sFAIL}, 0"); e(f"s_cbranch_scc0 {D}")
        a.lab(L)
        e(f"buffer_load_dword v{vtmp}, v{voff}, {srd(sWS)}, s{soff} offen sc1")
        e("s_waitcnt vmcnt(0)")
        e(f"v_cmp_gt_u32 vcc, s{tgt}, v{vtmp}")
        e(f"s_cbranch_vccz {D}")
        if sleep: e(f"s_sleep {sleep}")
        e(f"s_sub_u32 s{sCNT}, s{sCNT}, 1"); e(f"s_cbranch_scc0 {L}")
        e(f"s_mov_b32 s{sFAIL}, 1")
        a.lab(D)

    def poll64(voff, soff, tgt, vtmp, sleep=2):
        L = a.new("L_poll"); D = a.new("L_pdone")
        e(f"s_mov_b32 s{sCNT}, {POLL_LIMIT}")
        e(f"s_cmp_eq_u32 s{sFAIL}, 0"); e(f"s_cbranch_scc0 {D}")
        a.lab(L)
        e(f"buffer_load_dwordx2 v[{vtmp}:{vtmp+1}], v{voff}, {srd(sWS)}, s{soff} offen sc1")
        e("s_waitcnt vmcnt(0)")
        e(f"v_subrev_u32 v{vtmp+2}, s{tgt}, v{vtmp+1}")
        e(f"v_cmp_ne_u32 vcc, s{sNONCE}, v{vtmp}")
        e(f"v_cmp_lt_u32 s[{sT0+10}:{sT0+11}], 31, v{vtmp+2}")
        e(f"s_or_b64 vcc, vcc, s[{sT0+10}:{sT0+11}]")
        e(f"s_cbranch_vccz {D}")
        if sleep: e(f"s_sleep {sleep}")
        e(f"s_sub_u32 s{sCNT}, s{sCNT}, 1"); e(f"s_cbranch_scc0 {L}")
        e(f"s_mov_b32 s{sFAIL}, 1")
        a.lab(D)

    def nonce_poll(v):
        L = a.new("L_npoll"); D = a.new("L_ndone")
        e(f"v_mov_b32 v{v}, 0")
        e(f"s_mov_b32 s{sCNT}, {POLL_LIMIT}")
        a.lab(L)
        e(f"buffer_load_dword v{v+1}, v{v}, {srd(sDBG)}, 0 offen sc1")
        e("s_waitcnt vmcnt(0)")
        e(f"v_readfirstlane_b32 s{sNONCE}, v{v+1}")
        e(f"s_cmp_lg_u32 s{sNONCE}, 0"); e(f"s_cbranch_scc1 {D}")
        e("s_sleep 2")
        e(f"s_sub_u32 s{sCNT}, s{sCNT}, 1"); e(f"s_cbranch_scc0 {L}")
        e(f"s_mov_b32 s{sFAIL}, 1")
        a.lab(D)

    def moded(fn):
        F = a.new("L_fast"); J = a.new("L_join")
        e(f"s_cmp_eq_u32 s{sMODE}, 1"); e(f"s_cbranch_scc1 {F}")
        fn(" sc1"); e(f"s_branch {J}")
        a.lab(F); fn(""); a.lab(J)

    def team_wait(delta, vt):
        e(f"s_lshl_b32 s{sTGT}, s{sL}, 2")
        e(f"s_add_u32 s{sTGT}, s{sTGT}, {delta}")
        e(f"v_lshlrev_b32 v{vt}, 2, v{vLANE}")
        poll(vt, sTEAM, sTGT, vt + 1)

    def team_signal(delta, vt):
        e(f"s_lshl_b32 s{sT0}, s{sL}, 2")
        e(f"s_add_u32 s{sT0}, s{sT0}, {delta}")
        e(f"v_mov_b32 v{vt}, s{sT0}"); e(f"v_mov_b32 v{vt+1}, 0")
        e("s_mov_b64 exec, 1")
        moded(lambda fl: e(f"buffer_store_dword v{vt}, v{vt+1}, {srd(sWS)}, s{sMYF} offen{fl}"))
        e("s_mov_b64 exec, -1")

    def tr_base_common(vrow, vcol, vt):
        e(f"v_lshrrev_b32 v{vrow}, 5, v{vLANE}")
        e(f"v_lshlrev_b32 v{vrow}, 2, v{vrow}")
        e(f"v_bfe_u32 v{vt}, v{vLANE}, 2, 2")
        e(f"v_add_u32 v{vrow}, v{vrow}, v{vt}")
        e(f"v_bfe_u32 v{vcol}, v{vLANE}, 4, 1")
        e(f"v_lshlrev_b32 v{vcol}, 5, v{vcol}")
        e(f"v_and_b32 v{vt}, 3, v{vLANE}")
        e(f"v_lshlrev_b32 v{vt}, 3, v{vt}")
        e(f"v_add_u32 v{vcol}, v{vcol}, v{vt}")

    def voff_qkv(v, vt):
        e(f"v_lshrrev_b32 v{v}, 2, v{vLANE}")
        e(f"v_mul_u32_u24 v{v}, 3072, v{v}")
        e(f"v_and_b32 v{vt}, 3, v{vLANE}")
        e(f"v_lshl_add_u32 v{v}, v{vt}, 4, v{v}")
    def voff_n64(v, vt):
        e(f"v_lshrrev_b32 v{v}, 3, v{vLANE}")
        e(f"v_lshlrev_b32 v{v}, 10, v{v}")
        e(f"v_lshrrev_b32 v{vt}, 2, v{vLANE}")
        e(f"v_lshrrev_b32 v{vt+1}, 4, v{vLANE}")
        e(f"v_xor_b32 v{vt}, v{vt}, v{vt+1}")
        e(f"v_and_b32 v{vt}, 1, v{vt}")
        e(f"v_lshl_add_u32 v{v}, v{vt}, 6, v{v}")
        e(f"v_and_b32 v{vt}, 3, v{vLANE}")
        e(f"v_lshl_add_u32 v{v}, v{vt}, 4, v{v}")
    def voff_n128(v, vt):
        e(f"v_lshrrev_b32 v{v}, 4, v{vLANE}")
        e(f"v_bfe_u32 v{vt}, v{vLANE}, 2, 2")
        e(f"v_xor_b32 v{vt}, v{vt}, v{v}")
        e(f"v_mul_u32_u24 v{v}, 3584, v{v}")
        e(f"v_lshl_add_u32 v{v}, v{vt}, 6, v{v}")
        e(f"v_and_b32 v{vt}, 3, v{vLANE}")
        e(f"v_lshl_add_u32 v{v}, v{vt}, 4, v{v}")

    def dma_loop(srd_reg, voff, soff_reg, soff_step, lds_step, count, sleep=0):
        L = a.new("L_dma")
        e(f"s_mov_b32 s{sCNT}, {count}")
        a.lab(L)
        e(f"buffer_load_dwordx4 v{voff}, {srd(srd_reg)}, s{soff_reg} offen lds")
        if sleep: e(f"s_sleep {sleep}")
        e(f"s_add_u32 m0, m0, {lds_step}")
        e(f"s_add_u32 s{soff_reg}, s{soff_reg}, {soff_step}")
        e(f"s_sub_u32 s{sCNT}, s{sCNT}, 1"); e(f"s_cmp_lg_u32 s{sCNT}, 0"); e(f"s_cbranch_scc1 {L}")

    def dma_wqkv(first, count):
        S = a.new("L_skip")
        e(f"s_cmp_lt_u32 s{sW}, 5"); e(f"s_cbranch_scc1 {S}")
        voff_qkv(2, 3)
        e(f"s_sub_u32 s{sT0}, s{sW}, 5")
        e(f"s_lshl_b32 s{sT0+1}, s{sT0}, 10")
        e(f"s_lshl_b32 s{sT0+2}, s{sI}, 6")
        e(f"s_add_u32 s{sT0+1}, s{sT0+1}, s{sT0+2}")
        if first: e(f"s_add_u32 s{sT0+1}, s{sT0+1}, {first*16*3072}")
        e(f"s_lshl_b32 s{sT0}, s{sT0}, 15")
        e(f"s_add_u32 m0, s{sT0}, {first*1024}")
        dma_loop(sWQ, 2, sT0+1, 16*3072, 1024, count)
        a.lab(S)

    vCSA = 240
    def dma_wqkv_packed(first, count):
        S = a.new("L_skip")
        e(f"s_cmp_lt_u32 s{sW}, 5"); e(f"s_cbranch_scc1 {S}")
        e(f"s_sub_u32 s{sT0}, s{sW}, 5"); e(f"s_lshl_b32 s{sT0}, s{sT0}, 15")
        e(f"s_mul_i32 s{sT0+1}, s{sI}, 98304"); e(f"s_add_u32 s{sT0+1}, s{sT0+1}, s{sT0}")
        e(f"s_add_u32 s{sT0+1}, s{sT0+1}, {PKQ + first*1024}")
        e(f"s_add_u32 m0, s{sT0}, {first*1024}")
        L = a.new("L_dma")
        e(f"s_mov_b32 s{sCNT}, {count}")
        a.lab(L)
        e(f"buffer_load_dwordx4 v{vL16}, {srd(sWS)}, s{sT0+1} offen sc1 lds")
        e(f"s_add_u32 m0, m0, 1024"); e(f"s_add_u32 s{sT0+1}, s{sT0+1}, 1024")
        e(f"s_sub_u32 s{sCNT}, s{sCNT}, 1"); e(f"s_cmp_lg_u32 s{sCNT}, 0"); e(f"s_cbranch_scc1 {L}")
        a.lab(S)

    def colsum_init(kind):
        tr_base_common(4, 5, 6)
        e(f"s_sub_u32 s{sT0}, s{sW}, 4")
        if kind == "qkv":
            e(f"v_lshl_add_u32 v4, v4, 6, v5")
            e(f"s_lshl_b32 s{sT0+1}, s{sT0}, 15")
            e(f"v_add_u32 v4, s{sT0+1}, v4")
        else:
            e(f"v_and_b32 v6, 3, v4")
            e(f"v_xor_b32 v6, s{sT0}, v6")
            e(f"v_lshl_add_u32 v5, v6, 6, v5")
            e(f"v_lshl_add_u32 v4, v4, 8, v5")
        for r in range(8, 12): e(f"v_mov_b32 v{r}, 0x3f803f80")
    def colsum_chunk(kind, tmp, first, extra=None):
        step, second = (1024, 512) if kind == "qkv" else (4096, 2048)
        for k in range(8):
            e(f"ds_read_b64_tr_b16 v[{tmp+4*k}:{tmp+4*k+1}], v4 offset:{k*step}")
            e(f"ds_read_b64_tr_b16 v[{tmp+4*k+2}:{tmp+4*k+3}], v4 offset:{k*step+second}")
        e(f"v_add_u32 v4, {8*step}, v4")
        for k in range(8):
            if extra: extra(k)
            e(f"s_waitcnt lgkmcnt({14-2*k})")
            e(f"{MF} {V(vCSA,16)}, {V(tmp+4*k,4)}, v[8:11], {'0' if (first and k == 0) else V(vCSA,16)}")
    def colsum_fin(kind):
        cs = L_CS1 if kind == "qkv" else L_CS4
        a.nop(14)
        e(f"s_sub_u32 s{sT0}, s{sW}, 4")
        e(f"s_lshl_b32 s{sT0+1}, s{sT0}, 7"); e(f"s_add_u32 s{sT0+1}, s{sT0+1}, {cs}")
        e(f"v_lshrrev_b32 v10, 5, v{vLANE}"); e(f"v_lshl_add_u32 v10, v10, 4, s{sT0+1}")
        e(f"s_mov_b32 s{sT0+2}, 1"); e(f"s_mov_b32 s{sT0+3}, 1")
        e(f"s_mov_b64 exec, s[{sT0+2}:{sT0+3}]")
        for g in range(4): e(f"ds_write_b128 v10, {V(vCSA+4*g,4)} offset:{g*32}")
        e("s_mov_b64 exec, -1")
        e("s_waitcnt lgkmcnt(0)")

    def load_stats(st_base, vdst, voff, tile_sreg):
        e(f"v_lshrrev_b32 v{voff}, 5, v{vLANE}")
        e(f"v_lshlrev_b32 v{voff}, 11, v{voff}")
        e(f"v_and_b32 v{voff+1}, 31, v{vLANE}")
        e(f"v_lshl_add_u32 v{voff}, v{voff+1}, 3, v{voff}")
        e(f"s_lshl_b32 s{sT0+5}, s{tile_sreg}, 12")
        e(f"s_add_u32 s{sT0+5}, s{sT0+5}, {st_base}")
        for k in range(8):
            e(f"buffer_load_dwordx2 v[{vdst+2*k}:{vdst+2*k+1}], v{voff}, {srd(sWS)}, s{sT0+5} offen offset:{k*256} sc1")

    def reduce_partials(vsrc):
        for k in (1, 3, 5, 7):
            e(f"v_pk_add_f32 v[{vsrc+2*(k-1)}:{vsrc+2*(k-1)+1}], v[{vsrc+2*(k-1)}:{vsrc+2*(k-1)+1}], v[{vsrc+2*k}:{vsrc+2*k+1}]")
        e(f"v_pk_add_f32 v[{vsrc}:{vsrc+1}], v[{vsrc}:{vsrc+1}], v[{vsrc+4}:{vsrc+5}]")
        e(f"v_pk_add_f32 v[{vsrc+8}:{vsrc+9}], v[{vsrc+8}:{vsrc+9}], v[{vsrc+12}:{vsrc+13}]")
        e(f"v_pk_add_f32 v[{vsrc}:{vsrc+1}], v[{vsrc}:{vsrc+1}], v[{vsrc+8}:{vsrc+9}]")
    def finish_stats(vsrc, vA, vB):
        e(f"v_mov_b32 v{vsrc+2}, v{vsrc}"); e(f"v_mov_b32 v{vsrc+3}, v{vsrc+1}")
        a.nop(2)
        e(f"v_permlane32_swap_b32 v{vsrc+2}, v{vsrc}"); e(f"v_permlane32_swap_b32 v{vsrc+3}, v{vsrc+1}")
        a.nop(1)
        e(f"v_pk_add_f32 v[{vsrc}:{vsrc+1}], v[{vsrc}:{vsrc+1}], v[{vsrc+2}:{vsrc+3}]")
        e(f"v_mul_f32 v{vsrc}, {f2u(1/512):#x}, v{vsrc}")
        e(f"v_mul_f32 v{vsrc+1}, {f2u(1/512):#x}, v{vsrc+1}")
        e(f"v_fma_f32 v{vsrc+1}, -v{vsrc}, v{vsrc}, v{vsrc+1}")
        e(f"v_max_f32 v{vsrc+1}, 0, v{vsrc+1}")
        e(f"v_add_f32 v{vsrc+1}, {f2u(1e-5):#x}, v{vsrc+1}")
        e(f"v_rsq_f32 v{vA}, v{vsrc+1}")
        a.nop(1)
        e(f"v_mul_f32 v{vB}, v{vsrc}, v{vA}")

    def x_setup(base, nsteps_total, s0_sreg, tile_sreg):
        e(f"s_mul_i32 s{sXS}, s{tile_sreg}, {nsteps_total*1024}")
        e(f"s_add_u32 s{sXS}, s{sXS}, {base}")
        if s0_sreg is not None:
            e(f"s_lshl_b32 s{sT0+7}, s{s0_sreg}, 10")
            e(f"s_add_u32 s{sXS}, s{sXS}, s{sT0+7}")
    def x_load(k, dst):
        if k and k % 4 == 0: e(f"s_add_u32 s{sXS}, s{sXS}, 4096")
        e(f"buffer_load_dwordx4 v[{dst}:{dst+3}], v{vL16}, {srd(sWS)}, s{sXS} offen offset:{(k%4)*1024} sc1")

    def tile_ids():
        e(f"s_lshl_b32 s{sT0+4}, s{sB}, 2")
        e(f"s_lshr_b32 s{sT0+1}, s{sI}, 3"); e(f"s_lshl_b32 s{sT0+1}, s{sT0+1}, 1")
        e(f"s_add_u32 s{sT0+4}, s{sT0+4}, s{sT0+1}")
        e(f"s_and_b32 s{sT0+1}, s{sW}, 1"); e(f"s_add_u32 s{sT0+4}, s{sT0+4}, s{sT0+1}")
        e(f"s_lshr_b32 s{sT0+3}, s{sW}, 1")

    e("s_cmp_ge_u32 s2, 256"); e("s_cbranch_scc1 L_end")
    e(f"s_load_dwordx16 s[{sKA}:{sKA+15}], s[0:1], 0")
    e(f"s_load_dwordx4 s[{sKA+16}:{sKA+19}], s[0:1], 64")
    e(f"s_load_dwordx2 s[{sKA+20}:{sKA+21}], s[0:1], 80")
    e(f"v_lshrrev_b32 v2, 6, v0")
    e(f"v_and_b32 v{vLANE}, 63, v0")
    e(f"v_readfirstlane_b32 s{sW}, v2")
    e(f"v_lshlrev_b32 v{vL16}, 4, v{vLANE}")
    e(f"s_and_b32 s{sB}, s2, 7"); e(f"s_lshl_b32 s{sB}, s{sB}, 1")
    e(f"s_lshr_b32 s{sT0}, s2, 7"); e(f"s_or_b32 s{sB}, s{sB}, s{sT0}")
    e(f"s_bfe_u32 s{sI}, s2, 0x40003")
    e(f"s_mov_b32 s{sL}, 0"); e(f"s_mov_b32 s{sFAIL}, 0"); e(f"s_mov_b32 s{sKVO}, 0"); e(f"s_mov_b32 s{sMODE}, 0"); e(f"s_mov_b32 s{sNONCE}, 0")
    e(f"s_mov_b32 s{sM16}, 0x0000ffff"); e(f"s_mov_b32 s{sM16+1}, 0x0000ffff")
    e(f"s_mov_b32 s{sM32}, -1"); e(f"s_mov_b32 s{sM32+1}, 0")
    e(f"s_getreg_b32 s{sXCC}, hwreg(HW_REG_XCC_ID, 0, 4)")
    e(f"s_lshl_b32 s{sTEAM}, s{sB}, 12")
    e(f"s_lshl_b32 s{sMYF}, s{sI}, 4"); e(f"s_add_u32 s{sMYF}, s{sMYF}, s{sTEAM}")
    e(f"s_and_b32 s{sT0}, s{sW}, 3"); e(f"s_lshl_b32 s{sT0}, s{sT0}, 2"); e(f"s_add_u32 s{sMYF}, s{sMYF}, s{sT0}")
    e("s_waitcnt lgkmcnt(0)")
    def mk(dst, src, size):
        e(f"s_mov_b32 s{dst}, s{src}"); e(f"s_and_b32 s{dst+1}, s{src+1}, 0xffff")
        e(f"s_mov_b32 s{dst+2}, {size}"); e(f"s_mov_b32 s{dst+3}, 0x00020000")
    mk(sX, sKA+0, 2048*512*2); mk(sWQ, sKA+2, 512*1536*2); mk(sWO, sKA+4, 512*512*2)
    mk(sW1, sKA+8, 512*1792*2); mk(sW2, sKA+12, 1792*512*2); mk(sOUT, sKA+16, 2048*512*2)
    mk(sDBG, sKA+18, 256); mk(sWS, sKA+20, 0x10000000)
    e(f"s_cmp_ge_u32 s{sW}, 4"); e("s_cbranch_scc1 L_pro_helper")

    if args.prio: e(f"s_setprio {args.prio}")
    vX = 64; vAcc = 16; vWf = 192
    vXO = 14
    Lnb = a.new("L_nobias")
    e(f"s_cmp_lg_u32 s{sW}, 3"); e(f"s_cbranch_scc1 {Lnb}")
    mk(sTS, sKA+10, 1792*2)
    e(f"v_lshlrev_b32 v20, 1, v{vLANE}")
    e(f"s_lshl_b32 s{sT0+2}, s{sI}, 8")
    e(f"buffer_load_ushort v21, v20, {srd(sTS)}, s{sT0+2} offen")
    e(f"buffer_load_ushort v22, v20, {srd(sTS)}, s{sT0+2} offen offset:128")
    mk(sTS, sKA+14, 512*2)
    e(f"s_and_b32 s{sT0+2}, s{sI}, 7"); e(f"s_lshl_b32 s{sT0+2}, s{sT0+2}, 7")
    e(f"buffer_load_ushort v23, v20, {srd(sTS)}, s{sT0+2} offen")
    a.lab(Lnb)
    fstamp("start")
    tile_ids()
    e(f"v_and_b32 v10, 31, v{vLANE}"); e(f"v_lshlrev_b32 v10, 10, v10")
    e(f"v_lshrrev_b32 v11, 5, v{vLANE}")
    e(f"v_lshl_add_u32 v{vXO}, v11, 4, v10")
    e(f"v_lshl_add_u32 v10, v11, 3, v10")
    e(f"s_lshl_b32 s{sT0}, s{sT0+4}, 15")
    e(f"s_and_b32 s{sT0+1}, s{sI}, 7"); e(f"s_lshl_b32 s{sT0+1}, s{sT0+1}, 7"); e(f"s_add_u32 s{sT0}, s{sT0}, s{sT0+1}")
    e(f"s_lshl_b32 s{sT0+1}, s{sT0+3}, 6"); e(f"s_add_u32 s{sT0}, s{sT0}, s{sT0+1}")
    for g in range(4):
        e(f"buffer_load_dwordx2 v[{vRES+2*g}:{vRES+2*g+1}], v10, {srd(sX)}, s{sT0} offen offset:{g*16}")
    e(f"s_lshl_b32 s{sXS}, s{sB}, 2"); e(f"s_add_u32 s{sXS}, s{sXS}, s{sW}"); e(f"s_lshl_b32 s{sXS}, s{sXS}, 15")
    L_XR = 98304
    e(f"v_lshrrev_b32 v{vXO}, 3, v{vLANE}"); e(f"v_and_b32 v15, 7, v{vLANE}"); e(f"v_xor_b32 v15, v15, v{vXO}")
    e(f"v_lshlrev_b32 v{vXO}, 10, v{vXO}"); e(f"v_lshl_add_u32 v{vXO}, v15, 4, v{vXO}")
    e(f"s_mul_i32 s{sW1S}, s{sW}, 12288"); e(f"s_add_u32 s{sW1S}, s{sW1S}, {L_XR}")
    def x0_dma(c):
        e(f"s_add_u32 m0, s{sW1S}, {(c % 3)*4096}")
        e(f"s_add_u32 s{sT0+6}, s{sXS}, {c*128}")
        for r in range(4):
            e(f"buffer_load_dwordx4 v{vXO}, {srd(sX)}, s{sT0+6} offen lds")
            if r < 3:
                e(f"s_add_u32 m0, m0, 1024"); e(f"s_add_u32 s{sT0+6}, s{sT0+6}, 8192")
    for c in range(3): x0_dma(c)
    XA0 = 12
    fstamp("xissued")
    Lw1, Lw2, Lw3, Ltab = a.new("L_w1"), a.new("L_w2"), a.new("L_w3"), a.new("L_tabdone")
    e(f"v_and_b32 v16, 31, v{vLANE}"); e(f"v_lshrrev_b32 v17, 5, v{vLANE}"); e(f"v_lshlrev_b32 v17, 2, v17")
    e(f"v_sub_u32 v16, v16, v17")
    e(f"v_mov_b32 v18, 0"); e(f"v_mov_b32 v19, {NEG:#x}")
    e(f"s_cmp_eq_u32 s{sW}, 3"); e(f"s_cbranch_scc1 {Lw3}")
    e(f"s_cmp_eq_u32 s{sW}, 2"); e(f"s_cbranch_scc1 {Lw2}")
    e(f"s_cmp_eq_u32 s{sW}, 1"); e(f"s_cbranch_scc1 {Lw1}")
    for (lab, base, inv) in ((None, L_MD, False), (Lw1, L_MF, True)):
        if lab: a.lab(lab)
        for g in range(4):
            for i in range(4):
                e(f"v_cmp_le_i32 vcc, {8*g+i}, v16"); a.nop(2)
                e(f"v_cndmask_b32 v{24+i}, v19, v18, vcc" if not inv else f"v_cndmask_b32 v{24+i}, v18, v19, vcc")
            e(f"v_add_u32 v28, {base + g*1024}, v{vL16}")
            e(f"ds_write_b128 v28, v[24:27]"); a.nop(2)
        e(f"s_branch {Ltab}")
    a.lab(Lw2)
    e(f"v_mov_b32 v29, 0xffff"); e(f"v_mov_b32 v30, 0xffff0000")
    for half in range(2):
        for dd in range(4):
            d = half*4 + dd; r0, r1 = 2*d, 2*d+1
            c0 = 8*(r0 >> 2) + (r0 & 3); c1 = 8*(r1 >> 2) + (r1 & 3)
            e(f"v_cmp_le_i32 vcc, {c0}, v16"); a.nop(2); e(f"v_cndmask_b32 v31, v18, v29, vcc")
            e(f"v_cmp_le_i32 vcc, {c1}, v16"); a.nop(2); e(f"v_cndmask_b32 v32, v18, v30, vcc")
            e(f"v_or_b32 v{24+dd}, v31, v32")
        e(f"v_add_u32 v28, {L_MB + half*1024}, v{vL16}")
        e(f"ds_write_b128 v28, v[24:27]"); a.nop(2)
    e(f"s_branch {Ltab}")
    a.lab(Lw3)
    e(f"s_waitcnt vmcnt({4 + XA0})")
    e("v_lshlrev_b32 v21, 16, v21"); e("v_lshlrev_b32 v22, 16, v22"); e("v_lshlrev_b32 v23, 16, v23")
    e(f"v_lshlrev_b32 v24, 2, v{vLANE}"); e(f"v_add_u32 v24, {L_B1}, v24")
    e(f"ds_write_b32 v24, v21"); e(f"ds_write_b32 v24, v22 offset:256"); e(f"ds_write_b32 v24, v23 offset:512")
    a.lab(Ltab)

    def wread1(tile, s, dst):
        b = 4 if tile < 2 else 5
        off = (tile % 2) * 32768 + s * 1024
        e(f"ds_read_b64_tr_b16 v[{dst}:{dst+1}], v{b} offset:{off}")
        e(f"ds_read_b64_tr_b16 v[{dst+2}:{dst+3}], v{b} offset:{off+512}")
    ORDER1 = (1, 2, 0)
    def p1_bases():
        tr_base_common(4, 5, 6)
        e("v_lshl_add_u32 v4, v4, 6, v5"); e("v_add_u32 v5, 65536, v4")
    def p1_mfma(t, s, cur):
        acc = vAcc + 16*t; c = "0" if s == 0 else V(acc, 16); x = vX + 4*s; w = cur + 4*t
        if t < 2: e(f"{MF} {V(acc,16)}, {V(w,4)}, {V(x,4)}, {c}")
        else:     e(f"{MF} {V(acc,16)}, {V(x,4)}, {V(w,4)}, {c}")

    for r in range(8, 12): e(f"v_mov_b32 v{r}, 0")
    e(f"v_and_b32 v6, 31, v{vLANE}"); e(f"v_lshrrev_b32 v7, 5, v{vLANE}"); e(f"v_and_b32 v15, 7, v6")
    e(f"v_xor_b32 v7, v7, v15"); e(f"v_lshlrev_b32 v6, 7, v6"); e(f"v_lshl_add_u32 v6, v7, 4, v6")
    e(f"v_add_u32 v232, s{sW1S}, v6")
    for sp_ in range(1, 4): e(f"v_xor_b32 v{232+sp_}, {sp_*32}, v232")
    for c in range(8):
        e(f"s_waitcnt vmcnt({4*min(2, 7-c)})")
        if c == 0: fstamp("xland")
        for sp_ in range(4):
            x = vX + 4*(4*c + sp_)
            e(f"ds_read_b128 {V(x,4)}, v{232+sp_} offset:{(c % 3)*4096}")
        e("s_waitcnt lgkmcnt(0)")
        if c + 3 < 8: x0_dma(c + 3)
        for sp_ in range(4):
            x = vX + 4*(4*c + sp_)
            e(f"v_permlane32_swap_b32 v{x}, v{x+2}"); e(f"v_permlane32_swap_b32 v{x+1}, v{x+3}")
            for d in range(4):
                e(f"v_lshlrev_b32 v12, 16, v{x+d}"); e(f"v_and_b32 v13, 0xffff0000, v{x+d}")
                e(f"v_pk_add_f32 v[8:9], v[8:9], v[12:13]"); e(f"v_pk_fma_f32 v[10:11], v[12:13], v[12:13], v[10:11]")
    e("v_add_f32 v216, v8, v9"); e("v_add_f32 v217, v10, v11")
    p1_bases()
    fstamp("xdone")
    e("s_barrier")
    fstamp("p1B")
    for t in ORDER1: wread1(t, 0, vWf + 4*t)
    for s in range(32):
        cur = vWf + 12*(s % 2); nxt = vWf + 12*((s+1) % 2)
        if s % 8 == 7 and s < 31: e("s_barrier")
        for n, t in enumerate(ORDER1):
            last = (s == 31)
            e(f"s_waitcnt lgkmcnt({4 if not last else 2*(2-n)})")
            p1_mfma(t, s, cur)
            if not last: wread1(t, s+1, nxt + 4*t)
    e("s_branch L_p1_epi")

    a.lab("L_p1_l1")
    team_wait(0, 4)
    fstamp("p1poll")
    e(f"s_lshl_b32 s{sT0+4}, s{sB}, 2"); e(f"s_add_u32 s{sT0+4}, s{sT0+4}, s{sW}")
    load_stats(ST1, 216, 4, sT0+4)
    x_setup(XF, 32, None, sT0+4)
    for k in range(XA): x_load(k, vX + 4*k)
    p1_bases()
    e("s_barrier")
    for t in ORDER1: wread1(t, 0, vWf + 4*t)
    for s in range(32):
        cur = vWf + 12*(s % 2); nxt = vWf + 12*((s+1) % 2)
        if s % 8 == 7 and s < 31: e("s_barrier")
        e(f"s_waitcnt vmcnt({min(XA, 32-s)-1})")
        if s + XA < 32: x_load(s + XA, vX + 4*(s + XA))
        for n, t in enumerate(ORDER1):
            last = (s == 31)
            e(f"s_waitcnt lgkmcnt({4 if not last else 2*(2-n)})")
            p1_mfma(t, s, cur)
            if not last: wread1(t, s+1, nxt + 4*t)
    reduce_partials(216)

    a.lab("L_p1_epi")
    fstamp("p1main")
    e("s_barrier")
    e("v_mov_b32 v14, 0")
    e(f"buffer_load_dword v15, v14, {srd(sDBG)}, 0 offen sc1")
    vA, vB = 8, 10
    e(f"v_lshrrev_b32 v7, 5, v{vLANE}"); e(f"v_lshlrev_b32 v7, 4, v7")
    e(f"v_add_u32 v6, {L_CS1}, v7")
    for t in range(2):
        for g in range(4): e(f"ds_read_b128 {V(64+16*t+4*g,4)}, v6 offset:{t*128 + g*32}")
    e(f"v_and_b32 v6, 31, v{vLANE}"); e(f"v_lshlrev_b32 v6, 2, v6"); e(f"v_add_u32 v13, {L_CS1+256}, v6")
    e(f"ds_read_b32 v12, v13")
    finish_stats(216, vA, vB)
    e(f"s_lshl_b32 s{sT0}, s{sW}, 8"); e(f"s_add_u32 s{sT0}, s{sT0}, {L_STA}")
    e(f"v_add_u32 v6, s{sT0}, v6")
    e(f"ds_write_b32 v6, v{vA}"); e(f"ds_write_b32 v6, v{vB} offset:128")
    e(f"v_add_u32 v7, s{sT0}, v7")
    for g in range(4):
        e(f"ds_read_b128 {V(96+4*g,4)}, v7 offset:{g*32}")
        e(f"ds_read_b128 {V(112+4*g,4)}, v7 offset:{128+g*32}")
    e(f"s_lshl_b32 s{sT0+4}, s{sB}, 2"); e(f"s_add_u32 s{sT0+4}, s{sT0+4}, s{sW}")
    e(f"s_lshl_b32 s{sT0}, s{sT0+4}, 15"); e(f"s_lshl_b32 s{sT0+1}, s{sI}, 11")
    e(f"s_add_u32 s{sT0}, s{sT0}, s{sT0+1}"); e(f"s_add_u32 s{sT0}, s{sT0}, s{sKVO}")
    e(f"s_add_u32 s{sT0+1}, s{sT0}, {VF}"); e(f"s_add_u32 s{sT0}, s{sT0}, {KF}")
    e(f"s_lshl_b32 s{sT0+2}, s{sW}, 11"); e(f"v_add_u32 v6, s{sT0+2}, v{vL16}")
    def ln_tile_T(acc, cs, A, B, out):
        for p in range(8):
            e(f"v_pk_mul_f32 {V(acc+2*p,2)}, {V(acc+2*p,2)}, {V(A,2)} op_sel_hi:[1,0]")
            e(f"v_pk_fma_f32 {V(acc+2*p,2)}, {V(cs+2*p,2)}, {V(B,2)}, {V(acc+2*p,2)} op_sel_hi:[1,0,1] neg_lo:[0,1,0] neg_hi:[0,1,0]")
        for d in range(8): e(f"v_cvt_pk_bf16_f32 v{out+d}, v{acc+2*d}, v{acc+2*d+1}")
    e("s_waitcnt lgkmcnt(8)")
    ln_tile_T(vAcc+16, 80, vA, vB, 136)
    e(f"buffer_store_dwordx4 {V(136,4)}, v{vL16}, {srd(sWS)}, s{sT0} offen sc1")
    e(f"buffer_store_dwordx4 {V(140,4)}, v{vL16}, {srd(sWS)}, s{sT0} offen offset:1024 sc1")
    e("s_waitcnt lgkmcnt(0)")
    acc = vAcc + 32
    for p in range(8):
        e(f"v_pk_mul_f32 {V(acc+2*p,2)}, {V(acc+2*p,2)}, {V(96+2*p,2)}")
        e(f"v_pk_fma_f32 {V(acc+2*p,2)}, {V(112+2*p,2)}, {V(12,2)}, {V(acc+2*p,2)} op_sel_hi:[1,0,1] neg_lo:[1,0,0] neg_hi:[1,0,0]")
    for d in range(8): e(f"v_cvt_pk_bf16_f32 v{144+d}, v{acc+2*d}, v{acc+2*d+1}")
    e(f"buffer_store_dwordx4 {V(144,4)}, v{vL16}, {srd(sWS)}, s{sT0+1} offen sc1")
    e(f"buffer_store_dwordx4 {V(148,4)}, v{vL16}, {srd(sWS)}, s{sT0+1} offen offset:1024 sc1")
    e(f"v_mul_f32 v152, {f2u(QSCALE):#x}, v{vA}"); e(f"v_mul_f32 v154, {f2u(QSCALE):#x}, v{vB}")
    ln_tile_T(vAcc, 64, 152, 154, 128)
    e(f"ds_write_b128 v6, {V(128,4)} offset:{L_QST}"); e(f"ds_write_b128 v6, {V(132,4)} offset:{L_QST+1024}")
    e(f"ds_write_b128 v6, {V(136,4)} offset:{L_KST+16*1024}"); e(f"ds_write_b128 v6, {V(140,4)} offset:{L_KST+17*1024}")
    e(f"ds_write_b128 v6, {V(144,4)} offset:{L_VST+16*1024}"); e(f"ds_write_b128 v6, {V(148,4)} offset:{L_VST+17*1024}")
    if args.dbgq:
        e(f"s_lshl_b32 s{sT0}, s{sT0+4}, 15"); e(f"s_lshl_b32 s{sT0+1}, s{sI}, 11")
        e(f"s_add_u32 s{sT0}, s{sT0}, s{sT0+1}"); e(f"s_add_u32 s{sT0}, s{sT0}, {OF}")
        e(f"buffer_store_dwordx4 {V(128,4)}, v{vL16}, {srd(sWS)}, s{sT0} offen sc1")
        e(f"buffer_store_dwordx4 {V(132,4)}, v{vL16}, {srd(sWS)}, s{sT0} offen offset:1024 sc1")
    fstamp("p1pre")
    e("s_waitcnt vmcnt(0)")
    fstamp("p1drain")
    Lhn = a.new("L_havenonce")
    e(f"v_readfirstlane_b32 s{sNONCE}, v15")
    e(f"s_cmp_lg_u32 s{sNONCE}, 0"); e(f"s_cbranch_scc1 {Lhn}")
    nonce_poll(14)
    a.lab(Lhn)
    e(f"s_lshl_b32 s{sT0}, s{sI}, 7"); e(f"s_add_u32 s{sT0}, s{sT0}, s{sTEAM}")
    e(f"s_lshl_b32 s{sT0+1}, s{sW}, 3"); e(f"s_add_u32 s{sT0}, s{sT0}, s{sT0+1}"); e(f"s_add_u32 s{sT0}, s{sT0}, {C_KV}")
    e(f"s_add_u32 s{sT0+1}, s{sL}, 1")
    e(f"v_mov_b32 v10, s{sNONCE}"); e(f"v_mov_b32 v11, s{sT0+1}"); e("v_mov_b32 v12, 0")
    e("s_mov_b64 exec, 1")
    e(f"buffer_store_dwordx2 v[10:11], v12, {srd(sWS)}, s{sT0} offen sc1")
    e("s_mov_b64 exec, -1")
    if STOP == 1:
        e("s_waitcnt vmcnt(0) lgkmcnt(0)"); e("s_barrier"); e("s_branch L_end")
    Lnokv = a.new("L_nokv")
    e(f"s_lshr_b32 s{sT0}, s{sW}, 1"); e(f"s_add_u32 s{sT0}, s{sT0}, s{sB}"); e(f"s_sub_u32 s{sT0}, s{sT0}, 2")
    e(f"s_cbranch_scc1 {Lnokv}")
    e(f"s_lshl_b32 s{sT0}, s{sT0}, 12")
    e(f"s_lshl_b32 s{sT0+1}, s{sI}, 7"); e(f"s_add_u32 s{sT0}, s{sT0}, s{sT0+1}")
    e(f"s_lshl_b32 s{sT0+1}, s{sW}, 4"); e(f"s_and_b32 s{sT0+1}, s{sT0+1}, 16")
    e(f"s_add_u32 s{sT0}, s{sT0}, s{sT0+1}"); e(f"s_add_u32 s{sT0}, s{sT0}, {C_KV}")
    e(f"v_and_b32 v10, 1, v{vLANE}"); e(f"v_lshlrev_b32 v10, 3, v10")
    e(f"s_add_u32 s{sTGT}, s{sL}, 1")
    poll64(10, sT0, sTGT, 12, sleep=1)
    fstamp("kvpoll")
    for zz in range(2):
        e(f"s_lshl_b32 s{sT0}, s{sB}, 2"); e(f"s_lshl_b32 s{sT0+1}, s{sW}, 1")
        e(f"s_add_u32 s{sT0}, s{sT0}, s{sT0+1}"); e(f"s_add_u32 s{sT0}, s{sT0}, {zz}"); e(f"s_sub_u32 s{sT0}, s{sT0}, 8")
        e(f"s_lshl_b32 s{sT0}, s{sT0}, 15"); e(f"s_lshl_b32 s{sT0+2}, s{sI}, 11")
        e(f"s_add_u32 s{sT0}, s{sT0}, s{sT0+2}"); e(f"s_add_u32 s{sT0}, s{sT0}, s{sKVO}")
        e(f"s_add_u32 s{sT0+2}, s{sT0}, {VF}"); e(f"s_add_u32 s{sT0}, s{sT0}, {KF}")
        e(f"s_lshl_b32 s{sT0+1}, s{sW}, 12")
        e(f"s_add_u32 m0, s{sT0+1}, {L_KST + zz*2048}"); e("s_nop 0")
        e(f"buffer_load_dwordx4 v{vL16}, {srd(sWS)}, s{sT0} offen sc1 lds")
        e(f"buffer_load_dwordx4 v{vL16}, {srd(sWS)}, s{sT0} offen offset:1024 sc1 lds")
        e(f"s_add_u32 m0, s{sT0+1}, {L_VST + zz*2048}"); e("s_nop 0")
        e(f"buffer_load_dwordx4 v{vL16}, {srd(sWS)}, s{sT0+2} offen sc1 lds")
        e(f"buffer_load_dwordx4 v{vL16}, {srd(sWS)}, s{sT0+2} offen offset:1024 sc1 lds")
    a.lab(Lnokv)
    e("s_waitcnt vmcnt(0) lgkmcnt(0)")
    e("s_barrier")
    e("s_branch L_p2")

    a.lab("L_pro_helper")
    fstamp("start")
    def l2_prefetch(srd_reg, bytes_per_wg, per_wave, dst=48, base=0):
        e(f"s_lshr_b32 s{sT0}, s2, 3"); e(f"s_mul_i32 s{sT0}, s{sT0}, {bytes_per_wg}")
        e(f"s_sub_u32 s{sT0+1}, s{sW}, 4"); e(f"s_mul_i32 s{sT0+1}, s{sT0+1}, {per_wave*1024}")
        e(f"s_add_u32 s{sT0}, s{sT0}, s{sT0+1}")
        if base: e(f"s_add_u32 s{sT0}, s{sT0}, {base}")
        for k in range(per_wave):
            if k and k % 4 == 0: e(f"s_add_u32 s{sT0}, s{sT0}, 4096")
            e(f"buffer_load_dwordx4 v[{dst}:{dst+3}], v{vL16}, {srd(srd_reg)}, s{sT0} offen offset:{(k%4)*1024}")
    if args.pf0:
        l2_prefetch(sWQ, 49152, 12)
        e("s_waitcnt vmcnt(0)")
    dma_wqkv(0, 16)
    fstamp("hissued")
    Lreg = a.new("L_noreg"); Lnl = a.new("L_noleader"); Lnn = a.new("L_nononce")
    e(f"s_cmp_lg_u32 s{sW}, 4"); e(f"s_cbranch_scc1 {Lreg}")
    e(f"s_cmp_lg_u32 s2, 0"); e(f"s_cbranch_scc1 {Lnn}")
    e(f"s_memrealtime s[{sT0}:{sT0+1}]"); e("s_waitcnt lgkmcnt(0)")
    e(f"s_or_b32 s{sT0}, s{sT0}, 1")
    e(f"v_mov_b32 v4, s{sT0}"); e("v_mov_b32 v8, 0")
    e("s_mov_b64 exec, 1"); e(f"buffer_store_dword v4, v8, {srd(sDBG)}, 0 offen sc1"); e("s_mov_b64 exec, -1")
    a.lab(Lnn)
    e(f"s_cmp_lg_u32 s{sI}, 0"); e(f"s_cbranch_scc1 {Lnl}")
    e("v_mov_b32 v4, 0"); e(f"v_lshlrev_b32 v5, 2, v{vLANE}")
    e(f"buffer_store_dword v4, v5, {srd(sWS)}, s{sTEAM} offen sc1")
    a.lab(Lnl)
    vPK = 64
    voff_qkv(56, 59); voff_n64(57, 59); voff_n128(58, 59)
    e(f"s_lshr_b32 s{sT0}, s2, 4"); e(f"s_lshl_b32 s{sT0}, s{sT0}, 6")
    e(f"s_and_b32 s{sT0+1}, s2, 15"); e(f"s_mul_i32 s{sT0+1}, s{sT0+1}, 6")
    for k in range(6):
        e(f"s_add_u32 s{sT0+2}, s{sT0+1}, {k}")
        e(f"s_lshr_b32 s{sT0+3}, s{sT0+2}, 5"); e(f"s_lshl_b32 s{sT0+3}, s{sT0+3}, 10")
        e(f"s_and_b32 s{sT0+2}, s{sT0+2}, 31"); e(f"s_mul_i32 s{sT0+2}, s{sT0+2}, {16*3072}")
        e(f"s_add_u32 s{sT0+2}, s{sT0+2}, s{sT0+3}"); e(f"s_add_u32 s{sT0+2}, s{sT0+2}, s{sT0}")
        e(f"buffer_load_dwordx4 {V(vPK+4*k,4)}, v56, {srd(sWQ)}, s{sT0+2} offen")
    e(f"s_lshr_b32 s{sT0}, s2, 5"); e(f"s_lshl_b32 s{sT0}, s{sT0}, 7")
    e(f"s_and_b32 s{sT0+1}, s2, 31"); e(f"s_lshl_b32 s{sT0+2}, s{sT0+1}, 14"); e(f"s_add_u32 s{sT0+2}, s{sT0+2}, s{sT0}")
    e(f"buffer_load_dwordx4 {V(vPK+24,4)}, v57, {srd(sWO)}, s{sT0+2} offen")
    e(f"s_add_u32 s{sT0+2}, s{sT0+2}, 8192")
    e(f"buffer_load_dwordx4 {V(vPK+28,4)}, v57, {srd(sWO)}, s{sT0+2} offen")
    e(f"s_mul_i32 s{sT0+2}, s{sT0+1}, {7*8192}"); e(f"s_add_u32 s{sT0+2}, s{sT0+2}, s{sT0}")
    for k in range(7):
        e(f"buffer_load_dwordx4 {V(vPK+60+4*k,4)}, v57, {srd(sW2)}, s{sT0+2} offen")
        if k < 6: e(f"s_add_u32 s{sT0+2}, s{sT0+2}, 8192")
    e(f"s_mul_i32 s{sT0+1}, s2, 7")
    for k in range(7):
        e(f"s_add_u32 s{sT0+2}, s{sT0+1}, {k}")
        e(f"s_lshr_b32 s{sT0+3}, s{sT0+2}, 7"); e(f"s_lshl_b32 s{sT0+3}, s{sT0+3}, 8")
        e(f"s_and_b32 s{sT0+2}, s{sT0+2}, 127"); e(f"s_mul_i32 s{sT0+2}, s{sT0+2}, {4*3584}")
        e(f"s_add_u32 s{sT0+2}, s{sT0+2}, s{sT0+3}")
        e(f"buffer_load_dwordx4 {V(vPK+32+4*k,4)}, v58, {srd(sW1)}, s{sT0+2} offen")
    def pack_store():
        e("s_waitcnt vmcnt(0)")
        for (base, per, r0) in ((PKQ, 6, 0), (PKO, 2, 24), (PK1, 7, 32), (PK2, 7, 60)):
            e(f"s_mul_i32 s{sT0}, s2, {per*1024}"); e(f"s_add_u32 s{sT0}, s{sT0}, {base}")
            for k in range(per):
                if k == 4: e(f"s_add_u32 s{sT0}, s{sT0}, 4096")
                e(f"buffer_store_dwordx4 {V(vPK+r0+4*k,4)}, v{vL16}, {srd(sWS)}, s{sT0} offen offset:{(k%4)*1024} sc1")
    a.lab(Lreg)
    Lplain, Lc1 = a.new("L_plain"), a.new("L_c1")
    def l0_chunk(q, cs):
        Lsw = a.new("L_skipwait")
        e(f"s_cmp_eq_u32 s{sW}, 4"); e(f"s_cbranch_scc1 {Lsw}")
        e(f"s_waitcnt vmcnt({8 if q < 3 else 0})")
        a.lab(Lsw)
        fstamp(f"hc{q}"); e("s_barrier"); fstamp(f"hb{q}")
        if q < 2: dma_wqkv(8*(q+2), 8)
        if cs: colsum_chunk("qkv", 16, q == 0)
        if cs and q == 0:
            Lnp = a.new("L_nopack")
            e(f"s_cmp_lg_u32 s{sW}, 4"); e(f"s_cbranch_scc1 {Lnp}")
            pack_store()
            a.lab(Lnp)
        if cs and q == 2:
            Lnp = a.new("L_noregw")
            e(f"s_cmp_lg_u32 s{sW}, 4"); e(f"s_cbranch_scc1 {Lnp}")
            nonce_poll(4 + 50)
            e(f"s_add_u32 s{sT0}, s{sXCC}, 1")
            e(f"v_mov_b32 v56, s{sNONCE}"); e(f"v_mov_b32 v57, s{sT0}"); e("v_mov_b32 v58, 0")
            e(f"s_lshl_b32 s{sT0+1}, s{sB}, 4"); e(f"s_add_u32 s{sT0+1}, s{sT0+1}, s{sI}"); e(f"s_lshl_b32 s{sT0+1}, s{sT0+1}, 3")
            e(f"s_add_u32 s{sT0+1}, s{sT0+1}, {REGA}")
            e("s_mov_b64 exec, 1")
            e(f"buffer_store_dwordx2 v[56:57], v58, {srd(sWS)}, s{sT0+1} offen sc1")
            e("s_mov_b64 exec, -1")
            a.lab(Lnp)
    e(f"s_cmp_eq_u32 s{sW}, 7"); e(f"s_cbranch_scc1 {Lplain}")
    colsum_init("qkv"); pass
    for q in range(4): l0_chunk(q, True)
    colsum_fin("qkv"); pass
    e(f"s_branch {Lc1}")
    a.lab(Lplain)
    for q in range(4): l0_chunk(q, False)
    a.lab(Lc1)
    e("s_barrier")
    if STOP == 1:
        e("s_barrier"); e("s_branch L_end")
    Lnr = a.new("L_noreg2")
    e(f"s_cmp_lg_u32 s{sW}, 4"); e(f"s_cbranch_scc1 {Lnr}")
    e(f"s_mov_b32 s{sTGT}, 1")
    e(f"v_lshlrev_b32 v4, 3, v{vLANE}")
    for r in range(4):
        e(f"s_mov_b32 s{sT0}, {REGA + r*512}")
        poll64(4, sT0, sTGT, 6, sleep=16)
    e(f"v_and_b32 v4, 15, v{vLANE}"); e(f"v_lshlrev_b32 v4, 3, v4")
    e(f"s_lshl_b32 s{sT0}, s{sB}, 7"); e(f"s_add_u32 s{sT0}, s{sT0}, {REGA}")
    e(f"v_mov_b32 v7, 0")
    poll64(4, sT0, sTGT, 6, sleep=2)
    e(f"s_add_u32 s{sT0}, s{sXCC}, 1")
    e(f"v_cmp_ne_u32 vcc, s{sT0}, v7")
    e(f"s_cmp_eq_u64 vcc, 0"); e(f"s_cselect_b32 s{sMODE}, 1, 0")
    if args.slow: e(f"s_mov_b32 s{sMODE}, 0")
    e(f"v_mov_b32 v5, s{sMODE}"); e(f"v_mov_b32 v4, {L_MODE}")
    e("ds_write_b32 v4, v5"); e("s_waitcnt lgkmcnt(0)")
    a.lab(Lnr)
    e("s_barrier")
    e("s_branch L_p2")
    a.lab("L_p1_helper_l1")
    e("s_waitcnt vmcnt(0)"); e("s_barrier")
    dma_wqkv_packed(8, 24)
    for q in range(1, 4):
        e(f"s_waitcnt vmcnt({24-8*q})"); e("s_barrier")
    e("s_barrier")
    e("s_barrier")

    a.lab("L_p2")
    if args.prio and args.prio2 >= 0: e(f"s_setprio {args.prio2}")
    fstamp("p2start")
    vQ = 4; vK = 8; vV = 44; vS = 60; vP = 108; vO = 116; vCb = 132; vMB = 148; vM = 156
    vAK, vAV, vAQ, vWO, vW1 = 158, 159, 160, 161, 162
    e(f"v_mov_b32 v{vAQ}, {L_MODE}"); e(f"ds_read_b32 v{vM}, v{vAQ}")
    e(f"s_and_b32 s{sT0}, s{sW}, 3"); e(f"s_lshr_b32 s{sT0+1}, s{sW}, 2")
    e(f"s_lshl_b32 s{sN}, s{sB}, 2"); e(f"s_add_u32 s{sN}, s{sN}, s{sT0}"); e(f"s_add_u32 s{sN}, s{sN}, 1"); e(f"s_min_u32 s{sN}, s{sN}, 9")
    e(f"s_lshl_b32 s{sT0+2}, s{sT0}, 11"); e(f"s_lshl_b32 s{sT0+3}, s{sT0+1}, 10"); e(f"s_add_u32 s{sT0+4}, s{sT0+2}, s{sT0+3}")
    e(f"v_add_u32 v{vAK}, s{sT0+4}, v{vL16}")
    e(f"s_lshl_b32 s{sT0+3}, s{sT0+1}, 8"); e(f"s_add_u32 s{sT0+4}, s{sT0+2}, s{sT0+3}")
    e(f"v_add_u32 v{vAV}, s{sT0+4}, v{vL16}")
    e(f"ds_read_b128 {V(vQ,4)}, v{vAK} offset:{L_QST}")
    for j in range(9): e(f"ds_read_b128 {V(vK+4*j,4)}, v{vAK} offset:{L_KST + (8-j)*2048}")
    e(f"v_add_u32 v{vAQ}, {L_MD}, v{vL16}")
    for g in range(4): e(f"ds_read_b128 {V(vS+4*g,4)}, v{vAQ} offset:{g*1024}")
    for g in range(2): e(f"ds_read_b128 {V(vMB+4*g,4)}, v{vAQ} offset:{8192+g*1024}")
    e(f"s_and_b32 s{sT0+5}, s{sI}, 7"); e(f"s_lshl_b32 s{sT0+5}, s{sT0+5}, 16")
    e(f"s_lshl_b32 s{sT0+6}, s{sW}, 13"); e(f"s_add_u32 s{sT0+5}, s{sT0+5}, s{sT0+6}"); e(f"s_add_u32 s{sT0+5}, s{sT0+5}, {PKO}")
    e(f"s_add_u32 m0, s{sT0+6}, {L_WO}")
    e(f"s_min_u32 s{sW1S}, s{sI}, 13"); e(f"s_lshl_b32 s{sW1S}, s{sW1S}, 17"); e(f"s_lshl_b32 s{sT0+6}, s{sW}, 14")
    e(f"s_add_u32 s{sW1S}, s{sW1S}, s{sT0+6}"); e(f"s_add_u32 s{sW1S}, s{sW1S}, {PK1}")
    def wo_dma():
        e(f"buffer_load_dwordx4 v{vL16}, {srd(sWS)}, s{sT0+5} offen sc1 lds")
        e(f"s_add_u32 m0, m0, 1024"); e(f"s_add_u32 s{sT0+5}, s{sT0+5}, 1024")
    def w1_load(k):
        if k and k % 4 == 0: e(f"s_add_u32 s{sW1S}, s{sW1S}, 4096")
        e(f"buffer_load_dwordx4 {V(vSTG+4*k,4)}, v{vL16}, {srd(sWS)}, s{sW1S} offen offset:{(k%4)*1024} sc1")
    for r in range(16): e(f"v_mov_b32 v{vV+r}, 0x3f803f80")
    e("s_waitcnt lgkmcnt(0)")
    e(f"v_readfirstlane_b32 s{sMODE}, v{vM}")
    e(f"v_mov_b32 v{vM}, {NEG:#x}")
    def Sb(j): return vS + 16*(j % 3)
    def smfma(j, c): e(f"{MF} {V(Sb(j),16)}, {V(vK+4*j,4)}, {V(vQ,4)}, {c}")
    def vread(j):
        Vb = vV + 8*(j % 2)
        e(f"s_mov_b64 exec, {sp(sM16)}")
        e(f"ds_read_b128 {V(Vb,4)}, v{vAV} offset:{L_VST + (8-j)*2048}")
        e(f"ds_read_b128 {V(Vb+4,4)}, v{vAV} offset:{L_VST + (8-j)*2048 + 1024}")
        e("s_mov_b64 exec, -1")
    def mf_read(j):
        for g in range(4): e(f"ds_read_b128 {V(Sb(j)+4*g,4)}, v{vAQ} offset:{4096+g*1024}")
    def maxes(j):
        for k in range(8): e(f"v_max3_f32 v{vM}, v{Sb(j)+2*k}, v{Sb(j)+2*k+1}, v{vM}")
    def finish_max():
        e(f"v_mov_b32 v{vM+1}, v{vM}"); a.nop(2)
        e(f"v_permlane32_swap_b32 v{vM+1}, v{vM}"); a.nop(1)
        e(f"v_max_f32 v{vM}, v{vM}, v{vM+1}")
        e(f"v_sub_f32 v{vM}, 0, v{vM}")
        for r in range(16): e(f"v_mov_b32 v{vCb+r}, v{vM}")
        a.nop(2)
    def tile2(j, first):
        S = Sb(j); Vb = vV + 8*(j % 2)
        for r in range(8): e(f"v_exp_f32 v{S+r}, v{S+r}")
        for d in range(4): e(f"v_cvt_pk_bf16_f32 v{vP+d}, v{S+2*d}, v{S+2*d+1}")
        if j == 0:
            for d in range(4): e(f"v_and_b32 v{vP+d}, v{vP+d}, v{vMB+d}")
        if j == 8:
            for d in range(4): e(f"v_bfi_b32 v{vP+d}, v{vMB+d}, 0, v{vP+d}")
        for r in range(8, 16): e(f"v_exp_f32 v{S+r}, v{S+r}")
    def tile2b(j, first):
        S = Sb(j); Vb = vV + 8*(j % 2)
        e(f"{MF} {V(vO,16)}, {V(Vb,4)}, {V(vP,4)}, {'0' if first else V(vO,16)}")
        for d in range(4, 8): e(f"v_cvt_pk_bf16_f32 v{vP+d}, v{S+2*d}, v{S+2*d+1}")
        if j == 0:
            for d in range(4, 8): e(f"v_and_b32 v{vP+d}, v{vP+d}, v{vMB+d}")
        if j == 8:
            for d in range(4, 8): e(f"v_bfi_b32 v{vP+d}, v{vMB+d}, 0, v{vP+d}")
        a.nop(2)
        e(f"{MF} {V(vO,16)}, {V(Vb+4,4)}, {V(vP+4,4)}, {V(vO,16)}")

    Lgen, Lfin = a.new("L_att_gen"), a.new("L_att_fin")
    e(f"s_cmp_lt_u32 s{sN}, 9"); e(f"s_cbranch_scc1 {Lgen}")
    bg = [("wo", k) for k in range(8)] + [("w1", k) for k in range(16)]
    if args.bgorder == 1: bg = [("w1", k) for k in range(16)] + [("wo", k) for k in range(8)]
    if args.nobg == 1: bg = []
    if args.nobg == 2: bg = [x for x in bg if x[0] == "wo"]
    if args.nobg == 3: bg = [x for x in bg if x[0] == "w1"]
    def bg_issue(n):
        for _ in range(n):
            if bg:
                kind, k = bg.pop(0)
                wo_dma() if kind == "wo" else w1_load(k)
    for j in range(11):
        if j <= 8:
            if j == 8: e("s_waitcnt lgkmcnt(0)")
            smfma(j, V(Sb(j), 16) if j in (0, 8) else "0")
        bg_issue(args.bg1)
        if j == 2: a.nop(10)
        if j >= 2: maxes(j - 2)
        if j == 7: mf_read(8)
    finish_max()
    smfma(0, V(vCb,16)); smfma(1, V(vCb,16)); vread(0)
    a.nop(10)
    for j in range(9):
        if j + 2 <= 8: smfma(j + 2, V(vCb,16))
        if j + 1 <= 8: vread(j + 1)
        bg_issue(args.bg2)
        tile2(j, j == 0)
        e(f"s_waitcnt lgkmcnt({2 if j < 8 else 0})")
        tile2b(j, j == 0)
    bg_issue(len(bg))
    e(f"s_branch {Lfin}")
    a.lab(Lgen)
    for k in range(8): wo_dma()
    for k in range(16): w1_load(k)
    Lp1 = a.new("L_p1done")
    for j in range(8):
        smfma(j, V(Sb(j), 16) if j == 0 else "0")
        a.nop(14)
        maxes(j)
        e(f"s_cmp_le_u32 s{sN}, {j+1}"); e(f"s_cbranch_scc1 {Lp1}")
    a.lab(Lp1)
    finish_max()
    Lp2 = a.new("L_p2done")
    for j in range(8):
        smfma(j, V(vCb,16)); vread(j)
        a.nop(12)
        tile2(j, j == 0)
        e("s_waitcnt lgkmcnt(0)")
        tile2b(j, j == 0)
        e(f"s_cmp_le_u32 s{sN}, {j+1}"); e(f"s_cbranch_scc1 {Lp2}")
    a.lab(Lp2)
    a.lab(Lfin)
    a.nop(14)
    e(f"v_rcp_f32 v{vM}, v{vO+8}"); a.nop(1)
    for r in range(8): e(f"v_mul_f32 v{vO+r}, v{vO+r}, v{vM}")
    for d in range(4): e(f"v_cvt_pk_bf16_f32 v{vP+d}, v{vO+2*d}, v{vO+2*d+1}")
    e(f"s_and_b32 s{sT0}, s{sW}, 3"); e(f"s_lshr_b32 s{sT0+1}, s{sW}, 2")
    e(f"s_lshl_b32 s{sT0+2}, s{sB}, 2"); e(f"s_add_u32 s{sT0+2}, s{sT0+2}, s{sT0}"); e(f"s_lshl_b32 s{sT0+2}, s{sT0+2}, 15")
    e(f"s_lshl_b32 s{sT0+3}, s{sI}, 11"); e(f"s_add_u32 s{sT0+2}, s{sT0+2}, s{sT0+3}")
    e(f"s_lshl_b32 s{sT0+3}, s{sT0+1}, 10"); e(f"s_add_u32 s{sT0+2}, s{sT0+2}, s{sT0+3}")
    e(f"s_add_u32 s{sT0+2}, s{sT0+2}, {OF}")
    moded(lambda fl: e(f"buffer_store_dwordx4 {V(vP,4)}, v{vL16}, {srd(sWS)}, s{sT0+2} offen{fl}"))
    fstamp("p2pre")
    e("s_waitcnt vmcnt(0)")
    e("s_barrier")
    fstamp("p2end")
    if args.prio and args.prio2 >= 0: e("s_setprio 0")
    e(f"s_cmp_ge_u32 s{sW}, 4"); e("s_cbranch_scc1 L_p3_helper")
    if args.prio: e(f"s_setprio {args.prio}")
    team_signal(1, 4)
    e(f"s_lshl_b32 s{sT0}, s{sW}, 14"); e(f"v_add_u32 v6, s{sT0}, v{vL16}")
    for k in range(16): e(f"ds_write_b128 v6, {V(vSTG+4*k,4)} offset:{k*1024}")
    if STOP == 2:
        e("s_waitcnt vmcnt(0) lgkmcnt(0)"); e("s_branch L_end")

    def n64_bases(vmine, vother, lds_base_sreg):
        tr_base_common(vmine, vother, 6)
        e(f"v_bfe_u32 v6, v{vmine}, 1, 1")
        e(f"v_lshl_add_u32 v{vother}, v{vmine}, 7, v{vother}")
        e(f"s_lshr_b32 s{sT0+3}, s{sW}, 1")
        e(f"v_xor_b32 v6, s{sT0+3}, v6")
        e(f"v_lshl_add_u32 v{vmine}, v6, 6, v{vother}")
        e(f"v_xor_b32 v6, 1, v6")
        e(f"v_lshl_add_u32 v{vother}, v6, 6, v{vother}")
        e(f"v_add_u32 v{vmine}, s{lds_base_sreg}, v{vmine}")
        e(f"v_add_u32 v{vother}, s{lds_base_sreg}, v{vother}")
    def unpack_res(dst, bias):
        for d in range(8):
            e(f"v_lshlrev_b32 v{dst+2*d}, 16, v{vRES+d}")
            e(f"v_and_b32 v{dst+2*d+1}, 0xffff0000, v{vRES+d}")
        if bias is not None:
            for p in range(8): e(f"v_pk_add_f32 {V(dst+2*p,2)}, {V(dst+2*p,2)}, {V(bias+2*p,2)}")

    def exchange_and_epilogue(is_p5):
        accM, accO = 16, 32
        nm = "p5" if is_p5 else "p3"
        a.nop(12)
        e(f"s_lshl_b32 s{sT0}, s{sW}, 12"); e(f"s_add_u32 s{sT0}, s{sT0}, {L_EX}")
        e(f"v_add_u32 v6, s{sT0}, v{vL16}")
        for q in range(4): e(f"ds_write_b128 v6, {V(accO+4*q,4)} offset:{q*1024}")
        tile_ids()
        e(f"s_lshl_b32 s{sT0}, s{sT0+4}, 15")
        e(f"s_and_b32 s{sT0+1}, s{sI}, 7"); e(f"s_lshl_b32 s{sT0+2}, s{sT0+1}, 12"); e(f"s_add_u32 s{sT0}, s{sT0}, s{sT0+2}")
        e(f"s_lshl_b32 s{sT0+2}, s{sT0+3}, 11"); e(f"s_add_u32 s{sT0}, s{sT0}, s{sT0+2}")
        e(f"s_add_u32 s{sT0}, s{sT0}, {XF if is_p5 else X2F}")
        e(f"s_lshl_b32 s{sT0+5}, s{sT0+4}, 12")
        e(f"s_lshl_b32 s{sT0+2}, s{sT0+1}, 9"); e(f"s_add_u32 s{sT0+5}, s{sT0+5}, s{sT0+2}")
        e(f"s_lshl_b32 s{sT0+2}, s{sT0+3}, 8"); e(f"s_add_u32 s{sT0+5}, s{sT0+5}, s{sT0+2}")
        e(f"s_add_u32 s{sT0+5}, s{sT0+5}, {ST1 if is_p5 else ST2}")
        e(f"s_xor_b32 s{sT0+6}, s{sW}, 2"); e(f"s_lshl_b32 s{sT0+6}, s{sT0+6}, 12"); e(f"s_add_u32 s{sT0+6}, s{sT0+6}, {L_EX}")
        e(f"v_add_u32 v7, s{sT0+6}, v{vL16}")
        e(f"v_and_b32 v10, 31, v{vLANE}"); e(f"v_lshlrev_b32 v10, 3, v10")
        e("s_waitcnt lgkmcnt(0)")
        e("s_barrier")
        fstamp(nm + "x")
        for q in range(4): e(f"ds_read_b128 {V(accO+4*q,4)}, v7 offset:{q*1024}")
        for q in range(4):
            e(f"s_waitcnt lgkmcnt({3-q})")
            e(f"v_pk_add_f32 {V(accM+4*q,2)}, {V(accM+4*q,2)}, {V(accO+4*q,2)}")
            e(f"v_pk_add_f32 {V(accM+4*q+2,2)}, {V(accM+4*q+2,2)}, {V(accO+4*q+2,2)}")
        for d in range(8): e(f"v_cvt_pk_bf16_f32 v{vRES+d}, v{accM+2*d}, v{accM+2*d+1}")
        def st_data(fl):
            e(f"buffer_store_dwordx4 {V(vRES,4)}, v{vL16}, {srd(sWS)}, s{sT0} offen{fl}")
            e(f"buffer_store_dwordx4 {V(vRES+4,4)}, v{vL16}, {srd(sWS)}, s{sT0} offen offset:1024{fl}")
        def stats():
            e(f"v_pk_mul_f32 {V(32,2)}, {V(accM,2)}, {V(accM,2)}")
            e(f"v_pk_add_f32 {V(34,2)}, {V(accM,2)}, {V(accM+2,2)}")
            e(f"v_pk_fma_f32 {V(32,2)}, {V(accM+2,2)}, {V(accM+2,2)}, {V(32,2)}")
            for p in range(2, 8):
                e(f"v_pk_add_f32 {V(34,2)}, {V(34,2)}, {V(accM+2*p,2)}")
                e(f"v_pk_fma_f32 {V(32,2)}, {V(accM+2*p,2)}, {V(accM+2*p,2)}, {V(32,2)}")
            e("v_add_f32 v8, v34, v35"); e("v_add_f32 v9, v32, v33")
            e("v_mov_b32 v12, v8"); e("v_mov_b32 v13, v9"); a.nop(2)
            e("v_permlane32_swap_b32 v12, v8"); e("v_permlane32_swap_b32 v13, v9"); a.nop(1)
            e(f"v_pk_add_f32 {V(8,2)}, {V(8,2)}, {V(12,2)}")
        def st_stats(fl):
            e(f"s_mov_b64 exec, {sp(sM32)}")
            e(f"buffer_store_dwordx2 v[8:9], v10, {srd(sWS)}, s{sT0+5} offen{fl}")
            e("s_mov_b64 exec, -1")
        def normal(delta):
            moded(st_data); stats(); moded(st_stats)
            fstamp(nm + "pre")
            e("s_waitcnt vmcnt(0)")
            fstamp(nm + "drain")
            team_signal(delta, 4)
        if is_p5:
            Lf, Lj = a.new("L_final"), a.new("L_fj")
            e(f"s_cmp_eq_u32 s{sL}, 1"); e(f"s_cbranch_scc1 {Lf}")
            normal(4)
            e(f"s_branch {Lj}")
            a.lab(Lf)
            e(f"v_and_b32 v10, 31, v{vLANE}"); e(f"v_lshlrev_b32 v10, 10, v10")
            e(f"v_lshrrev_b32 v11, 5, v{vLANE}"); e(f"v_lshl_add_u32 v10, v11, 3, v10")
            e(f"s_lshl_b32 s{sT0}, s{sT0+4}, 15")
            e(f"s_lshl_b32 s{sT0+2}, s{sT0+1}, 7"); e(f"s_add_u32 s{sT0}, s{sT0}, s{sT0+2}")
            e(f"s_lshl_b32 s{sT0+2}, s{sT0+3}, 6"); e(f"s_add_u32 s{sT0}, s{sT0}, s{sT0+2}")
            for g in range(4):
                e(f"buffer_store_dwordx2 {V(vRES+2*g,2)}, v10, {srd(sOUT)}, s{sT0} offen offset:{g*16}")
            e("s_branch L_end")
            a.lab(Lj)
        else:
            normal(2)

    unpack_res(48, None)
    e("s_waitcnt lgkmcnt(0)")
    team_wait(1, 4)
    fstamp("p3poll")
    tile_ids()
    e(f"s_lshl_b32 s{sT0+2}, s{sT0+3}, 4")
    x_setup(OF, 32, sT0+2, sT0+4)
    for k in range(XA): x_load(k, 64 + 4*k)
    e(f"s_lshl_b32 s{sT0+8}, s{sT0+3}, 15"); e(f"s_add_u32 s{sT0+8}, s{sT0+8}, {L_WO}")
    n64_bases(4, 5, sT0+8)
    vWf = 128
    def wread3(s):
        dst = vWf + 8*(s % 3); off = s*2048
        e(f"ds_read_b64_tr_b16 {V(dst,2)}, v4 offset:{off}"); e(f"ds_read_b64_tr_b16 {V(dst+2,2)}, v4 offset:{off+1024}")
        e(f"ds_read_b64_tr_b16 {V(dst+4,2)}, v5 offset:{off}"); e(f"ds_read_b64_tr_b16 {V(dst+6,2)}, v5 offset:{off+1024}")
    wread3(0); wread3(1)
    for s in range(16):
        e(f"s_waitcnt vmcnt({min(XA, 16-s)-1})")
        if s == 0: fstamp("p3x0")
        if s + XA < 16: x_load(s + XA, 64 + 4*(s + XA))
        if s + 2 < 16: wread3(s + 2)
        e(f"s_waitcnt lgkmcnt({4*min(2, 15-s)})")
        w = vWf + 8*(s % 3); x = 64 + 4*s
        e(f"{MF} v[16:31], {V(w,4)}, {V(x,4)}, {'v[48:63]' if s == 0 else 'v[16:31]'}")
        e(f"{MF} v[32:47], {V(w+4,4)}, {V(x,4)}, {'0' if s == 0 else 'v[32:47]'}")
    fstamp("p3main")
    exchange_and_epilogue(False)
    if STOP == 3:
        e("s_waitcnt vmcnt(0) lgkmcnt(0)"); e("s_branch L_end")
    e("s_branch L_p4_compute")

    a.lab("L_p3_helper")
    if STOP == 2: e("s_branch L_end")
    e("s_barrier")
    if STOP == 3: e("s_branch L_end")
    e(f"s_lshl_b32 s{sT0}, s{sW}, 14"); e(f"v_add_u32 v6, s{sT0}, v{vL16}")
    for k in range(16): e(f"ds_write_b128 v6, {V(vSTG+4*k,4)} offset:{k*1024}")
    e(f"s_sub_u32 s{sT0}, s{sW}, 4")
    e(f"s_lshr_b32 s{sT0+1}, s{sT0}, 1"); e(f"s_and_b32 s{sT0+2}, s{sT0}, 1")
    e(f"s_mul_i32 s{sW1S}, s{sT0+1}, {112*1024}"); e(f"s_lshl_b32 s{sT0+4}, s{sT0+2}, 13"); e(f"s_add_u32 s{sW1S}, s{sW1S}, s{sT0+4}")
    e(f"s_and_b32 s{sT0+4}, s{sI}, 7"); e(f"s_mul_i32 s{sT0+4}, s{sT0+4}, {224*1024}"); e(f"s_add_u32 s{sW1S}, s{sW1S}, s{sT0+4}")
    e(f"s_add_u32 s{sW1S}, s{sW1S}, {PK2}")
    e("s_waitcnt lgkmcnt(0)")
    e("s_barrier")
    def w2_load(q, k, sleep=0):
        e(f"buffer_load_dwordx4 {V(16+32*q+4*k,4)}, v{vL16}, {srd(sWS)}, s{sW1S} offen offset:{(k%4)*1024} sc1")
        if k == 3: e(f"s_add_u32 s{sW1S}, s{sW1S}, 4096")
        if k == 7: e(f"s_add_u32 s{sW1S}, s{sW1S}, {16*1024 - 4096}")
        if sleep: e(f"s_sleep {sleep}")
    Lcs, Lw2d = a.new("L_cs4"), a.new("L_w2done")
    e(f"s_cmp_lg_u32 s{sL}, 0"); e(f"s_cbranch_scc1 {Lcs}")
    colsum_init("n128"); pass
    for q in range(4): colsum_chunk("n128", 208, q == 0, extra=lambda k, q=q: w2_load(q, k, args.w2sleep))
    colsum_fin("n128"); pass
    e("s_barrier")
    for q in range(4, 7):
        for k in range(8): w2_load(q, k, args.w2sleep)
    e(f"s_branch {Lw2d}")
    a.lab(Lcs)
    for q in range(7):
        for k in range(8): w2_load(q, k, args.w2sleep)
    a.lab(Lw2d)
    if args.pfq:
        Lnq = a.new("L_nopfq")
        e(f"s_cmp_eq_u32 s{sL}, 1"); e(f"s_cbranch_scc1 {Lnq}")
        l2_prefetch(sWS, 49152, 12, dst=244, base=PKQ)
        a.lab(Lnq)
    e("s_barrier")
    if STOP == 4: e("s_branch L_end")
    e(f"s_sub_u32 s{sT0}, s{sW}, 4"); e(f"s_lshl_b32 s{sT0}, s{sT0}, 13"); e(f"v_add_u32 v6, s{sT0}, v{vL16}")
    e("v_add_u32 v7, 65536, v6")
    for q in range(7):
        if args.pfq:
            La, Lb = a.new("L_wa"), a.new("L_wb")
            e(f"s_cmp_eq_u32 s{sL}, 1"); e(f"s_cbranch_scc1 {La}")
            e(f"s_waitcnt vmcnt({8*(6-q) + 12})"); e(f"s_branch {Lb}")
            a.lab(La); e(f"s_waitcnt vmcnt({8*(6-q)})"); a.lab(Lb)
        else:
            e(f"s_waitcnt vmcnt({8*(6-q)})")
        slot = (q % 4) * 32768
        for k in range(8):
            if args.p5now: break
            e(f"ds_write_b128 v{6 if slot < 65536 else 7}, {V(16+32*q+4*k,4)} offset:{slot % 65536 + k*1024}")
        e("s_waitcnt lgkmcnt(0)")
        e("s_barrier")
    e("s_barrier")
    e(f"s_cmp_eq_u32 s{sL}, 1"); e("s_cbranch_scc1 L_end")
    if STOP == 5: e("s_branch L_end")
    dma_wqkv_packed(0, 8)
    e(f"s_mov_b32 s{sL}, 1"); e(f"s_mov_b32 s{sKVO}, {LSTRIDE}")
    e("s_branch L_p1_helper_l1")

    a.lab("L_p4_compute")
    Lidle, Lp4e = a.new("L_p4idle"), a.new("L_p4end")
    e(f"s_cmp_ge_u32 s{sI}, 14"); e(f"s_cbranch_scc1 {Lidle}")
    team_wait(2, 4)
    fstamp("p4poll")
    vX = 80; vAcc = 16; vWf = 208
    e(f"s_lshl_b32 s{sT0+4}, s{sB}, 2"); e(f"s_add_u32 s{sT0+4}, s{sT0+4}, s{sW}")
    load_stats(ST2, 232, 4, sT0+4)
    x_setup(X2F, 32, None, sT0+4)
    for k in range(XA): x_load(k, vX + 4*k)
    tr_base_common(4, 5, 6)
    e("v_lshl_add_u32 v5, v4, 8, v5"); e("v_and_b32 v8, 3, v4")
    for ft in range(4):
        e(f"v_xor_b32 v9, {ft}, v8"); e(f"v_lshl_add_u32 v{10+ft}, v9, 6, v5")
    vA, vB = 4, 6
    e(f"s_waitcnt vmcnt({XA})")
    reduce_partials(232); finish_stats(232, vA, vB)
    e(f"v_lshrrev_b32 v8, 5, v{vLANE}"); e("v_lshlrev_b32 v8, 4, v8"); e(f"v_add_u32 v8, {L_CS4}, v8")
    e(f"s_mul_i32 s{sT0}, s{sT0+4}, {112*1024}")
    e(f"s_lshl_b32 s{sT0+1}, s{sI}, 13"); e(f"s_add_u32 s{sT0}, s{sT0}, s{sT0+1}"); e(f"s_add_u32 s{sT0}, s{sT0}, {HF}")
    e("s_barrier")
    class Lg:
        n = 0
    def lds(instr):
        e(instr); Lg.n += 1; return Lg.n
    def lwait(k):
        e(f"s_waitcnt lgkmcnt({min(15, Lg.n - k)})")
    NS = 6; PRE = NS - 1
    seq = [(s, ft) for s in range(32) for ft in range(3)] + [(s, 3) for s in range(32)]
    rid = {}
    def slot4(n): return vWf + 4*(n % NS)
    bumped = set()
    def issue4(n):
        s, ft = seq[n]
        if s >= 16 and ft not in bumped:
            e(f"v_add_u32 v{10+ft}, 65536, v{10+ft}"); bumped.add(ft)
        off = (s % 16) * 4096; dst = slot4(n)
        lds(f"ds_read_b64_tr_b16 {V(dst,2)}, v{10+ft} offset:{off}")
        rid[n] = lds(f"ds_read_b64_tr_b16 {V(dst+2,2)}, v{10+ft} offset:{off+2048}")
    gid = {}
    def grp_reads(G):
        ft, g = divmod(G, 4); b = 232 + 8*(G % 2)
        lds(f"ds_read_b128 {V(b,4)}, v8 offset:{ft*128 + g*32}")
        gid[G] = lds(f"ds_read_b128 {V(b+4,4)}, v8 offset:{512 + ft*128 + g*32}")
    def store_tile(ft):
        acc = vAcc + 16*ft
        if ft == 2: e(f"s_add_u32 s{sT0}, s{sT0}, 4096")
        def st4(fl):
            e(f"buffer_store_dwordx4 {V(acc,4)}, v{vL16}, {srd(sWS)}, s{sT0} offen offset:{(ft%2)*2048}{fl}")
            e(f"buffer_store_dwordx4 {V(acc+4,4)}, v{vL16}, {srd(sWS)}, s{sT0} offen offset:{(ft%2)*2048+1024}{fl}")
        moded(st4)
    items = []
    for G in range(12):
        ft, g = divmod(G, 4); b = 232 + 8*(G % 2); acc = vAcc + 16*ft
        items.append(("wait", G))
        for i in range(4):
            r = acc + 4*g + i
            items.append(("v", f"v_fma_f32 v{r}, v{r}, v{vA}, v{b+4+i}"))
            items.append(("v", f"v_fma_f32 v{r}, -v{vB}, v{b+i}, v{r}"))
        items.append(("next", G + 2))
        for i in range(4):
            r = acc + 4*g + i
            items.append(("v", f"v_max_f32 v{r}, 0, v{r}"))
            items.append(("v", f"v_mul_f32 v{r}, v{r}, v{r}"))
        for dd in range(2):
            d = 2*g + dd
            items.append(("v", f"v_cvt_pk_bf16_f32 v{acc+d}, v{acc+2*d}, v{acc+2*d+1}"))
        if g == 3: items.append(("st", ft))
    nv = sum(1 for it in items if it[0] == "v")
    def run_items(budget):
        done = 0
        while items and done < budget:
            it = items.pop(0)
            if it[0] == "v": e(it[1]); done += 1
            elif it[0] == "wait": lwait(gid[it[1]])
            elif it[0] == "next":
                if it[1] < 16: grp_reads(it[1])
            elif it[0] == "st": store_tile(it[1])
    for n in range(PRE): issue4(n)
    for n, (s, ft) in enumerate(seq):
        passB = n >= 96
        if not passB and ft == 0:
            e(f"s_waitcnt vmcnt({min(XA, 32-s)-1})")
            if s == 0: fstamp("p4x0")
            if s + XA < 32: x_load(s + XA, vX + 4*(s + XA))
        if n == 96:
            fstamp("p4A")
            Lnb4 = a.new("L_nob4b")
            e(f"s_cmp_lg_u32 s{sL}, 0"); e(f"s_cbranch_scc1 {Lnb4}")
            e("s_barrier")
            a.lab(Lnb4)
            grp_reads(0); grp_reads(1)
        lwait(rid[n])
        acc = vAcc + 16*ft; x = vX + 4*s; w = slot4(n)
        e(f"{MF} {V(acc,16)}, {V(w,4)}, {V(x,4)}, {'0' if s == 0 else V(acc,16)}")
        if n + PRE < len(seq): issue4(n + PRE)
        if n == 96: a.nop(10)
        if passB and n > 96: run_items(7)
    run_items(10**6)
    fstamp("p4main")
    e("s_barrier")
    acc = vAcc + 48
    for G in range(12, 16):
        g = G - 12; b = 232 + 8*(G % 2)
        lwait(gid[G])
        if G == 12: a.nop(8)
        for p in range(2):
            r = acc + 4*g + 2*p
            e(f"v_pk_fma_f32 {V(r,2)}, {V(r,2)}, {V(vA,2)}, {V(b+4+2*p,2)} op_sel_hi:[1,0,1]")
            e(f"v_pk_fma_f32 {V(r,2)}, {V(b+2*p,2)}, {V(vB,2)}, {V(r,2)} op_sel_hi:[1,0,1] neg_lo:[0,1,0] neg_hi:[0,1,0]")
        if G + 2 < 16: grp_reads(G + 2)
        for p in range(2):
            r = acc + 4*g + 2*p
            e(f"v_max_f32 v{r}, 0, v{r}"); e(f"v_max_f32 v{r+1}, 0, v{r+1}")
            e(f"v_pk_mul_f32 {V(r,2)}, {V(r,2)}, {V(r,2)}")
        for dd in range(2):
            d = 2*g + dd
            e(f"v_cvt_pk_bf16_f32 v{acc+d}, v{acc+2*d}, v{acc+2*d+1}")
    store_tile(3)
    fstamp("p4pre")
    e("s_waitcnt vmcnt(0)")
    fstamp("p4drain")
    e(f"s_branch {Lp4e}")
    a.lab(Lidle)
    e("s_barrier")
    Lnb4i = a.new("L_nob4bi")
    e(f"s_cmp_lg_u32 s{sL}, 0"); e(f"s_cbranch_scc1 {Lnb4i}")
    e("s_barrier")
    a.lab(Lnb4i)
    e("s_barrier")
    a.lab(Lp4e)
    team_signal(3, 4)
    fstamp("p4flag")
    if STOP == 4:
        e("s_waitcnt vmcnt(0) lgkmcnt(0)"); e("s_branch L_end")

    e(f"v_lshrrev_b32 v7, 5, v{vLANE}"); e(f"v_lshlrev_b32 v7, 4, v7")
    e(f"s_lshr_b32 s{sT0}, s{sW}, 1"); e(f"s_lshl_b32 s{sT0}, s{sT0}, 7"); e(f"s_add_u32 s{sT0}, s{sT0}, {L_B2}")
    e(f"v_add_u32 v7, s{sT0}, v7")
    for g in range(4): e(f"ds_read_b128 {V(32+4*g,4)}, v7 offset:{g*32}")
    e("s_waitcnt lgkmcnt(0)")
    unpack_res(48, 32)
    fstamp("p5pp")
    team_wait(3, 4)
    if args.fine and "p5cnt" in args.fine.split(","):
        k = args.fine.split(",").index("p5cnt"); e(f"s_mov_b32 s{64+2*k}, s{sCNT}")
    fstamp("p5poll")
    tile_ids()
    e(f"s_mul_i32 s{sT0+2}, s{sT0+3}, 56")
    NX = args.xahead5
    x_setup(HF, 112, sT0+2, sT0+4)
    def x5(k):
        if args.p5nox and k >= NX: return
        x_load(k, 64 + 4*(k % NX))
    for k in range(NX): x5(k)
    e(f"s_lshl_b32 s{sT0+8}, s{sT0+3}, 14")
    n64_bases(4, 5, sT0+8)
    e("v_add_u32 v8, 65536, v4"); e("v_add_u32 v9, 65536, v5")
    vWf = 176
    def wread5(s):
        q, ss = divmod(s, 8); dst = vWf + 8*(s % 3); off = (q % 4)*32768 + ss*2048
        b0, b1 = (8, 9) if off >= 65536 else (4, 5); off %= 65536
        e(f"ds_read_b64_tr_b16 {V(dst,2)}, v{b0} offset:{off}"); e(f"ds_read_b64_tr_b16 {V(dst+2,2)}, v{b0} offset:{off+1024}")
        e(f"ds_read_b64_tr_b16 {V(dst+4,2)}, v{b1} offset:{off}"); e(f"ds_read_b64_tr_b16 {V(dst+6,2)}, v{b1} offset:{off+1024}")
    e("s_barrier")
    fstamp("p5B")
    wread5(0); wread5(1)
    for s in range(56):
        e(f"s_waitcnt vmcnt({min(56, s + NX) - s - 1})")
        if s + 2 < 56:
            if (s + 2) % 8 == 0: e("s_barrier")
            wread5(s + 2)
        e(f"s_waitcnt lgkmcnt({4*min(2, 55-s)})")
        w = vWf + 8*(s % 3); x = 64 + 4*(s % NX)
        e(f"{MF} v[16:31], {V(w,4)}, {V(x,4)}, {'v[48:63]' if s == 0 else 'v[16:31]'}")
        e(f"{MF} v[32:47], {V(w+4,4)}, {V(x,4)}, {'0' if s == 0 else 'v[32:47]'}")
        if s + NX < 56: x5(s + NX)
    fstamp("p5main")
    exchange_and_epilogue(True)
    if STOP == 5:
        e("s_waitcnt vmcnt(0) lgkmcnt(0)"); e("s_branch L_end")
    e(f"s_mov_b32 s{sL}, 1"); e(f"s_mov_b32 s{sKVO}, {LSTRIDE}")
    e("s_branch L_p1_l1")
    a.lab("L_end")
    if args.fine:
        n = len(args.fine.split(","))
        e("s_waitcnt lgkmcnt(0)")
        e("s_cmp_ge_u32 s2, 256"); e("s_cbranch_scc1 L_end2")
        e(f"s_lshl_b32 s98, s2, 3"); e(f"s_add_u32 s98, s98, s{sW}"); e(f"s_lshl_b32 s98, s98, 8"); e(f"s_add_u32 s98, s98, {STAMP}")
        e("v_mov_b32 v3, 0"); e("s_mov_b64 exec, 1")
        for k in range(n):
            e(f"v_mov_b32 v2, s{64+2*k}")
            e(f"buffer_store_dword v2, v3, {srd(sWS)}, s98 offen offset:{4*k}"); e("s_nop 1")
        a.lab("L_end2")
    e("s_endpgm")
    return a.text()

HEADER = """; Fused 2-layer (sliding-window attention + squared-ReLU MLP) megakernel for gfx950.
; @launch grid=(256,1,1) block=(512,1,1) lds=163840
.amdgcn_target "amdgcn-amd-amdhsa--gfx950"
.text
.globl {n}_kernel
.p2align 8
.type {n}_kernel,@function
{n}_kernel:
"""
FOOTER = """.section .rodata,"a"
.p2align 6
.amdhsa_kernel {n}_kernel
  .amdhsa_next_free_vgpr 256
  .amdhsa_next_free_sgpr 102
  .amdhsa_accum_offset 256
  .amdhsa_group_segment_fixed_size 0
  .amdhsa_kernarg_size 88
  .amdhsa_user_sgpr_count 2
  .amdhsa_user_sgpr_kernarg_segment_ptr 1
  .amdhsa_system_sgpr_workgroup_id_x 1
.end_amdhsa_kernel
"""
def parse(argv=None):
    ap = argparse.ArgumentParser()
    ap.add_argument("--stop", type=int, default=-1)
    ap.add_argument("--slow", action="store_true")
    ap.add_argument("--dbgq", action="store_true")
    ap.add_argument("--rt", action="store_true")
    ap.add_argument("--fine", default="")
    ap.add_argument("--xahead", type=int, default=8)
    ap.add_argument("--xahead0", type=int, default=12)
    ap.add_argument("--xahead5", type=int, default=12)
    ap.add_argument("--w2sleep", type=int, default=1)
    ap.add_argument("--nobg", type=int, default=0)
    ap.add_argument("--prio", type=int, default=0)
    ap.add_argument("--prio2", type=int, default=0)
    ap.add_argument("--p5nox", type=int, default=0)
    ap.add_argument("--p5now", type=int, default=0)
    ap.add_argument("--bg1", type=int, default=1)
    ap.add_argument("--bg2", type=int, default=2)
    ap.add_argument("--bgorder", type=int, default=0)
    ap.add_argument("--pf0", type=int, default=0)
    ap.add_argument("--pfq", type=int, default=1)
    ap.add_argument("-o", default="/dev/stdout")
    return ap.parse_args(argv)
if __name__ == "__main__":
    args = parse()
    open(args.o, "w").write(HEADER.format(n=NAME) + build(args) + FOOTER.format(n=NAME))
```

```python
import sys, argparse, struct

NAME = "interleave_layers__sliding_block__dense_activation_squared_relu__prompt"

CTRL = 0x0
C_KV  = 1024
REGA = 0x18000
STAMP= 0x20000
XF   = 0x100000
X2F  = 0x300000
OF   = 0x500000
ST1  = 0x700000
ST2  = 0x740000
KF   = 0x800000
VF   = 0xC00000
HF   = 0x1000000
LSTRIDE = 0x200000
PKQ  = 0x1800000
PKO  = 0x1A00000
PK1  = 0x1B00000
PK2  = 0x1D00000

L_KST  = 0
L_VST  = 24576
L_QST  = 49152
L_WO   = 65536
L_EX   = 131072
L_STA  = 147456
L_MD   = 151552
L_MF   = L_MD + 4096
L_MB   = L_MF + 4096
L_CS1  = L_MB + 2048
L_CS4  = L_CS1 + 512
L_B1   = L_CS4 + 512
L_B2   = L_B1 + 512
L_MODE = L_B2 + 256
LDS_BYTES = 163840
assert L_MODE + 16 <= LDS_BYTES

NEG = 0xF149F2CA
QSCALE = 0.25 * 1.4426950408889634
def f2u(f): return struct.unpack("<I", struct.pack("<f", f))[0]

sWS, sWQ, sWO, sW1, sW2, sX, sOUT, sDBG, sTS = 8, 12, 16, 20, 24, 28, 32, 36, 40
sB, sI, sW, sMODE, sL, sTEAM, sMYF, sFAIL = 44, 45, 46, 47, 48, 49, 50, 51
sT0 = 52
sKA = 64
sM16, sM32 = 86, 88
sTGT, sCNT, sXCC, sN, sKVO, sNONCE = 90, 91, 92, 93, 94, 95
sXS = 61
sW1S = 60
def srd(x): return f"s[{x}:{x+3}]"
def sp(x): return f"s[{x}:{x+1}]"
def V(a, n=1): return f"v{a}" if n == 1 else f"v[{a}:{a+n-1}]"

vLANE, vL16 = 0, 1
vRES = 248
vSTG = 180

class Asm:
    def __init__(self): self.l = []; self.uid = 0
    def e(self, s): self.l.append("  " + s)
    def lab(self, s): self.l.append(s + ":")
    def new(self, p="L"):
        self.uid += 1; return f"{p}_{self.uid}"
    def text(self): return "\n".join(self.l) + "\n"
    def nop(self, n):
        while n > 0:
            k = min(n, 16); self.e(f"s_nop {k-1}"); n -= k

def build(args):
    a = Asm(); e = a.e
    STOP = args.stop
    POLL_LIMIT = 1 << 18
    XA = args.xahead
    MF = "v_mfma_f32_32x32x16_bf16"

    def fstamp(name):
        if not args.fine or name not in args.fine.split(","): return
        k = args.fine.split(",").index(name)
        if name.endswith("cnt"): return
        e(f"s_memrealtime s[{64+2*k}:{65+2*k}]" if args.rt else f"s_memtime s[{64+2*k}:{65+2*k}]")

    def poll(voff, soff, tgt, vtmp, sleep=1):
        L = a.new("L_poll"); D = a.new("L_pdone")
        e(f"s_mov_b32 s{sCNT}, {POLL_LIMIT}")
        e(f"s_cmp_eq_u32 s{sFAIL}, 0"); e(f"s_cbranch_scc0 {D}")
        a.lab(L)
        e(f"buffer_load_dword v{vtmp}, v{voff}, {srd(sWS)}, s{soff} offen sc1")
        e("s_waitcnt vmcnt(0)")
        e(f"v_cmp_gt_u32 vcc, s{tgt}, v{vtmp}")
        e(f"s_cbranch_vccz {D}")
        if sleep: e(f"s_sleep {sleep}")
        e(f"s_sub_u32 s{sCNT}, s{sCNT}, 1"); e(f"s_cbranch_scc0 {L}")
        e(f"s_mov_b32 s{sFAIL}, 1")
        a.lab(D)

    def poll64(voff, soff, tgt, vtmp, sleep=2):
        L = a.new("L_poll"); D = a.new("L_pdone")
        e(f"s_mov_b32 s{sCNT}, {POLL_LIMIT}")
        e(f"s_cmp_eq_u32 s{sFAIL}, 0"); e(f"s_cbranch_scc0 {D}")
        a.lab(L)
        e(f"buffer_load_dwordx2 v[{vtmp}:{vtmp+1}], v{voff}, {srd(sWS)}, s{soff} offen sc1")
        e("s_waitcnt vmcnt(0)")
        e(f"v_subrev_u32 v{vtmp+2}, s{tgt}, v{vtmp+1}")
        e(f"v_cmp_ne_u32 vcc, s{sNONCE}, v{vtmp}")
        e(f"v_cmp_lt_u32 s[{sT0+10}:{sT0+11}], 31, v{vtmp+2}")
        e(f"s_or_b64 vcc, vcc, s[{sT0+10}:{sT0+11}]")
        e(f"s_cbranch_vccz {D}")
        if sleep: e(f"s_sleep {sleep}")
        e(f"s_sub_u32 s{sCNT}, s{sCNT}, 1"); e(f"s_cbranch_scc0 {L}")
        e(f"s_mov_b32 s{sFAIL}, 1")
        a.lab(D)

    def nonce_poll(v):
        L = a.new("L_npoll"); D = a.new("L_ndone")
        e(f"v_mov_b32 v{v}, 0")
        e(f"s_mov_b32 s{sCNT}, {POLL_LIMIT}")
        a.lab(L)
        e(f"buffer_load_dword v{v+1}, v{v}, {srd(sDBG)}, 0 offen sc1")
        e("s_waitcnt vmcnt(0)")
        e(f"v_readfirstlane_b32 s{sNONCE}, v{v+1}")
        e(f"s_cmp_lg_u32 s{sNONCE}, 0"); e(f"s_cbranch_scc1 {D}")
        e("s_sleep 2")
        e(f"s_sub_u32 s{sCNT}, s{sCNT}, 1"); e(f"s_cbranch_scc0 {L}")
        e(f"s_mov_b32 s{sFAIL}, 1")
        a.lab(D)

    def moded(fn):
        F = a.new("L_fast"); J = a.new("L_join")
        e(f"s_cmp_eq_u32 s{sMODE}, 1"); e(f"s_cbranch_scc1 {F}")
        fn(" sc1"); e(f"s_branch {J}")
        a.lab(F); fn(""); a.lab(J)

    def team_wait(delta, vt):
        e(f"s_lshl_b32 s{sTGT}, s{sL}, 2")
        e(f"s_add_u32 s{sTGT}, s{sTGT}, {delta}")
        e(f"v_lshlrev_b32 v{vt}, 2, v{vLANE}")
        poll(vt, sTEAM, sTGT, vt + 1, sleep=args.psleep)

    def team_signal(delta, vt):
        e(f"s_lshl_b32 s{sT0}, s{sL}, 2")
        e(f"s_add_u32 s{sT0}, s{sT0}, {delta}")
        e(f"v_mov_b32 v{vt}, s{sT0}"); e(f"v_mov_b32 v{vt+1}, 0")
        e("s_mov_b64 exec, 1")
        moded(lambda fl: e(f"buffer_store_dword v{vt}, v{vt+1}, {srd(sWS)}, s{sMYF} offen{fl}"))
        e("s_mov_b64 exec, -1")

    def tr_base_common(vrow, vcol, vt):
        e(f"v_lshrrev_b32 v{vrow}, 5, v{vLANE}")
        e(f"v_lshlrev_b32 v{vrow}, 2, v{vrow}")
        e(f"v_bfe_u32 v{vt}, v{vLANE}, 2, 2")
        e(f"v_add_u32 v{vrow}, v{vrow}, v{vt}")
        e(f"v_bfe_u32 v{vcol}, v{vLANE}, 4, 1")
        e(f"v_lshlrev_b32 v{vcol}, 5, v{vcol}")
        e(f"v_and_b32 v{vt}, 3, v{vLANE}")
        e(f"v_lshlrev_b32 v{vt}, 3, v{vt}")
        e(f"v_add_u32 v{vcol}, v{vcol}, v{vt}")

    def voff_qkv(v, vt):
        e(f"v_lshrrev_b32 v{v}, 2, v{vLANE}")
        e(f"v_mul_u32_u24 v{v}, 3072, v{v}")
        e(f"v_and_b32 v{vt}, 3, v{vLANE}")
        e(f"v_lshl_add_u32 v{v}, v{vt}, 4, v{v}")
    def voff_n64(v, vt):
        e(f"v_lshrrev_b32 v{v}, 3, v{vLANE}")
        e(f"v_lshlrev_b32 v{v}, 10, v{v}")
        e(f"v_lshrrev_b32 v{vt}, 2, v{vLANE}")
        e(f"v_lshrrev_b32 v{vt+1}, 4, v{vLANE}")
        e(f"v_xor_b32 v{vt}, v{vt}, v{vt+1}")
        e(f"v_and_b32 v{vt}, 1, v{vt}")
        e(f"v_lshl_add_u32 v{v}, v{vt}, 6, v{v}")
        e(f"v_and_b32 v{vt}, 3, v{vLANE}")
        e(f"v_lshl_add_u32 v{v}, v{vt}, 4, v{v}")
    def voff_n128(v, vt):
        e(f"v_lshrrev_b32 v{v}, 4, v{vLANE}")
        e(f"v_bfe_u32 v{vt}, v{vLANE}, 2, 2")
        e(f"v_xor_b32 v{vt}, v{vt}, v{v}")
        e(f"v_mul_u32_u24 v{v}, 3584, v{v}")
        e(f"v_lshl_add_u32 v{v}, v{vt}, 6, v{v}")
        e(f"v_and_b32 v{vt}, 3, v{vLANE}")
        e(f"v_lshl_add_u32 v{v}, v{vt}, 4, v{v}")

    def dma_loop(srd_reg, voff, soff_reg, soff_step, lds_step, count, sleep=0):
        L = a.new("L_dma")
        e(f"s_mov_b32 s{sCNT}, {count}")
        a.lab(L)
        e(f"buffer_load_dwordx4 v{voff}, {srd(srd_reg)}, s{soff_reg} offen lds")
        if sleep: e(f"s_sleep {sleep}")
        e(f"s_add_u32 m0, m0, {lds_step}")
        e(f"s_add_u32 s{soff_reg}, s{soff_reg}, {soff_step}")
        e(f"s_sub_u32 s{sCNT}, s{sCNT}, 1"); e(f"s_cmp_lg_u32 s{sCNT}, 0"); e(f"s_cbranch_scc1 {L}")

    def dma_wqkv(first, count):
        S = a.new("L_skip")
        e(f"s_cmp_lt_u32 s{sW}, 5"); e(f"s_cbranch_scc1 {S}")
        voff_qkv(2, 3)
        e(f"s_sub_u32 s{sT0}, s{sW}, 5")
        e(f"s_lshl_b32 s{sT0+1}, s{sT0}, 10")
        e(f"s_lshl_b32 s{sT0+2}, s{sI}, 6")
        e(f"s_add_u32 s{sT0+1}, s{sT0+1}, s{sT0+2}")
        if first: e(f"s_add_u32 s{sT0+1}, s{sT0+1}, {first*16*3072}")
        e(f"s_lshl_b32 s{sT0}, s{sT0}, 15")
        e(f"s_add_u32 m0, s{sT0}, {first*1024}")
        dma_loop(sWQ, 2, sT0+1, 16*3072, 1024, count)
        a.lab(S)

    vCSA = 240
    def dma_wqkv_packed(first, count):
        S = a.new("L_skip")
        e(f"s_cmp_lt_u32 s{sW}, 5"); e(f"s_cbranch_scc1 {S}")
        e(f"s_sub_u32 s{sT0}, s{sW}, 5"); e(f"s_lshl_b32 s{sT0}, s{sT0}, 15")
        e(f"s_mul_i32 s{sT0+1}, s{sI}, 98304"); e(f"s_add_u32 s{sT0+1}, s{sT0+1}, s{sT0}")
        e(f"s_add_u32 s{sT0+1}, s{sT0+1}, {PKQ + first*1024}")
        e(f"s_add_u32 m0, s{sT0}, {first*1024}")
        L = a.new("L_dma")
        e(f"s_mov_b32 s{sCNT}, {count}")
        a.lab(L)
        e(f"buffer_load_dwordx4 v{vL16}, {srd(sWS)}, s{sT0+1} offen sc1 lds")
        e(f"s_add_u32 m0, m0, 1024"); e(f"s_add_u32 s{sT0+1}, s{sT0+1}, 1024")
        e(f"s_sub_u32 s{sCNT}, s{sCNT}, 1"); e(f"s_cmp_lg_u32 s{sCNT}, 0"); e(f"s_cbranch_scc1 {L}")
        a.lab(S)

    def colsum_init(kind):
        tr_base_common(4, 5, 6)
        e(f"s_sub_u32 s{sT0}, s{sW}, 4")
        if kind == "qkv":
            e(f"v_lshl_add_u32 v4, v4, 6, v5")
            e(f"s_lshl_b32 s{sT0+1}, s{sT0}, 15")
            e(f"v_add_u32 v4, s{sT0+1}, v4")
        else:
            e(f"v_and_b32 v6, 3, v4")
            e(f"v_xor_b32 v6, s{sT0}, v6")
            e(f"v_lshl_add_u32 v5, v6, 6, v5")
            e(f"v_lshl_add_u32 v4, v4, 8, v5")
        for r in range(8, 12): e(f"v_mov_b32 v{r}, 0x3f803f80")
    def colsum_chunk(kind, tmp, first, extra=None):
        step, second = (1024, 512) if kind == "qkv" else (4096, 2048)
        for k in range(8):
            e(f"ds_read_b64_tr_b16 v[{tmp+4*k}:{tmp+4*k+1}], v4 offset:{k*step}")
            e(f"ds_read_b64_tr_b16 v[{tmp+4*k+2}:{tmp+4*k+3}], v4 offset:{k*step+second}")
        e(f"v_add_u32 v4, {8*step}, v4")
        for k in range(8):
            if extra: extra(k)
            e(f"s_waitcnt lgkmcnt({14-2*k})")
            e(f"{MF} {V(vCSA,16)}, {V(tmp+4*k,4)}, v[8:11], {'0' if (first and k == 0) else V(vCSA,16)}")
    def colsum_fin(kind):
        cs = L_CS1 if kind == "qkv" else L_CS4
        a.nop(14)
        e(f"s_sub_u32 s{sT0}, s{sW}, 4")
        e(f"s_lshl_b32 s{sT0+1}, s{sT0}, 7"); e(f"s_add_u32 s{sT0+1}, s{sT0+1}, {cs}")
        e(f"v_lshrrev_b32 v10, 5, v{vLANE}"); e(f"v_lshl_add_u32 v10, v10, 4, s{sT0+1}")
        e(f"s_mov_b32 s{sT0+2}, 1"); e(f"s_mov_b32 s{sT0+3}, 1")
        e(f"s_mov_b64 exec, s[{sT0+2}:{sT0+3}]")
        for g in range(4): e(f"ds_write_b128 v10, {V(vCSA+4*g,4)} offset:{g*32}")
        e("s_mov_b64 exec, -1")
        e("s_waitcnt lgkmcnt(0)")

    def load_stats(st_base, vdst, voff, tile_sreg):
        e(f"v_lshrrev_b32 v{voff}, 5, v{vLANE}")
        e(f"v_lshlrev_b32 v{voff}, 11, v{voff}")
        e(f"v_and_b32 v{voff+1}, 31, v{vLANE}")
        e(f"v_lshl_add_u32 v{voff}, v{voff+1}, 3, v{voff}")
        e(f"s_lshl_b32 s{sT0+5}, s{tile_sreg}, 12")
        e(f"s_add_u32 s{sT0+5}, s{sT0+5}, {st_base}")
        for k in range(8):
            e(f"buffer_load_dwordx2 v[{vdst+2*k}:{vdst+2*k+1}], v{voff}, {srd(sWS)}, s{sT0+5} offen offset:{k*256} sc1")

    def reduce_partials(vsrc):
        for k in (1, 3, 5, 7):
            e(f"v_pk_add_f32 v[{vsrc+2*(k-1)}:{vsrc+2*(k-1)+1}], v[{vsrc+2*(k-1)}:{vsrc+2*(k-1)+1}], v[{vsrc+2*k}:{vsrc+2*k+1}]")
        e(f"v_pk_add_f32 v[{vsrc}:{vsrc+1}], v[{vsrc}:{vsrc+1}], v[{vsrc+4}:{vsrc+5}]")
        e(f"v_pk_add_f32 v[{vsrc+8}:{vsrc+9}], v[{vsrc+8}:{vsrc+9}], v[{vsrc+12}:{vsrc+13}]")
        e(f"v_pk_add_f32 v[{vsrc}:{vsrc+1}], v[{vsrc}:{vsrc+1}], v[{vsrc+8}:{vsrc+9}]")
    def finish_stats(vsrc, vA, vB):
        e(f"v_mov_b32 v{vsrc+2}, v{vsrc}"); e(f"v_mov_b32 v{vsrc+3}, v{vsrc+1}")
        a.nop(2)
        e(f"v_permlane32_swap_b32 v{vsrc+2}, v{vsrc}"); e(f"v_permlane32_swap_b32 v{vsrc+3}, v{vsrc+1}")
        a.nop(1)
        e(f"v_pk_add_f32 v[{vsrc}:{vsrc+1}], v[{vsrc}:{vsrc+1}], v[{vsrc+2}:{vsrc+3}]")
        e(f"v_mul_f32 v{vsrc}, {f2u(1/512):#x}, v{vsrc}")
        e(f"v_mul_f32 v{vsrc+1}, {f2u(1/512):#x}, v{vsrc+1}")
        e(f"v_fma_f32 v{vsrc+1}, -v{vsrc}, v{vsrc}, v{vsrc+1}")
        e(f"v_max_f32 v{vsrc+1}, 0, v{vsrc+1}")
        e(f"v_add_f32 v{vsrc+1}, {f2u(1e-5):#x}, v{vsrc+1}")
        e(f"v_rsq_f32 v{vA}, v{vsrc+1}")
        a.nop(1)
        e(f"v_mul_f32 v{vB}, v{vsrc}, v{vA}")

    def x_setup(base, nsteps_total, s0_sreg, tile_sreg):
        e(f"s_mul_i32 s{sXS}, s{tile_sreg}, {nsteps_total*1024}")
        e(f"s_add_u32 s{sXS}, s{sXS}, {base}")
        if s0_sreg is not None:
            e(f"s_lshl_b32 s{sT0+7}, s{s0_sreg}, 10")
            e(f"s_add_u32 s{sXS}, s{sXS}, s{sT0+7}")
    def x_load(k, dst):
        if k and k % 4 == 0: e(f"s_add_u32 s{sXS}, s{sXS}, 4096")
        e(f"buffer_load_dwordx4 v[{dst}:{dst+3}], v{vL16}, {srd(sWS)}, s{sXS} offen offset:{(k%4)*1024} sc1")

    def tile_ids():
        e(f"s_lshl_b32 s{sT0+4}, s{sB}, 2")
        e(f"s_lshr_b32 s{sT0+1}, s{sI}, 3"); e(f"s_lshl_b32 s{sT0+1}, s{sT0+1}, 1")
        e(f"s_add_u32 s{sT0+4}, s{sT0+4}, s{sT0+1}")
        e(f"s_and_b32 s{sT0+1}, s{sW}, 1"); e(f"s_add_u32 s{sT0+4}, s{sT0+4}, s{sT0+1}")
        e(f"s_lshr_b32 s{sT0+3}, s{sW}, 1")

    e("s_cmp_ge_u32 s2, 256"); e("s_cbranch_scc1 L_end")
    e(f"s_load_dwordx16 s[{sKA}:{sKA+15}], s[0:1], 0")
    e(f"s_load_dwordx4 s[{sKA+16}:{sKA+19}], s[0:1], 64")
    e(f"s_load_dwordx2 s[{sKA+20}:{sKA+21}], s[0:1], 80")
    e(f"v_lshrrev_b32 v2, 6, v0")
    e(f"v_and_b32 v{vLANE}, 63, v0")
    e(f"v_readfirstlane_b32 s{sW}, v2")
    e(f"v_lshlrev_b32 v{vL16}, 4, v{vLANE}")
    e(f"s_and_b32 s{sB}, s2, 7"); e(f"s_lshl_b32 s{sB}, s{sB}, 1")
    e(f"s_lshr_b32 s{sT0}, s2, 7"); e(f"s_or_b32 s{sB}, s{sB}, s{sT0}")
    e(f"s_bfe_u32 s{sI}, s2, 0x40003")
    e(f"s_mov_b32 s{sL}, 0"); e(f"s_mov_b32 s{sFAIL}, 0"); e(f"s_mov_b32 s{sKVO}, 0"); e(f"s_mov_b32 s{sMODE}, 0"); e(f"s_mov_b32 s{sNONCE}, 0")
    e(f"s_mov_b32 s{sM16}, 0x0000ffff"); e(f"s_mov_b32 s{sM16+1}, 0x0000ffff")
    e(f"s_mov_b32 s{sM32}, -1"); e(f"s_mov_b32 s{sM32+1}, 0")
    e(f"s_getreg_b32 s{sXCC}, hwreg(HW_REG_XCC_ID, 0, 4)")
    e(f"s_lshl_b32 s{sTEAM}, s{sB}, 12")
    e(f"s_lshl_b32 s{sMYF}, s{sI}, 4"); e(f"s_add_u32 s{sMYF}, s{sMYF}, s{sTEAM}")
    e(f"s_and_b32 s{sT0}, s{sW}, 3"); e(f"s_lshl_b32 s{sT0}, s{sT0}, 2"); e(f"s_add_u32 s{sMYF}, s{sMYF}, s{sT0}")
    e("s_waitcnt lgkmcnt(0)")
    def mk(dst, src, size):
        e(f"s_mov_b32 s{dst}, s{src}"); e(f"s_and_b32 s{dst+1}, s{src+1}, 0xffff")
        e(f"s_mov_b32 s{dst+2}, {size}"); e(f"s_mov_b32 s{dst+3}, 0x00020000")
    mk(sX, sKA+0, 2048*512*2); mk(sWQ, sKA+2, 512*1536*2); mk(sWO, sKA+4, 512*512*2)
    mk(sW1, sKA+8, 512*1792*2); mk(sW2, sKA+12, 1792*512*2); mk(sOUT, sKA+16, 2048*512*2)
    mk(sDBG, sKA+18, 256); mk(sWS, sKA+20, 0x10000000)
    e(f"s_cmp_ge_u32 s{sW}, 4"); e("s_cbranch_scc1 L_pro_helper")

    if args.prio: e(f"s_setprio {args.prio}")
    vX = 64; vAcc = 16; vWf = 192
    vXO = 14
    Lnb = a.new("L_nobias")
    e(f"s_cmp_lg_u32 s{sW}, 3"); e(f"s_cbranch_scc1 {Lnb}")
    mk(sTS, sKA+10, 1792*2)
    e(f"v_lshlrev_b32 v20, 1, v{vLANE}")
    e(f"s_lshl_b32 s{sT0+2}, s{sI}, 8")
    e(f"buffer_load_ushort v21, v20, {srd(sTS)}, s{sT0+2} offen")
    e(f"buffer_load_ushort v22, v20, {srd(sTS)}, s{sT0+2} offen offset:128")
    mk(sTS, sKA+14, 512*2)
    e(f"s_and_b32 s{sT0+2}, s{sI}, 7"); e(f"s_lshl_b32 s{sT0+2}, s{sT0+2}, 7")
    e(f"buffer_load_ushort v23, v20, {srd(sTS)}, s{sT0+2} offen")
    a.lab(Lnb)
    fstamp("start")
    tile_ids()
    e(f"v_and_b32 v10, 31, v{vLANE}"); e(f"v_lshlrev_b32 v10, 10, v10")
    e(f"v_lshrrev_b32 v11, 5, v{vLANE}")
    e(f"v_lshl_add_u32 v{vXO}, v11, 4, v10")
    e(f"v_lshl_add_u32 v10, v11, 3, v10")
    e(f"s_lshl_b32 s{sT0}, s{sT0+4}, 15")
    e(f"s_and_b32 s{sT0+1}, s{sI}, 7"); e(f"s_lshl_b32 s{sT0+1}, s{sT0+1}, 7"); e(f"s_add_u32 s{sT0}, s{sT0}, s{sT0+1}")
    e(f"s_lshl_b32 s{sT0+1}, s{sT0+3}, 6"); e(f"s_add_u32 s{sT0}, s{sT0}, s{sT0+1}")
    for g in range(4):
        e(f"buffer_load_dwordx2 v[{vRES+2*g}:{vRES+2*g+1}], v10, {srd(sX)}, s{sT0} offen offset:{g*16}")
    e(f"s_lshl_b32 s{sXS}, s{sB}, 2"); e(f"s_add_u32 s{sXS}, s{sXS}, s{sW}"); e(f"s_lshl_b32 s{sXS}, s{sXS}, 15")
    L_XR = 98304
    e(f"v_lshrrev_b32 v{vXO}, 3, v{vLANE}"); e(f"v_and_b32 v15, 7, v{vLANE}"); e(f"v_xor_b32 v15, v15, v{vXO}")
    e(f"v_lshlrev_b32 v{vXO}, 10, v{vXO}"); e(f"v_lshl_add_u32 v{vXO}, v15, 4, v{vXO}")
    e(f"s_mul_i32 s{sW1S}, s{sW}, 12288"); e(f"s_add_u32 s{sW1S}, s{sW1S}, {L_XR}")
    def x0_dma(c):
        e(f"s_add_u32 m0, s{sW1S}, {(c % 3)*4096}")
        e(f"s_add_u32 s{sT0+6}, s{sXS}, {c*128}")
        for r in range(4):
            e(f"buffer_load_dwordx4 v{vXO}, {srd(sX)}, s{sT0+6} offen lds")
            if r < 3:
                e(f"s_add_u32 m0, m0, 1024"); e(f"s_add_u32 s{sT0+6}, s{sT0+6}, 8192")
    for c in range(3): x0_dma(c)
    XA0 = 12
    fstamp("xissued")
    Lw1, Lw2, Lw3, Ltab = a.new("L_w1"), a.new("L_w2"), a.new("L_w3"), a.new("L_tabdone")
    e(f"v_and_b32 v16, 31, v{vLANE}"); e(f"v_lshrrev_b32 v17, 5, v{vLANE}"); e(f"v_lshlrev_b32 v17, 2, v17")
    e(f"v_sub_u32 v16, v16, v17")
    e(f"v_mov_b32 v18, 0"); e(f"v_mov_b32 v19, {NEG:#x}")
    e(f"s_cmp_eq_u32 s{sW}, 3"); e(f"s_cbranch_scc1 {Lw3}")
    e(f"s_cmp_eq_u32 s{sW}, 2"); e(f"s_cbranch_scc1 {Lw2}")
    e(f"s_cmp_eq_u32 s{sW}, 1"); e(f"s_cbranch_scc1 {Lw1}")
    for (lab, base, inv) in ((None, L_MD, False), (Lw1, L_MF, True)):
        if lab: a.lab(lab)
        for g in range(4):
            for i in range(4):
                e(f"v_cmp_le_i32 vcc, {8*g+i}, v16"); a.nop(2)
                e(f"v_cndmask_b32 v{24+i}, v19, v18, vcc" if not inv else f"v_cndmask_b32 v{24+i}, v18, v19, vcc")
            e(f"v_add_u32 v28, {base + g*1024}, v{vL16}")
            e(f"ds_write_b128 v28, v[24:27]"); a.nop(2)
        e(f"s_branch {Ltab}")
    a.lab(Lw2)
    e(f"v_mov_b32 v29, 0xffff"); e(f"v_mov_b32 v30, 0xffff0000")
    for half in range(2):
        for dd in range(4):
            d = half*4 + dd; r0, r1 = 2*d, 2*d+1
            c0 = 8*(r0 >> 2) + (r0 & 3); c1 = 8*(r1 >> 2) + (r1 & 3)
            e(f"v_cmp_le_i32 vcc, {c0}, v16"); a.nop(2); e(f"v_cndmask_b32 v31, v18, v29, vcc")
            e(f"v_cmp_le_i32 vcc, {c1}, v16"); a.nop(2); e(f"v_cndmask_b32 v32, v18, v30, vcc")
            e(f"v_or_b32 v{24+dd}, v31, v32")
        e(f"v_add_u32 v28, {L_MB + half*1024}, v{vL16}")
        e(f"ds_write_b128 v28, v[24:27]"); a.nop(2)
    e(f"s_branch {Ltab}")
    a.lab(Lw3)
    e(f"s_waitcnt vmcnt({4 + XA0})")
    e("v_lshlrev_b32 v21, 16, v21"); e("v_lshlrev_b32 v22, 16, v22"); e("v_lshlrev_b32 v23, 16, v23")
    e(f"v_lshlrev_b32 v24, 2, v{vLANE}"); e(f"v_add_u32 v24, {L_B1}, v24")
    e(f"ds_write_b32 v24, v21"); e(f"ds_write_b32 v24, v22 offset:256"); e(f"ds_write_b32 v24, v23 offset:512")
    a.lab(Ltab)

    def p1_bases():
        tr_base_common(4, 5, 6)
        e("v_lshl_add_u32 v4, v4, 6, v5"); e("v_add_u32 v5, 65536, v4")
    class L1:
        n = 0
    def lds1(instr):
        e(instr); L1.n += 1; return L1.n
    def lwait1(k): e(f"s_waitcnt lgkmcnt({min(15, L1.n - k)})")
    seq1 = [(s, t) for s in range(32) for t in (1, 2)] + [(s, 0) for s in range(32)]
    NS1 = 6; PRE1 = NS1 - 1
    rid1 = {}
    def slot1(n): return vWf + 4*(n % NS1)
    def issue1(n):
        s, t = seq1[n]
        if n < 64 and t == 1 and s % 8 == 0 and s > 0: e("s_barrier")
        b = 4 if t < 2 else 5; off = (t % 2) * 32768 + s * 1024; dst = slot1(n)
        lds1(f"ds_read_b64_tr_b16 v[{dst}:{dst+1}], v{b} offset:{off}")
        rid1[n] = lds1(f"ds_read_b64_tr_b16 v[{dst+2}:{dst+3}], v{b} offset:{off+512}")
    def mfma1(n):
        s, t = seq1[n]
        acc = vAcc + 16*t; c = "0" if s == 0 else V(acc, 16); x = vX + 4*s; w = slot1(n)
        if t < 2: e(f"{MF} {V(acc,16)}, {V(w,4)}, {V(x,4)}, {c}")
        else:     e(f"{MF} {V(acc,16)}, {V(x,4)}, {V(w,4)}, {c}")
    vA, vB = 8, 10
    def p1_stats_ready(tracked=False):
        finish_stats(216, vA, vB)
        e(f"v_and_b32 v6, 31, v{vLANE}"); e(f"v_lshlrev_b32 v6, 2, v6")
        e(f"v_add_u32 v13, {L_CS1+256}, v6")
        e(f"s_lshl_b32 s{sT0}, s{sW}, 8"); e(f"s_add_u32 s{sT0}, s{sT0}, {L_STA}")
        e(f"v_add_u32 v6, s{sT0}, v6")
        (lds1 if tracked else e)(f"ds_write_b32 v6, v{vA}"); (lds1 if tracked else e)(f"ds_write_b32 v6, v{vB} offset:128")
        e(f"v_lshrrev_b32 v7, 5, v{vLANE}"); e(f"v_lshlrev_b32 v7, 4, v7")
        e(f"v_add_u32 v6, {L_CS1}, v7")
        e(f"v_add_u32 v7, s{sT0}, v7")
        if not tracked: e("s_waitcnt lgkmcnt(0)")
    def p1_passA(loads):
        L1.n = 0; rid1.clear()
        for n in range(PRE1): issue1(n)
        for n in range(64):
            s, t = seq1[n]
            if loads and t == 1:
                e(f"s_waitcnt vmcnt({XA + 7 if s < XA else min(XA, 32-s)-1})")
                if s + XA < 32: x_load(s + XA, vX + 4*(s + XA))
            if t == 2 and s == XA:
                if loads: reduce_partials(216)
                p1_stats_ready(True)
            lwait1(rid1[n]); mfma1(n); issue1(n + PRE1)

    for r in range(8, 12): e(f"v_mov_b32 v{r}, 0")
    e(f"v_and_b32 v6, 31, v{vLANE}"); e(f"v_lshrrev_b32 v7, 5, v{vLANE}"); e(f"v_and_b32 v15, 7, v6")
    e(f"v_xor_b32 v7, v7, v15"); e(f"v_lshlrev_b32 v6, 7, v6"); e(f"v_lshl_add_u32 v6, v7, 4, v6")
    e(f"v_add_u32 v232, s{sW1S}, v6")
    for sp_ in range(1, 4): e(f"v_xor_b32 v{232+sp_}, {sp_*32}, v232")
    for c in range(8):
        e(f"s_waitcnt vmcnt({4*min(2, 7-c)})")
        if c == 0: fstamp("xland")
        for sp_ in range(4):
            x = vX + 4*(4*c + sp_)
            e(f"ds_read_b128 {V(x,4)}, v{232+sp_} offset:{(c % 3)*4096}")
        e("s_waitcnt lgkmcnt(0)")
        if c + 3 < 8: x0_dma(c + 3)
        for sp_ in range(4):
            x = vX + 4*(4*c + sp_)
            e(f"v_permlane32_swap_b32 v{x}, v{x+2}"); e(f"v_permlane32_swap_b32 v{x+1}, v{x+3}")
            for d in range(4):
                e(f"v_lshlrev_b32 v12, 16, v{x+d}"); e(f"v_and_b32 v13, 0xffff0000, v{x+d}")
                e(f"v_pk_add_f32 v[8:9], v[8:9], v[12:13]"); e(f"v_pk_fma_f32 v[10:11], v[12:13], v[12:13], v[10:11]")
    e("v_add_f32 v216, v8, v9"); e("v_add_f32 v217, v10, v11")
    p1_bases()
    fstamp("xdone")
    e("s_barrier")
    fstamp("p1B")
    p1_passA(False)
    e("s_barrier")
    e("s_branch L_p1_passB")

    a.lab("L_p1_l1")
    team_wait(0, 4)
    fstamp("p1poll")
    e(f"s_lshl_b32 s{sT0+4}, s{sB}, 2"); e(f"s_add_u32 s{sT0+4}, s{sT0+4}, s{sW}")
    x_setup(XF, 32, None, sT0+4)
    for k in range(XA): x_load(k, vX + 4*k)
    load_stats(ST1, 216, 14, sT0+4)
    p1_bases()
    e("s_barrier")
    p1_passA(True)

    a.lab("L_p1_passB")
    fstamp("p1A")
    e("v_mov_b32 v14, 0")
    e(f"buffer_load_dword v15, v14, {srd(sDBG)}, 0 offen sc1")
    e(f"s_lshl_b32 s{sT0+4}, s{sB}, 2"); e(f"s_add_u32 s{sT0+4}, s{sT0+4}, s{sW}")
    e(f"s_lshl_b32 s{sT0}, s{sT0+4}, 15"); e(f"s_lshl_b32 s{sT0+1}, s{sI}, 11")
    e(f"s_add_u32 s{sT0}, s{sT0}, s{sT0+1}"); e(f"s_add_u32 s{sT0}, s{sT0}, s{sKVO}")
    e(f"s_add_u32 s{sT0+1}, s{sT0}, {VF}"); e(f"s_add_u32 s{sT0}, s{sT0}, {KF}")
    gid1 = {}
    def grp1(G):
        b = 232 + 8*(G % 2)
        if G < 4:   gid1[G] = lds1(f"ds_read_b128 {V(b,4)}, v6 offset:{128 + G*32}")
        elif G < 8:
            g = G - 4
            lds1(f"ds_read_b128 {V(b,4)}, v7 offset:{g*32}")
            gid1[G] = lds1(f"ds_read_b128 {V(b+4,4)}, v7 offset:{128 + g*32}")
    items1 = []
    aK, aV, aQ = vAcc + 16, vAcc + 32, vAcc
    for G in range(8):
        b = 232 + 8*(G % 2); g = G % 4; acc = aK if G < 4 else aV
        items1.append(("wait", G))
        for i in range(4):
            r = acc + 4*g + i
            if G < 4:
                items1.append(("v", f"v_mul_f32 v{r}, v{r}, v{vA}"))
                items1.append(("v", f"v_fma_f32 v{r}, -v{vB}, v{b+i}, v{r}"))
            else:
                items1.append(("v", f"v_mul_f32 v{r}, v{r}, v{b+i}"))
                items1.append(("v", f"v_fma_f32 v{r}, -v{b+4+i}, v12, v{r}"))
        items1.append(("next", G + 2))
        for dd in range(2):
            d = 2*g + dd
            items1.append(("v", f"v_cvt_pk_bf16_f32 v{acc+d}, v{acc+2*d}, v{acc+2*d+1}"))
        if g == 3: items1.append(("st", G))
    def run1(budget):
        done = 0
        while items1 and done < budget:
            it = items1.pop(0)
            if it[0] == "v": e(it[1]); done += 1
            elif it[0] == "wait": lwait1(gid1[it[1]])
            elif it[0] == "next": grp1(it[1])
            elif it[0] == "st":
                acc, so = (aK, sT0) if it[1] == 3 else (aV, sT0+1)
                e(f"buffer_store_dwordx4 {V(acc,4)}, v{vL16}, {srd(sWS)}, s{so} offen sc1")
                e(f"buffer_store_dwordx4 {V(acc+4,4)}, v{vL16}, {srd(sWS)}, s{so} offen offset:1024 sc1")
    lds1("ds_read_b32 v12, v13")
    grp1(0); grp1(1)
    for n in range(64, 96):
        lwait1(rid1[n]); mfma1(n)
        if n + PRE1 < 96: issue1(n + PRE1)
        if n == 64: a.nop(10)
        else: run1(4)
    run1(10**6)
    for g in range(4): lds1(f"ds_read_b128 {V(232+4*g,4)}, v6 offset:{g*32}")
    fstamp("p1main")
    e("s_barrier")
    fstamp("p1pre")
    e("s_waitcnt vmcnt(0)")
    fstamp("p1drain")
    Lhn = a.new("L_havenonce")
    e(f"v_readfirstlane_b32 s{sNONCE}, v15")
    e(f"s_cmp_lg_u32 s{sNONCE}, 0"); e(f"s_cbranch_scc1 {Lhn}")
    nonce_poll(14)
    a.lab(Lhn)
    e(f"s_lshl_b32 s{sT0}, s{sI}, 7"); e(f"s_add_u32 s{sT0}, s{sT0}, s{sTEAM}")
    e(f"s_lshl_b32 s{sT0+1}, s{sW}, 3"); e(f"s_add_u32 s{sT0}, s{sT0}, s{sT0+1}"); e(f"s_add_u32 s{sT0}, s{sT0}, {C_KV}")
    e(f"s_add_u32 s{sT0+1}, s{sL}, 1")
    e(f"v_mov_b32 v14, s{sNONCE}"); e(f"v_mov_b32 v15, s{sT0+1}"); e("v_mov_b32 v13, 0")
    e("s_mov_b64 exec, 1")
    e(f"buffer_store_dwordx2 v[14:15], v13, {srd(sWS)}, s{sT0} offen sc1")
    e("s_mov_b64 exec, -1")
    e("s_waitcnt lgkmcnt(0)")
    e(f"v_mul_f32 v152, {f2u(QSCALE):#x}, v{vA}"); e(f"v_mul_f32 v154, {f2u(QSCALE):#x}, v{vB}")
    for p in range(8):
        e(f"v_pk_mul_f32 {V(aQ+2*p,2)}, {V(aQ+2*p,2)}, {V(152,2)} op_sel_hi:[1,0]")
        e(f"v_pk_fma_f32 {V(aQ+2*p,2)}, {V(232+2*p,2)}, {V(154,2)}, {V(aQ+2*p,2)} op_sel_hi:[1,0,1] neg_lo:[0,1,0] neg_hi:[0,1,0]")
    for d in range(8): e(f"v_cvt_pk_bf16_f32 v{aQ+d}, v{aQ+2*d}, v{aQ+2*d+1}")
    e(f"s_lshl_b32 s{sT0+2}, s{sW}, 11"); e(f"v_add_u32 v6, s{sT0+2}, v{vL16}")
    e(f"ds_write_b128 v6, {V(aK,4)} offset:{L_KST+16*1024}"); e(f"ds_write_b128 v6, {V(aK+4,4)} offset:{L_KST+17*1024}")
    e(f"ds_write_b128 v6, {V(aV,4)} offset:{L_VST+16*1024}"); e(f"ds_write_b128 v6, {V(aV+4,4)} offset:{L_VST+17*1024}")
    e(f"ds_write_b128 v6, {V(aQ,4)} offset:{L_QST}"); e(f"ds_write_b128 v6, {V(aQ+4,4)} offset:{L_QST+1024}")
    if args.dbgq:
        e(f"s_lshl_b32 s{sT0}, s{sT0+4}, 15"); e(f"s_lshl_b32 s{sT0+1}, s{sI}, 11")
        e(f"s_add_u32 s{sT0}, s{sT0}, s{sT0+1}"); e(f"s_add_u32 s{sT0}, s{sT0}, {OF}")
        e(f"buffer_store_dwordx4 {V(aQ,4)}, v{vL16}, {srd(sWS)}, s{sT0} offen sc1")
        e(f"buffer_store_dwordx4 {V(aQ+4,4)}, v{vL16}, {srd(sWS)}, s{sT0} offen offset:1024 sc1")
    if STOP == 1:
        e("s_waitcnt vmcnt(0) lgkmcnt(0)"); e("s_barrier"); e("s_branch L_end")
    Lnokv = a.new("L_nokv")
    e(f"s_lshr_b32 s{sT0}, s{sW}, 1"); e(f"s_add_u32 s{sT0}, s{sT0}, s{sB}"); e(f"s_sub_u32 s{sT0}, s{sT0}, 2")
    e(f"s_cbranch_scc1 {Lnokv}")
    e(f"s_lshl_b32 s{sT0}, s{sT0}, 12")
    e(f"s_lshl_b32 s{sT0+1}, s{sI}, 7"); e(f"s_add_u32 s{sT0}, s{sT0}, s{sT0+1}")
    e(f"s_lshl_b32 s{sT0+1}, s{sW}, 4"); e(f"s_and_b32 s{sT0+1}, s{sT0+1}, 16")
    e(f"s_add_u32 s{sT0}, s{sT0}, s{sT0+1}"); e(f"s_add_u32 s{sT0}, s{sT0}, {C_KV}")
    e(f"v_and_b32 v10, 1, v{vLANE}"); e(f"v_lshlrev_b32 v10, 3, v10")
    e(f"s_add_u32 s{sTGT}, s{sL}, 1")
    poll64(10, sT0, sTGT, 12, sleep=args.kvsleep)
    fstamp("kvpoll")
    for zz in range(2):
        e(f"s_lshl_b32 s{sT0}, s{sB}, 2"); e(f"s_lshl_b32 s{sT0+1}, s{sW}, 1")
        e(f"s_add_u32 s{sT0}, s{sT0}, s{sT0+1}"); e(f"s_add_u32 s{sT0}, s{sT0}, {zz}"); e(f"s_sub_u32 s{sT0}, s{sT0}, 8")
        e(f"s_lshl_b32 s{sT0}, s{sT0}, 15"); e(f"s_lshl_b32 s{sT0+2}, s{sI}, 11")
        e(f"s_add_u32 s{sT0}, s{sT0}, s{sT0+2}"); e(f"s_add_u32 s{sT0}, s{sT0}, s{sKVO}")
        e(f"s_add_u32 s{sT0+2}, s{sT0}, {VF}"); e(f"s_add_u32 s{sT0}, s{sT0}, {KF}")
        e(f"s_lshl_b32 s{sT0+1}, s{sW}, 12")
        e(f"s_add_u32 m0, s{sT0+1}, {L_KST + zz*2048}"); e("s_nop 0")
        e(f"buffer_load_dwordx4 v{vL16}, {srd(sWS)}, s{sT0} offen sc1 lds")
        e(f"buffer_load_dwordx4 v{vL16}, {srd(sWS)}, s{sT0} offen offset:1024 sc1 lds")
        e(f"s_add_u32 m0, s{sT0+1}, {L_VST + zz*2048}"); e("s_nop 0")
        e(f"buffer_load_dwordx4 v{vL16}, {srd(sWS)}, s{sT0+2} offen sc1 lds")
        e(f"buffer_load_dwordx4 v{vL16}, {srd(sWS)}, s{sT0+2} offen offset:1024 sc1 lds")
    a.lab(Lnokv)
    e("s_waitcnt vmcnt(0) lgkmcnt(0)")
    e("s_barrier")
    e("s_branch L_p2")

    def helper_prefetch():
        e(f"s_sub_u32 s{sT0+6}, s{sW}, 4"); e(f"s_lshl_b32 s{sT0+6}, s{sT0+6}, 14")
        e(f"s_and_b32 s{sT0+5}, s{sI}, 7"); e(f"s_lshl_b32 s{sT0+5}, s{sT0+5}, 16")
        e(f"s_add_u32 s{sT0+5}, s{sT0+5}, s{sT0+6}"); e(f"s_add_u32 s{sT0+5}, s{sT0+5}, {PKO}")
        e(f"s_add_u32 m0, s{sT0+6}, {L_WO}")
        L = a.new("L_wo")
        e(f"s_mov_b32 s{sCNT}, 16")
        a.lab(L)
        e(f"buffer_load_dwordx4 v{vL16}, {srd(sWS)}, s{sT0+5} offen sc1 lds")
        e(f"s_add_u32 m0, m0, 1024"); e(f"s_add_u32 s{sT0+5}, s{sT0+5}, 1024")
        e(f"s_sub_u32 s{sCNT}, s{sCNT}, 1"); e(f"s_cmp_lg_u32 s{sCNT}, 0"); e(f"s_cbranch_scc1 {L}")
        e(f"s_min_u32 s{sW1S}, s{sI}, 13"); e(f"s_lshl_b32 s{sW1S}, s{sW1S}, 17"); e(f"s_lshl_b32 s{sT0+6}, s{sW}, 14")
        e(f"s_add_u32 s{sW1S}, s{sW1S}, s{sT0+6}"); e(f"s_add_u32 s{sW1S}, s{sW1S}, {PK1}")
        for k in range(16):
            if k and k % 4 == 0: e(f"s_add_u32 s{sW1S}, s{sW1S}, 4096")
            e(f"buffer_load_dwordx4 {V(vSTG+4*k,4)}, v{vL16}, {srd(sWS)}, s{sW1S} offen offset:{(k%4)*1024} sc1")

    a.lab("L_pro_helper")
    fstamp("start")
    def l2_prefetch(srd_reg, bytes_per_wg, per_wave, dst=48, base=0):
        e(f"s_lshr_b32 s{sT0}, s2, 3"); e(f"s_mul_i32 s{sT0}, s{sT0}, {bytes_per_wg}")
        e(f"s_sub_u32 s{sT0+1}, s{sW}, 4"); e(f"s_mul_i32 s{sT0+1}, s{sT0+1}, {per_wave*1024}")
        e(f"s_add_u32 s{sT0}, s{sT0}, s{sT0+1}")
        if base: e(f"s_add_u32 s{sT0}, s{sT0}, {base}")
        for k in range(per_wave):
            if k and k % 4 == 0: e(f"s_add_u32 s{sT0}, s{sT0}, 4096")
            e(f"buffer_load_dwordx4 v[{dst}:{dst+3}], v{vL16}, {srd(srd_reg)}, s{sT0} offen offset:{(k%4)*1024}")
    def l2_prefetch1(bytes_per_wg, nkb, base, dst=48, sleep=0):
        e(f"s_lshr_b32 s{sT0}, s2, 3"); e(f"s_mul_i32 s{sT0}, s{sT0}, {bytes_per_wg}"); e(f"s_add_u32 s{sT0}, s{sT0}, {base}")
        L = a.new("L_pf")
        e(f"s_mov_b32 s{sCNT}, {nkb}")
        a.lab(L)
        e(f"buffer_load_dwordx4 v[{dst}:{dst+3}], v{vL16}, {srd(sWS)}, s{sT0} offen sc1")
        if sleep: e(f"s_sleep {sleep}")
        e(f"s_add_u32 s{sT0}, s{sT0}, 1024")
        e(f"s_sub_u32 s{sCNT}, s{sCNT}, 1"); e(f"s_cmp_lg_u32 s{sCNT}, 0"); e(f"s_cbranch_scc1 {L}")
    if args.pf0:
        l2_prefetch(sWQ, 49152, 12)
        e("s_waitcnt vmcnt(0)")
    dma_wqkv(0, 16)
    fstamp("hissued")
    Lreg = a.new("L_noreg"); Lnl = a.new("L_noleader"); Lnn = a.new("L_nononce")
    e(f"s_cmp_lg_u32 s{sW}, 4"); e(f"s_cbranch_scc1 {Lreg}")
    e(f"s_cmp_lg_u32 s2, 0"); e(f"s_cbranch_scc1 {Lnn}")
    e(f"s_memrealtime s[{sT0}:{sT0+1}]"); e("s_waitcnt lgkmcnt(0)")
    e(f"s_or_b32 s{sT0}, s{sT0}, 1")
    e(f"v_mov_b32 v4, s{sT0}"); e("v_mov_b32 v8, 0")
    e("s_mov_b64 exec, 1"); e(f"buffer_store_dword v4, v8, {srd(sDBG)}, 0 offen sc1"); e("s_mov_b64 exec, -1")
    a.lab(Lnn)
    e(f"s_cmp_lg_u32 s{sI}, 0"); e(f"s_cbranch_scc1 {Lnl}")
    e("v_mov_b32 v4, 0"); e(f"v_lshlrev_b32 v5, 2, v{vLANE}")
    e(f"buffer_store_dword v4, v5, {srd(sWS)}, s{sTEAM} offen sc1")
    a.lab(Lnl)
    vPK = 64
    voff_qkv(56, 59); voff_n64(57, 59); voff_n128(58, 59)
    e(f"s_lshr_b32 s{sT0}, s2, 4"); e(f"s_lshl_b32 s{sT0}, s{sT0}, 6")
    e(f"s_and_b32 s{sT0+1}, s2, 15"); e(f"s_mul_i32 s{sT0+1}, s{sT0+1}, 6")
    for k in range(6):
        e(f"s_add_u32 s{sT0+2}, s{sT0+1}, {k}")
        e(f"s_lshr_b32 s{sT0+3}, s{sT0+2}, 5"); e(f"s_lshl_b32 s{sT0+3}, s{sT0+3}, 10")
        e(f"s_and_b32 s{sT0+2}, s{sT0+2}, 31"); e(f"s_mul_i32 s{sT0+2}, s{sT0+2}, {16*3072}")
        e(f"s_add_u32 s{sT0+2}, s{sT0+2}, s{sT0+3}"); e(f"s_add_u32 s{sT0+2}, s{sT0+2}, s{sT0}")
        e(f"buffer_load_dwordx4 {V(vPK+4*k,4)}, v56, {srd(sWQ)}, s{sT0+2} offen")
    e(f"s_lshr_b32 s{sT0}, s2, 5"); e(f"s_lshl_b32 s{sT0}, s{sT0}, 7")
    e(f"s_and_b32 s{sT0+1}, s2, 31"); e(f"s_lshl_b32 s{sT0+2}, s{sT0+1}, 14"); e(f"s_add_u32 s{sT0+2}, s{sT0+2}, s{sT0}")
    e(f"buffer_load_dwordx4 {V(vPK+24,4)}, v57, {srd(sWO)}, s{sT0+2} offen")
    e(f"s_add_u32 s{sT0+2}, s{sT0+2}, 8192")
    e(f"buffer_load_dwordx4 {V(vPK+28,4)}, v57, {srd(sWO)}, s{sT0+2} offen")
    e(f"s_mul_i32 s{sT0+2}, s{sT0+1}, {7*8192}"); e(f"s_add_u32 s{sT0+2}, s{sT0+2}, s{sT0}")
    for k in range(7):
        e(f"buffer_load_dwordx4 {V(vPK+60+4*k,4)}, v57, {srd(sW2)}, s{sT0+2} offen")
        if k < 6: e(f"s_add_u32 s{sT0+2}, s{sT0+2}, 8192")
    e(f"s_mul_i32 s{sT0+1}, s2, 7")
    for k in range(7):
        e(f"s_add_u32 s{sT0+2}, s{sT0+1}, {k}")
        e(f"s_lshr_b32 s{sT0+3}, s{sT0+2}, 7"); e(f"s_lshl_b32 s{sT0+3}, s{sT0+3}, 8")
        e(f"s_and_b32 s{sT0+2}, s{sT0+2}, 127"); e(f"s_mul_i32 s{sT0+2}, s{sT0+2}, {4*3584}")
        e(f"s_add_u32 s{sT0+2}, s{sT0+2}, s{sT0+3}")
        e(f"buffer_load_dwordx4 {V(vPK+32+4*k,4)}, v58, {srd(sW1)}, s{sT0+2} offen")
    def pack_store():
        e("s_waitcnt vmcnt(0)")
        for (base, per, r0) in ((PKQ, 6, 0), (PKO, 2, 24), (PK1, 7, 32), (PK2, 7, 60)):
            e(f"s_mul_i32 s{sT0}, s2, {per*1024}"); e(f"s_add_u32 s{sT0}, s{sT0}, {base}")
            for k in range(per):
                if k == 4: e(f"s_add_u32 s{sT0}, s{sT0}, 4096")
                e(f"buffer_store_dwordx4 {V(vPK+r0+4*k,4)}, v{vL16}, {srd(sWS)}, s{sT0} offen offset:{(k%4)*1024} sc1")
    a.lab(Lreg)
    Lplain, Lc1 = a.new("L_plain"), a.new("L_c1")
    def l0_chunk(q, cs):
        Lsw = a.new("L_skipwait")
        e(f"s_cmp_eq_u32 s{sW}, 4"); e(f"s_cbranch_scc1 {Lsw}")
        e(f"s_waitcnt vmcnt({8 if q < 3 else 0})")
        a.lab(Lsw)
        fstamp(f"hc{q}"); e("s_barrier"); fstamp(f"hb{q}")
        if q < 2: dma_wqkv(8*(q+2), 8)
        if cs: colsum_chunk("qkv", 16, q == 0)
        if cs and q == 0:
            Lnp = a.new("L_nopack")
            e(f"s_cmp_lg_u32 s{sW}, 4"); e(f"s_cbranch_scc1 {Lnp}")
            pack_store()
            a.lab(Lnp)
        if cs and q == 2:
            Lnp = a.new("L_noregw")
            e(f"s_cmp_lg_u32 s{sW}, 4"); e(f"s_cbranch_scc1 {Lnp}")
            nonce_poll(4 + 50)
            e(f"s_add_u32 s{sT0}, s{sXCC}, 1")
            e(f"v_mov_b32 v56, s{sNONCE}"); e(f"v_mov_b32 v57, s{sT0}"); e("v_mov_b32 v58, 0")
            e(f"s_lshl_b32 s{sT0+1}, s{sB}, 4"); e(f"s_add_u32 s{sT0+1}, s{sT0+1}, s{sI}"); e(f"s_lshl_b32 s{sT0+1}, s{sT0+1}, 3")
            e(f"s_add_u32 s{sT0+1}, s{sT0+1}, {REGA}")
            e("s_mov_b64 exec, 1")
            e(f"buffer_store_dwordx2 v[56:57], v58, {srd(sWS)}, s{sT0+1} offen sc1")
            e("s_mov_b64 exec, -1")
            a.lab(Lnp)
    e(f"s_cmp_eq_u32 s{sW}, 7"); e(f"s_cbranch_scc1 {Lplain}")
    colsum_init("qkv"); pass
    for q in range(4): l0_chunk(q, True)
    colsum_fin("qkv"); pass
    e(f"s_branch {Lc1}")
    a.lab(Lplain)
    for q in range(4): l0_chunk(q, False)
    a.lab(Lc1)
    e("s_barrier")
    e("s_barrier")
    if STOP == 1:
        e("s_barrier"); e("s_branch L_end")
    Lnr = a.new("L_noreg2")
    e(f"s_cmp_lg_u32 s{sW}, 4"); e(f"s_cbranch_scc1 {Lnr}")
    e(f"s_mov_b32 s{sTGT}, 1")
    e(f"v_lshlrev_b32 v4, 3, v{vLANE}")
    for r in range(4):
        e(f"s_mov_b32 s{sT0}, {REGA + r*512}")
        poll64(4, sT0, sTGT, 6, sleep=16)
    e(f"v_and_b32 v4, 15, v{vLANE}"); e(f"v_lshlrev_b32 v4, 3, v4")
    e(f"s_lshl_b32 s{sT0}, s{sB}, 7"); e(f"s_add_u32 s{sT0}, s{sT0}, {REGA}")
    e(f"v_mov_b32 v7, 0")
    poll64(4, sT0, sTGT, 6, sleep=2)
    e(f"s_add_u32 s{sT0}, s{sXCC}, 1")
    e(f"v_cmp_ne_u32 vcc, s{sT0}, v7")
    e(f"s_cmp_eq_u64 vcc, 0"); e(f"s_cselect_b32 s{sMODE}, 1, 0")
    if args.slow: e(f"s_mov_b32 s{sMODE}, 0")
    e(f"v_mov_b32 v5, s{sMODE}"); e(f"v_mov_b32 v4, {L_MODE}")
    e("ds_write_b32 v4, v5"); e("s_waitcnt lgkmcnt(0)")
    a.lab(Lnr)
    e("s_barrier")
    if args.hpre: helper_prefetch()
    e("s_branch L_p2")
    a.lab("L_p1_helper_l1")
    e("s_waitcnt vmcnt(8)"); e("s_barrier")
    fstamp("hb0")
    Lw4, Lw4j = a.new("L_w4pf"), a.new("L_w4j")
    if args.pfa:
        e(f"s_cmp_eq_u32 s{sW}, 4"); e(f"s_cbranch_scc1 {Lw4}")
    dma_wqkv_packed(16, 8)
    e("s_waitcnt vmcnt(8)"); fstamp("hc1"); e("s_barrier")
    dma_wqkv_packed(24, 8)
    e("s_waitcnt vmcnt(8)"); fstamp("hc2"); e("s_barrier")
    e("s_waitcnt vmcnt(0)"); fstamp("hc3"); e("s_barrier")
    if args.pfa:
        e(f"s_branch {Lw4j}")
        a.lab(Lw4)
        l2_prefetch1(16384, 16, PKO); e("s_barrier")
        l2_prefetch1(57344, 20, PK1); e("s_barrier")
        l2_prefetch1(57344, 18, PK1 + 20*1024); e("s_barrier")
        l2_prefetch1(57344, 18, PK1 + 38*1024)
        a.lab(Lw4j)
    e("s_barrier")
    if args.hpre: helper_prefetch()
    e("s_barrier")

    a.lab("L_p2")
    if args.prio and args.prio2 >= 0: e(f"s_setprio {args.prio2}")
    fstamp("p2start")
    vQ = 4; vK = 8; vV = 44; vS = 60; vP = 108; vO = 116; vCb = 132; vMB = 148; vM = 156
    vAK, vAV, vAQ, vWO, vW1 = 158, 159, 160, 161, 162
    e(f"v_mov_b32 v{vAQ}, {L_MODE}"); e(f"ds_read_b32 v{vM}, v{vAQ}")
    e(f"s_and_b32 s{sT0}, s{sW}, 3"); e(f"s_lshr_b32 s{sT0+1}, s{sW}, 2")
    e(f"s_lshl_b32 s{sN}, s{sB}, 2"); e(f"s_add_u32 s{sN}, s{sN}, s{sT0}"); e(f"s_add_u32 s{sN}, s{sN}, 1"); e(f"s_min_u32 s{sN}, s{sN}, 9")
    e(f"s_lshl_b32 s{sT0+2}, s{sT0}, 11"); e(f"s_lshl_b32 s{sT0+3}, s{sT0+1}, 10"); e(f"s_add_u32 s{sT0+4}, s{sT0+2}, s{sT0+3}")
    e(f"v_add_u32 v{vAK}, s{sT0+4}, v{vL16}")
    e(f"s_lshl_b32 s{sT0+3}, s{sT0+1}, 8"); e(f"s_add_u32 s{sT0+4}, s{sT0+2}, s{sT0+3}")
    e(f"v_add_u32 v{vAV}, s{sT0+4}, v{vL16}")
    e(f"ds_read_b128 {V(vQ,4)}, v{vAK} offset:{L_QST}")
    for j in range(9): e(f"ds_read_b128 {V(vK+4*j,4)}, v{vAK} offset:{L_KST + (8-j)*2048}")
    e(f"v_add_u32 v{vAQ}, {L_MD}, v{vL16}")
    for g in range(2): e(f"ds_read_b128 {V(vMB+4*g,4)}, v{vAQ} offset:{8192+g*1024}")
    e(f"s_and_b32 s{sT0+5}, s{sI}, 7"); e(f"s_lshl_b32 s{sT0+5}, s{sT0+5}, 16")
    e(f"s_lshl_b32 s{sT0+6}, s{sW}, 13"); e(f"s_add_u32 s{sT0+5}, s{sT0+5}, s{sT0+6}"); e(f"s_add_u32 s{sT0+5}, s{sT0+5}, {PKO}")
    e(f"s_add_u32 m0, s{sT0+6}, {L_WO}")
    e(f"s_min_u32 s{sW1S}, s{sI}, 13"); e(f"s_lshl_b32 s{sW1S}, s{sW1S}, 17"); e(f"s_lshl_b32 s{sT0+6}, s{sW}, 14")
    e(f"s_add_u32 s{sW1S}, s{sW1S}, s{sT0+6}"); e(f"s_add_u32 s{sW1S}, s{sW1S}, {PK1}")
    def wo_dma():
        e(f"buffer_load_dwordx4 v{vL16}, {srd(sWS)}, s{sT0+5} offen sc1 lds")
        e(f"s_add_u32 m0, m0, 1024"); e(f"s_add_u32 s{sT0+5}, s{sT0+5}, 1024")
    def w1_load(k):
        if k and k % 4 == 0: e(f"s_add_u32 s{sW1S}, s{sW1S}, 4096")
        e(f"buffer_load_dwordx4 {V(vSTG+4*k,4)}, v{vL16}, {srd(sWS)}, s{sW1S} offen offset:{(k%4)*1024} sc1")
    for r in range(16): e(f"v_mov_b32 v{vV+r}, 0x3f803f80")
    e("s_waitcnt lgkmcnt(0)")
    e(f"v_readfirstlane_b32 s{sMODE}, v{vM}")
    def Sb(j): return vS + 16*(j % 3)
    def smfma(j, c): e(f"{MF} {V(Sb(j),16)}, {V(vK+4*j,4)}, {V(vQ,4)}, {c}")
    def vread(j):
        Vb = vV + 8*(j % 2)
        e(f"s_mov_b64 exec, {sp(sM16)}")
        e(f"ds_read_b128 {V(Vb,4)}, v{vAV} offset:{L_VST + (8-j)*2048}")
        e(f"ds_read_b128 {V(Vb+4,4)}, v{vAV} offset:{L_VST + (8-j)*2048 + 1024}")
        e("s_mov_b64 exec, -1")
    def mf_read(j):
        for g in range(4): e(f"ds_read_b128 {V(Sb(j)+4*g,4)}, v{vAQ} offset:{4096+g*1024}")
    def maxes(j):
        for k in range(8): e(f"v_max3_f32 v{vM}, v{Sb(j)+2*k}, v{Sb(j)+2*k+1}, v{vM}")
    def finish_max():
        e(f"v_mov_b32 v{vM+1}, v{vM}"); a.nop(2)
        e(f"v_permlane32_swap_b32 v{vM+1}, v{vM}"); a.nop(1)
        e(f"v_max_f32 v{vM}, v{vM}, v{vM+1}")
        e(f"v_sub_f32 v{vM}, 0, v{vM}")
        for r in range(16): e(f"v_mov_b32 v{vCb+r}, v{vM}")
        a.nop(2)
    def tile2(j, first):
        S = Sb(j); Vb = vV + 8*(j % 2)
        for r in range(8): e(f"v_exp_f32 v{S+r}, v{S+r}")
        for d in range(4): e(f"v_cvt_pk_bf16_f32 v{vP+d}, v{S+2*d}, v{S+2*d+1}")
        if j == 0:
            for d in range(4): e(f"v_and_b32 v{vP+d}, v{vP+d}, v{vMB+d}")
        if j == 8:
            for d in range(4): e(f"v_bfi_b32 v{vP+d}, v{vMB+d}, 0, v{vP+d}")
        for r in range(8, 16): e(f"v_exp_f32 v{S+r}, v{S+r}")
    def tile2b(j, first):
        S = Sb(j); Vb = vV + 8*(j % 2)
        e(f"{MF} {V(vO,16)}, {V(Vb,4)}, {V(vP,4)}, {'0' if first else V(vO,16)}")
        for d in range(4, 8): e(f"v_cvt_pk_bf16_f32 v{vP+d}, v{S+2*d}, v{S+2*d+1}")
        if j == 0:
            for d in range(4, 8): e(f"v_and_b32 v{vP+d}, v{vP+d}, v{vMB+d}")
        if j == 8:
            for d in range(4, 8): e(f"v_bfi_b32 v{vP+d}, v{vMB+d}, 0, v{vP+d}")
        a.nop(2)
        e(f"{MF} {V(vO,16)}, {V(Vb+4,4)}, {V(vP+4,4)}, {V(vO,16)}")

    Lgen, Lfin = a.new("L_att_gen"), a.new("L_att_fin")
    bg = [("wo", k) for k in range(8)] + [("w1", k) for k in range(16)]
    if args.nobg == 1: bg = []
    def bg_issue(n, guard=False):
        for _ in range(n):
            if bg:
                kind, k = bg.pop(0)
                Ls = None
                if guard or (args.w1late and kind == "w1"):
                    Ls = a.new("L_bgs")
                    if guard: e(f"s_cbranch_vccz {Ls}")
                    if args.w1late and kind == "w1": e(f"s_bitcmp1_b32 s{sW}, 2"); e(f"s_cbranch_scc1 {Ls}")
                wo_dma() if kind == "wo" else w1_load(k)
                if Ls: a.lab(Ls)
    def exact_path(nmax):
        for g in range(4): e(f"ds_read_b128 {V(vS+4*g,4)}, v{vAQ} offset:{g*1024}")
        e(f"v_mov_b32 v{vM}, {NEG:#x}")
        e("s_waitcnt lgkmcnt(0)")
        Lp1 = a.new("L_p1done")
        for j in range(nmax):
            if j == 8:
                mf_read(8); e("s_waitcnt lgkmcnt(0)")
            smfma(j, V(Sb(j), 16) if j in (0, 8) else "0")
            a.nop(14)
            maxes(j)
            if j < nmax - 1:
                e(f"s_cmp_le_u32 s{sN}, {j+1}"); e(f"s_cbranch_scc1 {Lp1}")
        a.lab(Lp1)
        finish_max()
        Lp2 = a.new("L_p2done")
        for j in range(nmax):
            smfma(j, V(vCb,16)); vread(j)
            a.nop(12)
            tile2(j, j == 0)
            e("s_waitcnt lgkmcnt(0)")
            tile2b(j, j == 0)
            if j < nmax - 1:
                e(f"s_cmp_le_u32 s{sN}, {j+1}"); e(f"s_cbranch_scc1 {Lp2}")
        a.lab(Lp2)
    if args.nomax:
        Lup, Lgo, Lfd = a.new("L_bgup"), a.new("L_fastgo"), a.new("L_fastdone")
        e(f"s_cmp_eq_u32 s{sN}, 9"); e("s_cselect_b64 vcc, -1, 0")
        e(f"s_cbranch_vccnz {Lgo}")
        saved = list(bg)
        bg_issue(len(bg))
        bg.extend(saved)
        a.lab(Lgo)
        if args.p2prio:
            Lpr = a.new("L_prio")
            e(f"s_cmp_lt_u32 s{sW}, 4"); e(f"s_cbranch_scc1 {Lpr}")
            e("s_setprio 1")
            a.lab(Lpr)
        smfma(0, "0"); smfma(1, "0"); vread(0)
        bg_issue(3, True)
        a.nop(10)
        for j in range(9):
            if j + 2 <= 8: smfma(j + 2, "0")
            if j + 1 <= 8: vread(j + 1)
            bg_issue(args.bg2, True)
            tile2(j, j == 0)
            if j < 8: bg_issue(1, True)
            e(f"s_waitcnt lgkmcnt({2 if j < 8 else 0})")
            tile2b(j, j == 0)
            if args.p2prio and j == args.p2prio - 1: e("s_setprio 0")
            if j < 8:
                e(f"s_cmp_le_u32 s{sN}, {j+1}"); e(f"s_cbranch_scc1 {Lfd}")
        bg_issue(len(bg), True)
        a.lab(Lfd)
        if args.p2prio: e("s_setprio 0")
        a.nop(14)
        e(f"v_max3_f32 v{vM}, |v{vO}|, |v{vO+1}|, |v{vO+2}|")
        e(f"v_max3_f32 v{vM}, |v{vO+3}|, |v{vO+4}|, v{vM}")
        e(f"v_max3_f32 v{vM}, |v{vO+5}|, |v{vO+6}|, v{vM}")
        e(f"v_max_f32 v{vM}, |v{vO+7}|, v{vM}")
        e(f"s_mov_b32 s{sT0}, {f2u(2.0**-40):#x}"); e(f"s_mov_b32 s{sT0+1}, {f2u(2.0**40):#x}"); e(f"s_mov_b32 s{sT0+2}, {f2u(2.0**120):#x}")
        e(f"v_cmp_le_f32 vcc, s{sT0}, v{vO+8}")
        e(f"v_cmp_ge_f32 s[{sT0+10}:{sT0+11}], s{sT0+1}, v{vO+8}")
        e(f"s_and_b64 vcc, vcc, s[{sT0+10}:{sT0+11}]")
        e(f"v_cmp_ge_f32 s[{sT0+10}:{sT0+11}], s{sT0+2}, v{vM}")
        e(f"s_and_b64 vcc, vcc, s[{sT0+10}:{sT0+11}]")
        if args.forcefb: e("s_mov_b64 vcc, 0")
        e(f"s_cmp_eq_u64 vcc, -1"); e(f"s_cbranch_scc1 {Lfin}")
        e("s_waitcnt lgkmcnt(0)")
        exact_path(9)
    else:
        e(f"s_cmp_lt_u32 s{sN}, 9"); e(f"s_cbranch_scc1 {Lgen}")
        for g in range(4): e(f"ds_read_b128 {V(vS+4*g,4)}, v{vAQ} offset:{g*1024}")
        e(f"v_mov_b32 v{vM}, {NEG:#x}")
        e("s_waitcnt lgkmcnt(0)")
        saved = list(bg)
        for j in range(11):
            if j <= 8:
                if j == 8: e("s_waitcnt lgkmcnt(0)")
                smfma(j, V(Sb(j), 16) if j in (0, 8) else "0")
            bg_issue(args.bg1)
            if j == 2: a.nop(10)
            if j >= 2: maxes(j - 2)
            if j == 7: mf_read(8)
        finish_max()
        smfma(0, V(vCb,16)); smfma(1, V(vCb,16)); vread(0)
        a.nop(10)
        for j in range(9):
            if j + 2 <= 8: smfma(j + 2, V(vCb,16))
            if j + 1 <= 8: vread(j + 1)
            bg_issue(args.bg2)
            tile2(j, j == 0)
            e(f"s_waitcnt lgkmcnt({2 if j < 8 else 0})")
            tile2b(j, j == 0)
        bg_issue(len(bg))
        e(f"s_branch {Lfin}")
        a.lab(Lgen)
        bg.extend(saved); bg_issue(len(bg))
        exact_path(8)
    a.lab(Lfin)
    a.nop(14)
    e(f"v_rcp_f32 v{vM}, v{vO+8}"); a.nop(1)
    for r in range(8): e(f"v_mul_f32 v{vO+r}, v{vO+r}, v{vM}")
    for d in range(4): e(f"v_cvt_pk_bf16_f32 v{vP+d}, v{vO+2*d}, v{vO+2*d+1}")
    e(f"s_and_b32 s{sT0}, s{sW}, 3"); e(f"s_lshr_b32 s{sT0+1}, s{sW}, 2")
    e(f"s_lshl_b32 s{sT0+2}, s{sB}, 2"); e(f"s_add_u32 s{sT0+2}, s{sT0+2}, s{sT0}"); e(f"s_lshl_b32 s{sT0+2}, s{sT0+2}, 15")
    e(f"s_lshl_b32 s{sT0+3}, s{sI}, 11"); e(f"s_add_u32 s{sT0+2}, s{sT0+2}, s{sT0+3}")
    e(f"s_lshl_b32 s{sT0+3}, s{sT0+1}, 10"); e(f"s_add_u32 s{sT0+2}, s{sT0+2}, s{sT0+3}")
    e(f"s_add_u32 s{sT0+2}, s{sT0+2}, {OF}")
    moded(lambda fl: e(f"buffer_store_dwordx4 {V(vP,4)}, v{vL16}, {srd(sWS)}, s{sT0+2} offen{fl}"))
    fstamp("p2pre")
    e("s_waitcnt vmcnt(0)")
    e("s_barrier")
    fstamp("p2end")
    if args.prio and args.prio2 >= 0: e("s_setprio 0")
    e(f"s_cmp_ge_u32 s{sW}, 4"); e("s_cbranch_scc1 L_p3_helper")
    if args.prio: e(f"s_setprio {args.prio}")
    team_signal(1, 4)
    e(f"s_lshl_b32 s{sT0}, s{sW}, 14"); e(f"v_add_u32 v6, s{sT0}, v{vL16}")
    for k in range(16): e(f"ds_write_b128 v6, {V(vSTG+4*k,4)} offset:{k*1024}")
    if STOP == 2:
        e("s_waitcnt vmcnt(0) lgkmcnt(0)"); e("s_branch L_end")

    def n64_bases(vmine, vother, lds_base_sreg):
        tr_base_common(vmine, vother, 6)
        e(f"v_bfe_u32 v6, v{vmine}, 1, 1")
        e(f"v_lshl_add_u32 v{vother}, v{vmine}, 7, v{vother}")
        e(f"s_lshr_b32 s{sT0+3}, s{sW}, 1")
        e(f"v_xor_b32 v6, s{sT0+3}, v6")
        e(f"v_lshl_add_u32 v{vmine}, v6, 6, v{vother}")
        e(f"v_xor_b32 v6, 1, v6")
        e(f"v_lshl_add_u32 v{vother}, v6, 6, v{vother}")
        e(f"v_add_u32 v{vmine}, s{lds_base_sreg}, v{vmine}")
        e(f"v_add_u32 v{vother}, s{lds_base_sreg}, v{vother}")
    def unpack_res(dst, bias):
        for d in range(8):
            e(f"v_lshlrev_b32 v{dst+2*d}, 16, v{vRES+d}")
            e(f"v_and_b32 v{dst+2*d+1}, 0xffff0000, v{vRES+d}")
        if bias is not None:
            for p in range(8): e(f"v_pk_add_f32 {V(dst+2*p,2)}, {V(dst+2*p,2)}, {V(bias+2*p,2)}")

    def exchange_and_epilogue(is_p5):
        accM, accO = 16, 32
        nm = "p5" if is_p5 else "p3"
        a.nop(12)
        e(f"s_lshl_b32 s{sT0}, s{sW}, 12"); e(f"s_add_u32 s{sT0}, s{sT0}, {L_EX}")
        e(f"v_add_u32 v6, s{sT0}, v{vL16}")
        for q in range(4): e(f"ds_write_b128 v6, {V(accO+4*q,4)} offset:{q*1024}")
        tile_ids()
        e(f"s_lshl_b32 s{sT0}, s{sT0+4}, 15")
        e(f"s_and_b32 s{sT0+1}, s{sI}, 7"); e(f"s_lshl_b32 s{sT0+2}, s{sT0+1}, 12"); e(f"s_add_u32 s{sT0}, s{sT0}, s{sT0+2}")
        e(f"s_lshl_b32 s{sT0+2}, s{sT0+3}, 11"); e(f"s_add_u32 s{sT0}, s{sT0}, s{sT0+2}")
        e(f"s_add_u32 s{sT0}, s{sT0}, {XF if is_p5 else X2F}")
        e(f"s_lshl_b32 s{sT0+5}, s{sT0+4}, 12")
        e(f"s_lshl_b32 s{sT0+2}, s{sT0+1}, 9"); e(f"s_add_u32 s{sT0+5}, s{sT0+5}, s{sT0+2}")
        e(f"s_lshl_b32 s{sT0+2}, s{sT0+3}, 8"); e(f"s_add_u32 s{sT0+5}, s{sT0+5}, s{sT0+2}")
        e(f"s_add_u32 s{sT0+5}, s{sT0+5}, {ST1 if is_p5 else ST2}")
        e(f"s_xor_b32 s{sT0+6}, s{sW}, 2"); e(f"s_lshl_b32 s{sT0+6}, s{sT0+6}, 12"); e(f"s_add_u32 s{sT0+6}, s{sT0+6}, {L_EX}")
        e(f"v_add_u32 v7, s{sT0+6}, v{vL16}")
        e(f"v_and_b32 v10, 31, v{vLANE}"); e(f"v_lshlrev_b32 v10, 3, v10")
        e("s_waitcnt lgkmcnt(0)")
        e("s_barrier")
        fstamp(nm + "x")
        for q in range(4): e(f"ds_read_b128 {V(accO+4*q,4)}, v7 offset:{q*1024}")
        for q in range(4):
            e(f"s_waitcnt lgkmcnt({3-q})")
            e(f"v_pk_add_f32 {V(accM+4*q,2)}, {V(accM+4*q,2)}, {V(accO+4*q,2)}")
            e(f"v_pk_add_f32 {V(accM+4*q+2,2)}, {V(accM+4*q+2,2)}, {V(accO+4*q+2,2)}")
        for d in range(8): e(f"v_cvt_pk_bf16_f32 v{vRES+d}, v{accM+2*d}, v{accM+2*d+1}")
        def st_data(fl):
            e(f"buffer_store_dwordx4 {V(vRES,4)}, v{vL16}, {srd(sWS)}, s{sT0} offen{fl}")
            e(f"buffer_store_dwordx4 {V(vRES+4,4)}, v{vL16}, {srd(sWS)}, s{sT0} offen offset:1024{fl}")
        def stats():
            e(f"v_pk_mul_f32 {V(32,2)}, {V(accM,2)}, {V(accM,2)}")
            e(f"v_pk_add_f32 {V(34,2)}, {V(accM,2)}, {V(accM+2,2)}")
            e(f"v_pk_fma_f32 {V(32,2)}, {V(accM+2,2)}, {V(accM+2,2)}, {V(32,2)}")
            for p in range(2, 8):
                e(f"v_pk_add_f32 {V(34,2)}, {V(34,2)}, {V(accM+2*p,2)}")
                e(f"v_pk_fma_f32 {V(32,2)}, {V(accM+2*p,2)}, {V(accM+2*p,2)}, {V(32,2)}")
            e("v_add_f32 v8, v34, v35"); e("v_add_f32 v9, v32, v33")
            e("v_mov_b32 v12, v8"); e("v_mov_b32 v13, v9"); a.nop(2)
            e("v_permlane32_swap_b32 v12, v8"); e("v_permlane32_swap_b32 v13, v9"); a.nop(1)
            e(f"v_pk_add_f32 {V(8,2)}, {V(8,2)}, {V(12,2)}")
        def st_stats(fl):
            e(f"s_mov_b64 exec, {sp(sM32)}")
            e(f"buffer_store_dwordx2 v[8:9], v10, {srd(sWS)}, s{sT0+5} offen{fl}")
            e("s_mov_b64 exec, -1")
        def normal(delta):
            moded(st_data); stats(); moded(st_stats)
            fstamp(nm + "pre")
            e("s_waitcnt vmcnt(0)")
            fstamp(nm + "drain")
            team_signal(delta, 4)
        if is_p5:
            Lf, Lj = a.new("L_final"), a.new("L_fj")
            e(f"s_cmp_eq_u32 s{sL}, 1"); e(f"s_cbranch_scc1 {Lf}")
            normal(4)
            e(f"s_branch {Lj}")
            a.lab(Lf)
            e(f"v_and_b32 v10, 31, v{vLANE}"); e(f"v_lshlrev_b32 v10, 10, v10")
            e(f"v_lshrrev_b32 v11, 5, v{vLANE}"); e(f"v_lshl_add_u32 v10, v11, 3, v10")
            e(f"s_lshl_b32 s{sT0}, s{sT0+4}, 15")
            e(f"s_lshl_b32 s{sT0+2}, s{sT0+1}, 7"); e(f"s_add_u32 s{sT0}, s{sT0}, s{sT0+2}")
            e(f"s_lshl_b32 s{sT0+2}, s{sT0+3}, 6"); e(f"s_add_u32 s{sT0}, s{sT0}, s{sT0+2}")
            for g in range(4):
                e(f"buffer_store_dwordx2 {V(vRES+2*g,2)}, v10, {srd(sOUT)}, s{sT0} offen offset:{g*16}")
            e("s_branch L_end")
            a.lab(Lj)
        else:
            normal(2)

    unpack_res(48, None)
    e("s_waitcnt lgkmcnt(0)")
    team_wait(1, 4)
    fstamp("p3poll")
    tile_ids()
    e(f"s_lshl_b32 s{sT0+2}, s{sT0+3}, 4")
    x_setup(OF, 32, sT0+2, sT0+4)
    for k in range(XA): x_load(k, 64 + 4*k)
    e(f"s_lshl_b32 s{sT0+8}, s{sT0+3}, 15"); e(f"s_add_u32 s{sT0+8}, s{sT0+8}, {L_WO}")
    n64_bases(4, 5, sT0+8)
    vWf = 128
    def wread3(s):
        dst = vWf + 8*(s % 3); off = s*2048
        e(f"ds_read_b64_tr_b16 {V(dst,2)}, v4 offset:{off}"); e(f"ds_read_b64_tr_b16 {V(dst+2,2)}, v4 offset:{off+1024}")
        e(f"ds_read_b64_tr_b16 {V(dst+4,2)}, v5 offset:{off}"); e(f"ds_read_b64_tr_b16 {V(dst+6,2)}, v5 offset:{off+1024}")
    wread3(0); wread3(1)
    for s in range(16):
        e(f"s_waitcnt vmcnt({min(XA, 16-s)-1})")
        if s == 0: fstamp("p3x0")
        if s + XA < 16: x_load(s + XA, 64 + 4*(s + XA))
        if s + 2 < 16: wread3(s + 2)
        e(f"s_waitcnt lgkmcnt({4*min(2, 15-s)})")
        w = vWf + 8*(s % 3); x = 64 + 4*s
        e(f"{MF} v[16:31], {V(w,4)}, {V(x,4)}, {'v[48:63]' if s == 0 else 'v[16:31]'}")
        e(f"{MF} v[32:47], {V(w+4,4)}, {V(x,4)}, {'0' if s == 0 else 'v[32:47]'}")
    fstamp("p3main")
    exchange_and_epilogue(False)
    if STOP == 3:
        e("s_waitcnt vmcnt(0) lgkmcnt(0)"); e("s_branch L_end")
    e("s_branch L_p4_compute")

    a.lab("L_p3_helper")
    if STOP == 2: e("s_branch L_end")
    if args.w1late:
        for k in range(16): w1_load(k)
    if args.pfb: l2_prefetch(sWS, 57344, 14, dst=48, base=PK2)
    e("s_barrier")
    if STOP == 3: e("s_branch L_end")
    if args.w1late: e("s_waitcnt vmcnt(0)")
    e(f"s_lshl_b32 s{sT0}, s{sW}, 14"); e(f"v_add_u32 v6, s{sT0}, v{vL16}")
    for k in range(16): e(f"ds_write_b128 v6, {V(vSTG+4*k,4)} offset:{k*1024}")
    e(f"s_sub_u32 s{sT0}, s{sW}, 4")
    e(f"s_lshr_b32 s{sT0+1}, s{sT0}, 1"); e(f"s_and_b32 s{sT0+2}, s{sT0}, 1")
    e(f"s_mul_i32 s{sW1S}, s{sT0+1}, {112*1024}"); e(f"s_lshl_b32 s{sT0+4}, s{sT0+2}, 13"); e(f"s_add_u32 s{sW1S}, s{sW1S}, s{sT0+4}")
    e(f"s_and_b32 s{sT0+4}, s{sI}, 7"); e(f"s_mul_i32 s{sT0+4}, s{sT0+4}, {224*1024}"); e(f"s_add_u32 s{sW1S}, s{sW1S}, s{sT0+4}")
    e(f"s_add_u32 s{sW1S}, s{sW1S}, {PK2}")
    e("s_waitcnt lgkmcnt(0)")
    e("s_barrier")
    def w2_load(q, k, sleep=0):
        e(f"buffer_load_dwordx4 {V(16+32*q+4*k,4)}, v{vL16}, {srd(sWS)}, s{sW1S} offen offset:{(k%4)*1024} sc1")
        if k == 3: e(f"s_add_u32 s{sW1S}, s{sW1S}, 4096")
        if k == 7: e(f"s_add_u32 s{sW1S}, s{sW1S}, {16*1024 - 4096}")
        if sleep: e(f"s_sleep {sleep}")
    Lcs, Lw2d = a.new("L_cs4"), a.new("L_w2done")
    e(f"s_cmp_lg_u32 s{sL}, 0"); e(f"s_cbranch_scc1 {Lcs}")
    colsum_init("n128"); pass
    for q in range(4): colsum_chunk("n128", 208, q == 0, extra=lambda k, q=q: w2_load(q, k, args.w2sleep))
    colsum_fin("n128"); pass
    e("s_barrier")
    for q in range(4, args.w2pre):
        for k in range(8): w2_load(q, k, args.w2sleep)
    e(f"s_branch {Lw2d}")
    a.lab(Lcs)
    W2S = [int(x) for x in args.w2s.split(",")] if args.w2s else [args.w2sleep]*7
    for q in range(args.w2pre):
        for k in range(8): w2_load(q, k, W2S[q])
    a.lab(Lw2d)
    if args.pfq:
        Lnq = a.new("L_nopfq")
        e(f"s_cmp_eq_u32 s{sL}, 1"); e(f"s_cbranch_scc1 {Lnq}")
        l2_prefetch(sWS, 49152, 12, dst=244, base=PKQ)
        a.lab(Lnq)
    e("s_barrier")
    if STOP == 4: e("s_branch L_end")
    if args.w2late == 0:
        for q in range(args.w2pre, 7):
            for k in range(8): w2_load(q, k)
    e(f"s_sub_u32 s{sT0}, s{sW}, 4"); e(f"s_lshl_b32 s{sT0}, s{sT0}, 13"); e(f"v_add_u32 v6, s{sT0}, v{vL16}")
    e("v_add_u32 v7, 65536, v6")
    issued = {"n": 7 if args.w2late == 0 else args.w2pre}
    def ring_write(q):
        y = 8*(issued["n"] - 1 - q)
        extra = 12 if (args.pfq and q < args.w2pre) else 0
        if extra:
            La, Lb = a.new("L_wa"), a.new("L_wb")
            e(f"s_cmp_eq_u32 s{sL}, 1"); e(f"s_cbranch_scc1 {La}")
            e(f"s_waitcnt vmcnt({min(63, y + extra)})"); e(f"s_branch {Lb}")
            a.lab(La); e(f"s_waitcnt vmcnt({y})"); a.lab(Lb)
        else:
            e(f"s_waitcnt vmcnt({y})")
        slot = (q % 4) * 32768
        for k in range(8):
            if args.p5now: break
            e(f"ds_write_b128 v{6 if slot < 65536 else 7}, {V(16+32*q+4*k,4)} offset:{slot % 65536 + k*1024}")
    PF = args.ringpre
    for q in range(PF): ring_write(q)
    e("s_waitcnt lgkmcnt(0)")
    for q in range(7):
        e("s_barrier")
        if q == 0 and args.w2late == 1:
            for qq in range(args.w2pre, 7):
                for k in range(8): w2_load(qq, k)
            issued["n"] = 7
        nxt = [c for c in range(PF, 7) if (c == q + 1 and c < 4) or (c >= 4 and c == q + 2)]
        for c in nxt: ring_write(c)
        if nxt: e("s_waitcnt lgkmcnt(0)")
    e("s_barrier")
    e(f"s_cmp_eq_u32 s{sL}, 1"); e("s_cbranch_scc1 L_end")
    if STOP == 5: e("s_branch L_end")
    dma_wqkv_packed(0, 16)
    e(f"s_mov_b32 s{sL}, 1"); e(f"s_mov_b32 s{sKVO}, {LSTRIDE}")
    e("s_branch L_p1_helper_l1")

    a.lab("L_p4_compute")
    Lidle, Lp4e = a.new("L_p4idle"), a.new("L_p4end")
    e(f"s_cmp_ge_u32 s{sI}, 14"); e(f"s_cbranch_scc1 {Lidle}")
    team_wait(2, 4)
    fstamp("p4poll")
    vX = 80; vAcc = 16; vWf = 208
    e(f"s_lshl_b32 s{sT0+4}, s{sB}, 2"); e(f"s_add_u32 s{sT0+4}, s{sT0+4}, s{sW}")
    x_setup(X2F, 32, None, sT0+4)
    for k in range(XA): x_load(k, vX + 4*k)
    load_stats(ST2, 232, 4, sT0+4)
    tr_base_common(4, 5, 6)
    e("v_lshl_add_u32 v5, v4, 8, v5"); e("v_and_b32 v8, 3, v4")
    for ft in range(4):
        e(f"v_xor_b32 v9, {ft}, v8"); e(f"v_lshl_add_u32 v{10+ft}, v9, 6, v5")
    vA, vB = 4, 6
    e(f"v_lshrrev_b32 v8, 5, v{vLANE}"); e("v_lshlrev_b32 v8, 4, v8"); e(f"v_add_u32 v8, {L_CS4}, v8")
    e(f"s_mul_i32 s{sT0}, s{sT0+4}, {112*1024}")
    e(f"s_lshl_b32 s{sT0+1}, s{sI}, 13"); e(f"s_add_u32 s{sT0}, s{sT0}, s{sT0+1}"); e(f"s_add_u32 s{sT0}, s{sT0}, {HF}")
    e("s_barrier")
    class Lg:
        n = 0
    def lds(instr):
        e(instr); Lg.n += 1; return Lg.n
    def lwait(k):
        e(f"s_waitcnt lgkmcnt({min(15, Lg.n - k)})")
    NS = 6; PRE = NS - 1
    seq = [(s, ft) for s in range(32) for ft in range(3)] + [(s, 3) for s in range(32)]
    rid = {}
    def slot4(n): return vWf + 4*(n % NS)
    bumped = set()
    def issue4(n):
        s, ft = seq[n]
        if s >= 16 and ft not in bumped:
            e(f"v_add_u32 v{10+ft}, 65536, v{10+ft}"); bumped.add(ft)
        off = (s % 16) * 4096; dst = slot4(n)
        lds(f"ds_read_b64_tr_b16 {V(dst,2)}, v{10+ft} offset:{off}")
        rid[n] = lds(f"ds_read_b64_tr_b16 {V(dst+2,2)}, v{10+ft} offset:{off+2048}")
    gid = {}
    def grp_reads(G):
        ft, g = divmod(G, 4); b = 232 + 8*(G % 2)
        lds(f"ds_read_b128 {V(b,4)}, v8 offset:{ft*128 + g*32}")
        gid[G] = lds(f"ds_read_b128 {V(b+4,4)}, v8 offset:{512 + ft*128 + g*32}")
    def store_tile(ft):
        acc = vAcc + 16*ft
        if ft == 2: e(f"s_add_u32 s{sT0}, s{sT0}, 4096")
        def st4(fl):
            e(f"buffer_store_dwordx4 {V(acc,4)}, v{vL16}, {srd(sWS)}, s{sT0} offen offset:{(ft%2)*2048}{fl}")
            e(f"buffer_store_dwordx4 {V(acc+4,4)}, v{vL16}, {srd(sWS)}, s{sT0} offen offset:{(ft%2)*2048+1024}{fl}")
        moded(st4)
    items = []
    for G in range(12):
        ft, g = divmod(G, 4); b = 232 + 8*(G % 2); acc = vAcc + 16*ft
        items.append(("wait", G))
        for i in range(4):
            r = acc + 4*g + i
            items.append(("v", f"v_fma_f32 v{r}, v{r}, v{vA}, v{b+4+i}"))
            items.append(("v", f"v_fma_f32 v{r}, -v{vB}, v{b+i}, v{r}"))
        items.append(("next", G + 2))
        for i in range(4):
            r = acc + 4*g + i
            items.append(("v", f"v_max_f32 v{r}, 0, v{r}"))
            items.append(("v", f"v_mul_f32 v{r}, v{r}, v{r}"))
        for dd in range(2):
            d = 2*g + dd
            items.append(("v", f"v_cvt_pk_bf16_f32 v{acc+d}, v{acc+2*d}, v{acc+2*d+1}"))
        if g == 3: items.append(("st", ft))
    nv = sum(1 for it in items if it[0] == "v")
    def run_items(budget):
        done = 0
        while items and done < budget:
            it = items.pop(0)
            if it[0] == "v": e(it[1]); done += 1
            elif it[0] == "wait": lwait(gid[it[1]])
            elif it[0] == "next":
                if it[1] < 16: grp_reads(it[1])
            elif it[0] == "st": store_tile(it[1])
    for n in range(PRE): issue4(n)
    for n, (s, ft) in enumerate(seq):
        passB = n >= 96
        if not passB and ft == 0:
            e(f"s_waitcnt vmcnt({XA + 7 if s < XA else min(XA, 32-s)-1})")
            if s == 0: fstamp("p4x0")
            if s + XA < 32: x_load(s + XA, vX + 4*(s + XA))
        if not passB and ft == 1 and s == XA:
            reduce_partials(232); finish_stats(232, vA, vB)
        if n == 96:
            fstamp("p4A")
            Lnb4 = a.new("L_nob4b")
            e(f"s_cmp_lg_u32 s{sL}, 0"); e(f"s_cbranch_scc1 {Lnb4}")
            e("s_barrier")
            a.lab(Lnb4)
            grp_reads(0); grp_reads(1)
        lwait(rid[n])
        acc = vAcc + 16*ft; x = vX + 4*s; w = slot4(n)
        e(f"{MF} {V(acc,16)}, {V(w,4)}, {V(x,4)}, {'0' if s == 0 else V(acc,16)}")
        if n + PRE < len(seq): issue4(n + PRE)
        if n == 96: a.nop(10)
        if passB and n > 96: run_items(7)
    run_items(10**6)
    fstamp("p4main")
    e("s_barrier")
    acc = vAcc + 48
    for G in range(12, 16):
        g = G - 12; b = 232 + 8*(G % 2)
        lwait(gid[G])
        if G == 12: a.nop(8)
        for p in range(2):
            r = acc + 4*g + 2*p
            e(f"v_pk_fma_f32 {V(r,2)}, {V(r,2)}, {V(vA,2)}, {V(b+4+2*p,2)} op_sel_hi:[1,0,1]")
            e(f"v_pk_fma_f32 {V(r,2)}, {V(b+2*p,2)}, {V(vB,2)}, {V(r,2)} op_sel_hi:[1,0,1] neg_lo:[0,1,0] neg_hi:[0,1,0]")
        if G + 2 < 16: grp_reads(G + 2)
        for p in range(2):
            r = acc + 4*g + 2*p
            e(f"v_max_f32 v{r}, 0, v{r}"); e(f"v_max_f32 v{r+1}, 0, v{r+1}")
            e(f"v_pk_mul_f32 {V(r,2)}, {V(r,2)}, {V(r,2)}")
        for dd in range(2):
            d = 2*g + dd
            e(f"v_cvt_pk_bf16_f32 v{acc+d}, v{acc+2*d}, v{acc+2*d+1}")
    store_tile(3)
    fstamp("p4pre")
    e("s_waitcnt vmcnt(0)")
    fstamp("p4drain")
    e(f"s_branch {Lp4e}")
    a.lab(Lidle)
    e("s_barrier")
    Lnb4i = a.new("L_nob4bi")
    e(f"s_cmp_lg_u32 s{sL}, 0"); e(f"s_cbranch_scc1 {Lnb4i}")
    e("s_barrier")
    a.lab(Lnb4i)
    e("s_barrier")
    a.lab(Lp4e)
    team_signal(3, 4)
    fstamp("p4flag")
    if STOP == 4:
        e("s_waitcnt vmcnt(0) lgkmcnt(0)"); e("s_branch L_end")

    e(f"v_lshrrev_b32 v7, 5, v{vLANE}"); e(f"v_lshlrev_b32 v7, 4, v7")
    e(f"s_lshr_b32 s{sT0}, s{sW}, 1"); e(f"s_lshl_b32 s{sT0}, s{sT0}, 7"); e(f"s_add_u32 s{sT0}, s{sT0}, {L_B2}")
    e(f"v_add_u32 v7, s{sT0}, v7")
    for g in range(4): e(f"ds_read_b128 {V(32+4*g,4)}, v7 offset:{g*32}")
    e("s_waitcnt lgkmcnt(0)")
    unpack_res(48, 32)
    fstamp("p5pp")
    team_wait(3, 4)
    if args.fine and "p5cnt" in args.fine.split(","):
        k = args.fine.split(",").index("p5cnt"); e(f"s_mov_b32 s{64+2*k}, s{sCNT}")
    fstamp("p5poll")
    tile_ids()
    e(f"s_mul_i32 s{sT0+2}, s{sT0+3}, 56")
    NX = args.xahead5
    x_setup(HF, 112, sT0+2, sT0+4)
    def x5(k):
        if args.p5nox and k >= NX: return
        x_load(k, 64 + 4*(k % NX))
    for k in range(NX): x5(k)
    e(f"s_lshl_b32 s{sT0+8}, s{sT0+3}, 14")
    n64_bases(4, 5, sT0+8)
    e("v_add_u32 v8, 65536, v4"); e("v_add_u32 v9, 65536, v5")
    vWf = 176
    def wread5(s):
        q, ss = divmod(s, 8); dst = vWf + 8*(s % 3); off = (q % 4)*32768 + ss*2048
        b0, b1 = (8, 9) if off >= 65536 else (4, 5); off %= 65536
        e(f"ds_read_b64_tr_b16 {V(dst,2)}, v{b0} offset:{off}"); e(f"ds_read_b64_tr_b16 {V(dst+2,2)}, v{b0} offset:{off+1024}")
        e(f"ds_read_b64_tr_b16 {V(dst+4,2)}, v{b1} offset:{off}"); e(f"ds_read_b64_tr_b16 {V(dst+6,2)}, v{b1} offset:{off+1024}")
    e("s_barrier")
    fstamp("p5B")
    wread5(0); wread5(1)
    for s in range(56):
        e(f"s_waitcnt vmcnt({min(56, s + NX) - s - 1})")
        if s + 2 < 56:
            if (s + 2) % 8 == 0: e("s_barrier")
            wread5(s + 2)
        e(f"s_waitcnt lgkmcnt({4*min(2, 55-s)})")
        w = vWf + 8*(s % 3); x = 64 + 4*(s % NX)
        e(f"{MF} v[16:31], {V(w,4)}, {V(x,4)}, {'v[48:63]' if s == 0 else 'v[16:31]'}")
        e(f"{MF} v[32:47], {V(w+4,4)}, {V(x,4)}, {'0' if s == 0 else 'v[32:47]'}")
        if s + NX < 56: x5(s + NX)
    fstamp("p5main")
    exchange_and_epilogue(True)
    if STOP == 5:
        e("s_waitcnt vmcnt(0) lgkmcnt(0)"); e("s_branch L_end")
    e(f"s_mov_b32 s{sL}, 1"); e(f"s_mov_b32 s{sKVO}, {LSTRIDE}")
    e("s_branch L_p1_l1")
    a.lab("L_end")
    if args.fine:
        n = len(args.fine.split(","))
        e("s_waitcnt lgkmcnt(0)")
        e("s_cmp_ge_u32 s2, 256"); e("s_cbranch_scc1 L_end2")
        e(f"s_lshl_b32 s98, s2, 3"); e(f"s_add_u32 s98, s98, s{sW}"); e(f"s_lshl_b32 s98, s98, 8"); e(f"s_add_u32 s98, s98, {STAMP}")
        e("v_mov_b32 v3, 0"); e("s_mov_b64 exec, 1")
        for k in range(n):
            e(f"v_mov_b32 v2, s{64+2*k}")
            e(f"buffer_store_dword v2, v3, {srd(sWS)}, s98 offen offset:{4*k}"); e("s_nop 1")
        a.lab("L_end2")
    e("s_endpgm")
    return a.text()

HEADER = """; Fused 2-layer (sliding-window attention + squared-ReLU MLP) megakernel for gfx950.
; @launch grid=(256,1,1) block=(512,1,1) lds=163840
.amdgcn_target "amdgcn-amd-amdhsa--gfx950"
.text
.globl {n}_kernel
.p2align 8
.type {n}_kernel,@function
{n}_kernel:
"""
FOOTER = """.section .rodata,"a"
.p2align 6
.amdhsa_kernel {n}_kernel
  .amdhsa_next_free_vgpr 256
  .amdhsa_next_free_sgpr 102
  .amdhsa_accum_offset 256
  .amdhsa_group_segment_fixed_size 0
  .amdhsa_kernarg_size 88
  .amdhsa_user_sgpr_count 2
  .amdhsa_user_sgpr_kernarg_segment_ptr 1
  .amdhsa_system_sgpr_workgroup_id_x 1
.end_amdhsa_kernel
"""
def parse(argv=None):
    ap = argparse.ArgumentParser()
    ap.add_argument("--stop", type=int, default=-1)
    ap.add_argument("--slow", action="store_true")
    ap.add_argument("--dbgq", action="store_true")
    ap.add_argument("--rt", action="store_true")
    ap.add_argument("--fine", default="")
    ap.add_argument("--xahead", type=int, default=8)
    ap.add_argument("--xahead0", type=int, default=12)
    ap.add_argument("--xahead5", type=int, default=12)
    ap.add_argument("--w2sleep", type=int, default=1)
    ap.add_argument("--nobg", type=int, default=0)
    ap.add_argument("--w1late", type=int, default=0)
    ap.add_argument("--psleep", type=int, default=1)
    ap.add_argument("--kvsleep", type=int, default=1)
    ap.add_argument("--p2prio", type=int, default=0)
    ap.add_argument("--pfa", type=int, default=0)
    ap.add_argument("--pfa_n", type=int, default=40)
    ap.add_argument("--pfb", type=int, default=0)
    ap.add_argument("--hpre", type=int, default=0)
    ap.add_argument("--nomax", type=int, default=1)
    ap.add_argument("--forcefb", type=int, default=0)
    ap.add_argument("--w2pre", type=int, default=7)
    ap.add_argument("--w2late", type=int, default=0)
    ap.add_argument("--ringpre", type=int, default=4)
    ap.add_argument("--w2s", default="2,2,2,2,1,1,1")
    ap.add_argument("--prio", type=int, default=0)
    ap.add_argument("--prio2", type=int, default=0)
    ap.add_argument("--p5nox", type=int, default=0)
    ap.add_argument("--p5now", type=int, default=0)
    ap.add_argument("--bg1", type=int, default=1)
    ap.add_argument("--bg2", type=int, default=1)
    ap.add_argument("--bgorder", type=int, default=0)
    ap.add_argument("--pf0", type=int, default=0)
    ap.add_argument("--pfq", type=int, default=1)
    ap.add_argument("-o", default="/dev/stdout")
    return ap.parse_args(argv)
if __name__ == "__main__":
    args = parse()
    open(args.o, "w").write(HEADER.format(n=NAME) + build(args) + FOOTER.format(n=NAME))
```

```python
import sys, argparse, struct

NAME = "interleave_layers__sliding_block__dense_activation_squared_relu__prompt"

CTRL = 0x0
C_KV  = 1024
REGA = 0x18000
STAMP= 0x20000
XF   = 0x100000
X2F  = 0x300000
OF   = 0x500000
ST1  = 0x700000
ST2  = 0x740000
KF   = 0x800000
VF   = 0xC00000
HF   = 0x1000000
LSTRIDE = 0x200000
PKQ  = 0x1800000
PKO  = 0x1A00000
PK1  = 0x1B00000
PK2  = 0x1D00000

L_KST  = 0
L_VST  = 24576
L_QST  = 49152
L_WO   = 65536
L_EX   = 131072
L_STA  = 147456
L_MD   = 151552
L_MF   = L_MD + 4096
L_MB   = L_MF + 4096
L_CS1  = L_MB + 2048
L_CS4  = L_CS1 + 512
L_B1   = L_CS4 + 512
L_B2   = L_B1 + 512
L_MODE = L_B2 + 256
LDS_BYTES = 163840
assert L_MODE + 16 <= LDS_BYTES

NEG = 0xF149F2CA
QSCALE = 0.25 * 1.4426950408889634
def f2u(f): return struct.unpack("<I", struct.pack("<f", f))[0]

sWS, sWQ, sWO, sW1, sW2, sX, sOUT, sDBG, sTS = 8, 12, 16, 20, 24, 28, 32, 36, 40
sB, sI, sW, sMODE, sL, sTEAM, sMYF, sFAIL = 44, 45, 46, 47, 48, 49, 50, 51
sT0 = 52
sKA = 64
sM16, sM32 = 86, 88
sTGT, sCNT, sXCC, sN, sKVO, sNONCE = 90, 91, 92, 93, 94, 95
sXS = 61
sW1S = 60
def srd(x): return f"s[{x}:{x+3}]"
def sp(x): return f"s[{x}:{x+1}]"
def V(a, n=1): return f"v{a}" if n == 1 else f"v[{a}:{a+n-1}]"

vLANE, vL16 = 0, 1
vRES = 248
vSTG = 180

class Asm:
    def __init__(self): self.l = []; self.uid = 0
    def e(self, s): self.l.append("  " + s)
    def lab(self, s): self.l.append(s + ":")
    def new(self, p="L"):
        self.uid += 1; return f"{p}_{self.uid}"
    def text(self): return "\n".join(self.l) + "\n"
    def nop(self, n):
        while n > 0:
            k = min(n, 16); self.e(f"s_nop {k-1}"); n -= k

def build(args):
    a = Asm(); e = a.e
    STOP = args.stop
    POLL_LIMIT = 1 << 18
    XA = args.xahead
    MF = "v_mfma_f32_32x32x16_bf16"

    def fstamp(name):
        if not args.fine or name not in args.fine.split(","): return
        k = args.fine.split(",").index(name)
        if name.endswith("cnt"): return
        e(f"s_memrealtime s[{64+2*k}:{65+2*k}]" if args.rt else f"s_memtime s[{64+2*k}:{65+2*k}]")

    def poll(voff, soff, tgt, vtmp, sleep=1):
        L = a.new("L_poll"); D = a.new("L_pdone")
        e(f"s_mov_b32 s{sCNT}, {POLL_LIMIT}")
        e(f"s_cmp_eq_u32 s{sFAIL}, 0"); e(f"s_cbranch_scc0 {D}")
        a.lab(L)
        e(f"buffer_load_dword v{vtmp}, v{voff}, {srd(sWS)}, s{soff} offen sc1")
        e("s_waitcnt vmcnt(0)")
        e(f"v_cmp_gt_u32 vcc, s{tgt}, v{vtmp}")
        e(f"s_cbranch_vccz {D}")
        if sleep: e(f"s_sleep {sleep}")
        e(f"s_sub_u32 s{sCNT}, s{sCNT}, 1"); e(f"s_cbranch_scc0 {L}")
        e(f"s_mov_b32 s{sFAIL}, 1")
        a.lab(D)

    def poll64(voff, soff, tgt, vtmp, sleep=2):
        L = a.new("L_poll"); D = a.new("L_pdone")
        e(f"s_mov_b32 s{sCNT}, {POLL_LIMIT}")
        e(f"s_cmp_eq_u32 s{sFAIL}, 0"); e(f"s_cbranch_scc0 {D}")
        a.lab(L)
        e(f"buffer_load_dwordx2 v[{vtmp}:{vtmp+1}], v{voff}, {srd(sWS)}, s{soff} offen sc1")
        e("s_waitcnt vmcnt(0)")
        e(f"v_subrev_u32 v{vtmp+2}, s{tgt}, v{vtmp+1}")
        e(f"v_cmp_ne_u32 vcc, s{sNONCE}, v{vtmp}")
        e(f"v_cmp_lt_u32 s[{sT0+10}:{sT0+11}], 31, v{vtmp+2}")
        e(f"s_or_b64 vcc, vcc, s[{sT0+10}:{sT0+11}]")
        e(f"s_cbranch_vccz {D}")
        if sleep: e(f"s_sleep {sleep}")
        e(f"s_sub_u32 s{sCNT}, s{sCNT}, 1"); e(f"s_cbranch_scc0 {L}")
        e(f"s_mov_b32 s{sFAIL}, 1")
        a.lab(D)

    def nonce_poll(v):
        L = a.new("L_npoll"); D = a.new("L_ndone")
        e(f"v_mov_b32 v{v}, 0")
        e(f"s_mov_b32 s{sCNT}, {POLL_LIMIT}")
        a.lab(L)
        e(f"buffer_load_dword v{v+1}, v{v}, {srd(sDBG)}, 0 offen sc1")
        e("s_waitcnt vmcnt(0)")
        e(f"v_readfirstlane_b32 s{sNONCE}, v{v+1}")
        e(f"s_cmp_lg_u32 s{sNONCE}, 0"); e(f"s_cbranch_scc1 {D}")
        e("s_sleep 2")
        e(f"s_sub_u32 s{sCNT}, s{sCNT}, 1"); e(f"s_cbranch_scc0 {L}")
        e(f"s_mov_b32 s{sFAIL}, 1")
        a.lab(D)

    def moded(fn):
        F = a.new("L_fast"); J = a.new("L_join")
        e(f"s_cmp_eq_u32 s{sMODE}, 1"); e(f"s_cbranch_scc1 {F}")
        fn(" sc1"); e(f"s_branch {J}")
        a.lab(F); fn(""); a.lab(J)

    def team_wait(delta, vt):
        e(f"s_lshl_b32 s{sTGT}, s{sL}, 2")
        e(f"s_add_u32 s{sTGT}, s{sTGT}, {delta}")
        e(f"v_lshlrev_b32 v{vt}, 2, v{vLANE}")
        poll(vt, sTEAM, sTGT, vt + 1, sleep=args.psleep)

    def team_signal(delta, vt):
        e(f"s_lshl_b32 s{sT0}, s{sL}, 2")
        e(f"s_add_u32 s{sT0}, s{sT0}, {delta}")
        e(f"v_mov_b32 v{vt}, s{sT0}"); e(f"v_mov_b32 v{vt+1}, 0")
        e("s_mov_b64 exec, 1")
        moded(lambda fl: e(f"buffer_store_dword v{vt}, v{vt+1}, {srd(sWS)}, s{sMYF} offen{fl}"))
        e("s_mov_b64 exec, -1")

    def tr_base_common(vrow, vcol, vt):
        e(f"v_lshrrev_b32 v{vrow}, 5, v{vLANE}")
        e(f"v_lshlrev_b32 v{vrow}, 2, v{vrow}")
        e(f"v_bfe_u32 v{vt}, v{vLANE}, 2, 2")
        e(f"v_add_u32 v{vrow}, v{vrow}, v{vt}")
        e(f"v_bfe_u32 v{vcol}, v{vLANE}, 4, 1")
        e(f"v_lshlrev_b32 v{vcol}, 5, v{vcol}")
        e(f"v_and_b32 v{vt}, 3, v{vLANE}")
        e(f"v_lshlrev_b32 v{vt}, 3, v{vt}")
        e(f"v_add_u32 v{vcol}, v{vcol}, v{vt}")

    def voff_qkv(v, vt):
        e(f"v_lshrrev_b32 v{v}, 2, v{vLANE}")
        e(f"v_mul_u32_u24 v{v}, 3072, v{v}")
        e(f"v_and_b32 v{vt}, 3, v{vLANE}")
        e(f"v_lshl_add_u32 v{v}, v{vt}, 4, v{v}")
    def voff_n64(v, vt):
        e(f"v_lshrrev_b32 v{v}, 3, v{vLANE}")
        e(f"v_lshlrev_b32 v{v}, 10, v{v}")
        e(f"v_lshrrev_b32 v{vt}, 2, v{vLANE}")
        e(f"v_lshrrev_b32 v{vt+1}, 4, v{vLANE}")
        e(f"v_xor_b32 v{vt}, v{vt}, v{vt+1}")
        e(f"v_and_b32 v{vt}, 1, v{vt}")
        e(f"v_lshl_add_u32 v{v}, v{vt}, 6, v{v}")
        e(f"v_and_b32 v{vt}, 3, v{vLANE}")
        e(f"v_lshl_add_u32 v{v}, v{vt}, 4, v{v}")
    def voff_n128(v, vt):
        e(f"v_lshrrev_b32 v{v}, 4, v{vLANE}")
        e(f"v_bfe_u32 v{vt}, v{vLANE}, 2, 2")
        e(f"v_xor_b32 v{vt}, v{vt}, v{v}")
        e(f"v_mul_u32_u24 v{v}, 3584, v{v}")
        e(f"v_lshl_add_u32 v{v}, v{vt}, 6, v{v}")
        e(f"v_and_b32 v{vt}, 3, v{vLANE}")
        e(f"v_lshl_add_u32 v{v}, v{vt}, 4, v{v}")

    def dma_loop(srd_reg, voff, soff_reg, soff_step, lds_step, count, sleep=0):
        L = a.new("L_dma")
        e(f"s_mov_b32 s{sCNT}, {count}")
        a.lab(L)
        e(f"buffer_load_dwordx4 v{voff}, {srd(srd_reg)}, s{soff_reg} offen lds")
        if sleep: e(f"s_sleep {sleep}")
        e(f"s_add_u32 m0, m0, {lds_step}")
        e(f"s_add_u32 s{soff_reg}, s{soff_reg}, {soff_step}")
        e(f"s_sub_u32 s{sCNT}, s{sCNT}, 1"); e(f"s_cmp_lg_u32 s{sCNT}, 0"); e(f"s_cbranch_scc1 {L}")

    def dma_wqkv(first, count):
        S = a.new("L_skip")
        e(f"s_cmp_lt_u32 s{sW}, 5"); e(f"s_cbranch_scc1 {S}")
        voff_qkv(2, 3)
        e(f"s_sub_u32 s{sT0}, s{sW}, 5")
        e(f"s_lshl_b32 s{sT0+1}, s{sT0}, 10")
        e(f"s_lshl_b32 s{sT0+2}, s{sI}, 6")
        e(f"s_add_u32 s{sT0+1}, s{sT0+1}, s{sT0+2}")
        if first: e(f"s_add_u32 s{sT0+1}, s{sT0+1}, {first*16*3072}")
        e(f"s_lshl_b32 s{sT0}, s{sT0}, 15")
        e(f"s_add_u32 m0, s{sT0}, {first*1024}")
        dma_loop(sWQ, 2, sT0+1, 16*3072, 1024, count)
        a.lab(S)

    vCSA = 240
    def dma_wqkv_packed(first, count):
        S = a.new("L_skip")
        e(f"s_cmp_lt_u32 s{sW}, 5"); e(f"s_cbranch_scc1 {S}")
        e(f"s_sub_u32 s{sT0}, s{sW}, 5"); e(f"s_lshl_b32 s{sT0}, s{sT0}, 15")
        e(f"s_mul_i32 s{sT0+1}, s{sI}, 98304"); e(f"s_add_u32 s{sT0+1}, s{sT0+1}, s{sT0}")
        e(f"s_add_u32 s{sT0+1}, s{sT0+1}, {PKQ + first*1024}")
        e(f"s_add_u32 m0, s{sT0}, {first*1024}")
        L = a.new("L_dma")
        e(f"s_mov_b32 s{sCNT}, {count}")
        a.lab(L)
        e(f"buffer_load_dwordx4 v{vL16}, {srd(sWS)}, s{sT0+1} offen sc1 lds")
        e(f"s_add_u32 m0, m0, 1024"); e(f"s_add_u32 s{sT0+1}, s{sT0+1}, 1024")
        e(f"s_sub_u32 s{sCNT}, s{sCNT}, 1"); e(f"s_cmp_lg_u32 s{sCNT}, 0"); e(f"s_cbranch_scc1 {L}")
        a.lab(S)

    def colsum_init(kind):
        tr_base_common(4, 5, 6)
        e(f"s_sub_u32 s{sT0}, s{sW}, 4")
        if kind == "qkv":
            e(f"v_lshl_add_u32 v4, v4, 6, v5")
            e(f"s_lshl_b32 s{sT0+1}, s{sT0}, 15")
            e(f"v_add_u32 v4, s{sT0+1}, v4")
        else:
            e(f"v_and_b32 v6, 3, v4")
            e(f"v_xor_b32 v6, s{sT0}, v6")
            e(f"v_lshl_add_u32 v5, v6, 6, v5")
            e(f"v_lshl_add_u32 v4, v4, 8, v5")
        for r in range(8, 12): e(f"v_mov_b32 v{r}, 0x3f803f80")
    def colsum_chunk(kind, tmp, first, extra=None):
        step, second = (1024, 512) if kind == "qkv" else (4096, 2048)
        for k in range(8):
            e(f"ds_read_b64_tr_b16 v[{tmp+4*k}:{tmp+4*k+1}], v4 offset:{k*step}")
            e(f"ds_read_b64_tr_b16 v[{tmp+4*k+2}:{tmp+4*k+3}], v4 offset:{k*step+second}")
        e(f"v_add_u32 v4, {8*step}, v4")
        for k in range(8):
            if extra: extra(k)
            e(f"s_waitcnt lgkmcnt({14-2*k})")
            e(f"{MF} {V(vCSA,16)}, {V(tmp+4*k,4)}, v[8:11], {'0' if (first and k == 0) else V(vCSA,16)}")
    def colsum_fin(kind):
        cs = L_CS1 if kind == "qkv" else L_CS4
        a.nop(14)
        e(f"s_sub_u32 s{sT0}, s{sW}, 4")
        e(f"s_lshl_b32 s{sT0+1}, s{sT0}, 7"); e(f"s_add_u32 s{sT0+1}, s{sT0+1}, {cs}")
        e(f"v_lshrrev_b32 v10, 5, v{vLANE}"); e(f"v_lshl_add_u32 v10, v10, 4, s{sT0+1}")
        e(f"s_mov_b32 s{sT0+2}, 1"); e(f"s_mov_b32 s{sT0+3}, 1")
        e(f"s_mov_b64 exec, s[{sT0+2}:{sT0+3}]")
        for g in range(4): e(f"ds_write_b128 v10, {V(vCSA+4*g,4)} offset:{g*32}")
        e("s_mov_b64 exec, -1")
        e("s_waitcnt lgkmcnt(0)")

    def load_stats(st_base, vdst, voff, tile_sreg):
        e(f"v_lshrrev_b32 v{voff}, 5, v{vLANE}")
        e(f"v_lshlrev_b32 v{voff}, 11, v{voff}")
        e(f"v_and_b32 v{voff+1}, 31, v{vLANE}")
        e(f"v_lshl_add_u32 v{voff}, v{voff+1}, 3, v{voff}")
        e(f"s_lshl_b32 s{sT0+5}, s{tile_sreg}, 12")
        e(f"s_add_u32 s{sT0+5}, s{sT0+5}, {st_base}")
        for k in range(8):
            e(f"buffer_load_dwordx2 v[{vdst+2*k}:{vdst+2*k+1}], v{voff}, {srd(sWS)}, s{sT0+5} offen offset:{k*256} sc1")

    def reduce_partials(vsrc):
        for k in (1, 3, 5, 7):
            e(f"v_pk_add_f32 v[{vsrc+2*(k-1)}:{vsrc+2*(k-1)+1}], v[{vsrc+2*(k-1)}:{vsrc+2*(k-1)+1}], v[{vsrc+2*k}:{vsrc+2*k+1}]")
        e(f"v_pk_add_f32 v[{vsrc}:{vsrc+1}], v[{vsrc}:{vsrc+1}], v[{vsrc+4}:{vsrc+5}]")
        e(f"v_pk_add_f32 v[{vsrc+8}:{vsrc+9}], v[{vsrc+8}:{vsrc+9}], v[{vsrc+12}:{vsrc+13}]")
        e(f"v_pk_add_f32 v[{vsrc}:{vsrc+1}], v[{vsrc}:{vsrc+1}], v[{vsrc+8}:{vsrc+9}]")
    def finish_stats(vsrc, vA, vB):
        e(f"v_mov_b32 v{vsrc+2}, v{vsrc}"); e(f"v_mov_b32 v{vsrc+3}, v{vsrc+1}")
        a.nop(2)
        e(f"v_permlane32_swap_b32 v{vsrc+2}, v{vsrc}"); e(f"v_permlane32_swap_b32 v{vsrc+3}, v{vsrc+1}")
        a.nop(1)
        e(f"v_pk_add_f32 v[{vsrc}:{vsrc+1}], v[{vsrc}:{vsrc+1}], v[{vsrc+2}:{vsrc+3}]")
        e(f"v_mul_f32 v{vsrc}, {f2u(1/512):#x}, v{vsrc}")
        e(f"v_mul_f32 v{vsrc+1}, {f2u(1/512):#x}, v{vsrc+1}")
        e(f"v_fma_f32 v{vsrc+1}, -v{vsrc}, v{vsrc}, v{vsrc+1}")
        e(f"v_max_f32 v{vsrc+1}, 0, v{vsrc+1}")
        e(f"v_add_f32 v{vsrc+1}, {f2u(1e-5):#x}, v{vsrc+1}")
        e(f"v_rsq_f32 v{vA}, v{vsrc+1}")
        a.nop(1)
        e(f"v_mul_f32 v{vB}, v{vsrc}, v{vA}")

    def x_setup(base, nsteps_total, s0_sreg, tile_sreg):
        e(f"s_mul_i32 s{sXS}, s{tile_sreg}, {nsteps_total*1024}")
        e(f"s_add_u32 s{sXS}, s{sXS}, {base}")
        if s0_sreg is not None:
            e(f"s_lshl_b32 s{sT0+7}, s{s0_sreg}, 10")
            e(f"s_add_u32 s{sXS}, s{sXS}, s{sT0+7}")
    def x_load(k, dst):
        if k and k % 4 == 0: e(f"s_add_u32 s{sXS}, s{sXS}, 4096")
        e(f"buffer_load_dwordx4 v[{dst}:{dst+3}], v{vL16}, {srd(sWS)}, s{sXS} offen offset:{(k%4)*1024} sc1")

    def tile_ids():
        e(f"s_lshl_b32 s{sT0+4}, s{sB}, 2")
        e(f"s_lshr_b32 s{sT0+1}, s{sI}, 3"); e(f"s_lshl_b32 s{sT0+1}, s{sT0+1}, 1")
        e(f"s_add_u32 s{sT0+4}, s{sT0+4}, s{sT0+1}")
        e(f"s_and_b32 s{sT0+1}, s{sW}, 1"); e(f"s_add_u32 s{sT0+4}, s{sT0+4}, s{sT0+1}")
        e(f"s_lshr_b32 s{sT0+3}, s{sW}, 1")

    e("s_cmp_ge_u32 s2, 256"); e("s_cbranch_scc1 L_end")
    e(f"s_load_dwordx16 s[{sKA}:{sKA+15}], s[0:1], 0")
    e(f"s_load_dwordx4 s[{sKA+16}:{sKA+19}], s[0:1], 64")
    e(f"s_load_dwordx2 s[{sKA+20}:{sKA+21}], s[0:1], 80")
    e(f"v_lshrrev_b32 v2, 6, v0")
    e(f"v_and_b32 v{vLANE}, 63, v0")
    e(f"v_readfirstlane_b32 s{sW}, v2")
    e(f"v_lshlrev_b32 v{vL16}, 4, v{vLANE}")
    e(f"s_and_b32 s{sB}, s2, 7"); e(f"s_lshl_b32 s{sB}, s{sB}, 1")
    e(f"s_lshr_b32 s{sT0}, s2, 7"); e(f"s_or_b32 s{sB}, s{sB}, s{sT0}")
    e(f"s_bfe_u32 s{sI}, s2, 0x40003")
    e(f"s_mov_b32 s{sL}, 0"); e(f"s_mov_b32 s{sFAIL}, 0"); e(f"s_mov_b32 s{sKVO}, 0"); e(f"s_mov_b32 s{sMODE}, 0"); e(f"s_mov_b32 s{sNONCE}, 0")
    e(f"s_mov_b32 s{sM16}, 0x0000ffff"); e(f"s_mov_b32 s{sM16+1}, 0x0000ffff")
    e(f"s_mov_b32 s{sM32}, -1"); e(f"s_mov_b32 s{sM32+1}, 0")
    e(f"s_getreg_b32 s{sXCC}, hwreg(HW_REG_XCC_ID, 0, 4)")
    e(f"s_lshl_b32 s{sTEAM}, s{sB}, 12")
    e(f"s_lshl_b32 s{sMYF}, s{sI}, 4"); e(f"s_add_u32 s{sMYF}, s{sMYF}, s{sTEAM}")
    e(f"s_and_b32 s{sT0}, s{sW}, 3"); e(f"s_lshl_b32 s{sT0}, s{sT0}, 2"); e(f"s_add_u32 s{sMYF}, s{sMYF}, s{sT0}")
    e("s_waitcnt lgkmcnt(0)")
    def mk(dst, src, size):
        e(f"s_mov_b32 s{dst}, s{src}"); e(f"s_and_b32 s{dst+1}, s{src+1}, 0xffff")
        e(f"s_mov_b32 s{dst+2}, {size}"); e(f"s_mov_b32 s{dst+3}, 0x00020000")
    mk(sX, sKA+0, 2048*512*2); mk(sWQ, sKA+2, 512*1536*2); mk(sWO, sKA+4, 512*512*2)
    mk(sW1, sKA+8, 512*1792*2); mk(sW2, sKA+12, 1792*512*2); mk(sOUT, sKA+16, 2048*512*2)
    mk(sDBG, sKA+18, 256); mk(sWS, sKA+20, 0x10000000)
    if args.cpf:
        Lcp = a.new("L_nocpf")
        e(f"s_cmp_lg_u32 s{sW}, 7"); e(f"s_cbranch_scc1 {Lcp}")
        e(f"s_lshr_b32 s{sT0+2}, s2, 3")
        e(f"s_cmp_ge_u32 s{sT0+2}, (L_end - L_cpf0) >> 11"); e(f"s_cbranch_scc1 {Lcp}")
        e(f"s_getpc_b64 s[{sT0}:{sT0+1}]")
        a.lab("L_cpf0")
        e(f"s_lshl_b32 s{sT0+2}, s{sT0+2}, 11")
        e(f"v_add_u32 v2, s{sT0+2}, v{vL16}")
        e(f"global_load_dwordx4 v[60:63], v2, s[{sT0}:{sT0+1}]")
        e(f"global_load_dwordx4 v[60:63], v2, s[{sT0}:{sT0+1}] offset:1024")
        a.lab(Lcp)
    e(f"s_cmp_ge_u32 s{sW}, 4"); e("s_cbranch_scc1 L_pro_helper")

    if args.prio: e(f"s_setprio {args.prio}")
    vX = 64; vAcc = 16; vWf = 192
    vXO = 14
    Lnb = a.new("L_nobias")
    e(f"s_cmp_lg_u32 s{sW}, 3"); e(f"s_cbranch_scc1 {Lnb}")
    mk(sTS, sKA+10, 1792*2)
    e(f"v_lshlrev_b32 v20, 1, v{vLANE}")
    e(f"s_lshl_b32 s{sT0+2}, s{sI}, 8")
    e(f"buffer_load_ushort v21, v20, {srd(sTS)}, s{sT0+2} offen")
    e(f"buffer_load_ushort v22, v20, {srd(sTS)}, s{sT0+2} offen offset:128")
    mk(sTS, sKA+14, 512*2)
    e(f"s_and_b32 s{sT0+2}, s{sI}, 7"); e(f"s_lshl_b32 s{sT0+2}, s{sT0+2}, 7")
    e(f"buffer_load_ushort v23, v20, {srd(sTS)}, s{sT0+2} offen")
    a.lab(Lnb)
    fstamp("start")
    tile_ids()
    e(f"v_and_b32 v10, 31, v{vLANE}"); e(f"v_lshlrev_b32 v10, 10, v10")
    e(f"v_lshrrev_b32 v11, 5, v{vLANE}")
    e(f"v_lshl_add_u32 v{vXO}, v11, 4, v10")
    e(f"v_lshl_add_u32 v10, v11, 3, v10")
    e(f"s_lshl_b32 s{sT0}, s{sT0+4}, 15")
    e(f"s_and_b32 s{sT0+1}, s{sI}, 7"); e(f"s_lshl_b32 s{sT0+1}, s{sT0+1}, 7"); e(f"s_add_u32 s{sT0}, s{sT0}, s{sT0+1}")
    e(f"s_lshl_b32 s{sT0+1}, s{sT0+3}, 6"); e(f"s_add_u32 s{sT0}, s{sT0}, s{sT0+1}")
    for g in range(4):
        e(f"buffer_load_dwordx2 v[{vRES+2*g}:{vRES+2*g+1}], v10, {srd(sX)}, s{sT0} offen offset:{g*16}")
    e(f"s_lshl_b32 s{sXS}, s{sB}, 2"); e(f"s_add_u32 s{sXS}, s{sXS}, s{sW}"); e(f"s_lshl_b32 s{sXS}, s{sXS}, 15")
    L_XR = 98304
    e(f"v_lshrrev_b32 v{vXO}, 3, v{vLANE}"); e(f"v_and_b32 v15, 7, v{vLANE}"); e(f"v_xor_b32 v15, v15, v{vXO}")
    e(f"v_lshlrev_b32 v{vXO}, 10, v{vXO}"); e(f"v_lshl_add_u32 v{vXO}, v15, 4, v{vXO}")
    e(f"s_mul_i32 s{sW1S}, s{sW}, 12288"); e(f"s_add_u32 s{sW1S}, s{sW1S}, {L_XR}")
    def x0_dma(c):
        e(f"s_add_u32 m0, s{sW1S}, {(c % 3)*4096}")
        e(f"s_add_u32 s{sT0+6}, s{sXS}, {c*128}")
        for r in range(4):
            e(f"buffer_load_dwordx4 v{vXO}, {srd(sX)}, s{sT0+6} offen lds")
            if r < 3:
                e(f"s_add_u32 m0, m0, 1024"); e(f"s_add_u32 s{sT0+6}, s{sT0+6}, 8192")
    if args.xreg:
        for c in range(8):
            for r in range(4):
                e(f"s_add_u32 s{sT0+6}, s{sXS}, {c*128 + r*8192}")
                e(f"buffer_load_dwordx4 {V(vX+4*(4*c+r),4)}, v{vXO}, {srd(sX)}, s{sT0+6} offen")
        XA0 = 32
    else:
        for c in range(3): x0_dma(c)
        XA0 = 12
    fstamp("xissued")
    Lw1, Lw2, Lw3, Ltab = a.new("L_w1"), a.new("L_w2"), a.new("L_w3"), a.new("L_tabdone")
    e(f"v_and_b32 v16, 31, v{vLANE}"); e(f"v_lshrrev_b32 v17, 5, v{vLANE}"); e(f"v_lshlrev_b32 v17, 2, v17")
    e(f"v_sub_u32 v16, v16, v17")
    e(f"v_mov_b32 v18, 0"); e(f"v_mov_b32 v19, {NEG:#x}")
    e(f"s_cmp_eq_u32 s{sW}, 3"); e(f"s_cbranch_scc1 {Lw3}")
    e(f"s_cmp_eq_u32 s{sW}, 2"); e(f"s_cbranch_scc1 {Lw2}")
    e(f"s_cmp_eq_u32 s{sW}, 1"); e(f"s_cbranch_scc1 {Lw1}")
    for (lab, base, inv) in ((None, L_MD, False), (Lw1, L_MF, True)):
        if lab: a.lab(lab)
        for g in range(4):
            for i in range(4):
                e(f"v_cmp_le_i32 vcc, {8*g+i}, v16"); a.nop(2)
                e(f"v_cndmask_b32 v{24+i}, v19, v18, vcc" if not inv else f"v_cndmask_b32 v{24+i}, v18, v19, vcc")
            e(f"v_add_u32 v28, {base + g*1024}, v{vL16}")
            e(f"ds_write_b128 v28, v[24:27]"); a.nop(2)
        e(f"s_branch {Ltab}")
    a.lab(Lw2)
    e(f"v_mov_b32 v29, 0xffff"); e(f"v_mov_b32 v30, 0xffff0000")
    for half in range(2):
        for dd in range(4):
            d = half*4 + dd; r0, r1 = 2*d, 2*d+1
            c0 = 8*(r0 >> 2) + (r0 & 3); c1 = 8*(r1 >> 2) + (r1 & 3)
            e(f"v_cmp_le_i32 vcc, {c0}, v16"); a.nop(2); e(f"v_cndmask_b32 v31, v18, v29, vcc")
            e(f"v_cmp_le_i32 vcc, {c1}, v16"); a.nop(2); e(f"v_cndmask_b32 v32, v18, v30, vcc")
            e(f"v_or_b32 v{24+dd}, v31, v32")
        e(f"v_add_u32 v28, {L_MB + half*1024}, v{vL16}")
        e(f"ds_write_b128 v28, v[24:27]"); a.nop(2)
    e(f"s_branch {Ltab}")
    a.lab(Lw3)
    e(f"s_waitcnt vmcnt({4 + XA0})")
    e("v_lshlrev_b32 v21, 16, v21"); e("v_lshlrev_b32 v22, 16, v22"); e("v_lshlrev_b32 v23, 16, v23")
    e(f"v_lshlrev_b32 v24, 2, v{vLANE}"); e(f"v_add_u32 v24, {L_B1}, v24")
    e(f"ds_write_b32 v24, v21"); e(f"ds_write_b32 v24, v22 offset:256"); e(f"ds_write_b32 v24, v23 offset:512")
    a.lab(Ltab)

    def p1_bases():
        tr_base_common(4, 5, 6)
        e("v_lshl_add_u32 v4, v4, 6, v5"); e("v_add_u32 v5, 65536, v4")
    class L1:
        n = 0
    def lds1(instr):
        e(instr); L1.n += 1; return L1.n
    def lwait1(k): e(f"s_waitcnt lgkmcnt({min(15, L1.n - k)})")
    seq1 = [(s, t) for s in range(32) for t in (1, 2)] + [(s, 0) for s in range(32)]
    NS1 = 6; PRE1 = NS1 - 1
    rid1 = {}
    def slot1(n): return vWf + 4*(n % NS1)
    def issue1(n):
        s, t = seq1[n]
        if n < 64 and t == 1 and s % 8 == 0 and s > 0: e("s_barrier")
        b = 4 if t < 2 else 5; off = (t % 2) * 32768 + s * 1024; dst = slot1(n)
        lds1(f"ds_read_b64_tr_b16 v[{dst}:{dst+1}], v{b} offset:{off}")
        rid1[n] = lds1(f"ds_read_b64_tr_b16 v[{dst+2}:{dst+3}], v{b} offset:{off+512}")
    def mfma1(n):
        s, t = seq1[n]
        acc = vAcc + 16*t; c = "0" if s == 0 else V(acc, 16); x = vX + 4*s; w = slot1(n)
        if t < 2: e(f"{MF} {V(acc,16)}, {V(w,4)}, {V(x,4)}, {c}")
        else:     e(f"{MF} {V(acc,16)}, {V(x,4)}, {V(w,4)}, {c}")
    vA, vB = 8, 10
    def p1_stats_ready(tracked=False):
        finish_stats(216, vA, vB)
        e(f"v_and_b32 v6, 31, v{vLANE}"); e(f"v_lshlrev_b32 v6, 2, v6")
        e(f"v_add_u32 v13, {L_CS1+256}, v6")
        e(f"s_lshl_b32 s{sT0}, s{sW}, 8"); e(f"s_add_u32 s{sT0}, s{sT0}, {L_STA}")
        e(f"v_add_u32 v6, s{sT0}, v6")
        (lds1 if tracked else e)(f"ds_write_b32 v6, v{vA}"); (lds1 if tracked else e)(f"ds_write_b32 v6, v{vB} offset:128")
        e(f"v_lshrrev_b32 v7, 5, v{vLANE}"); e(f"v_lshlrev_b32 v7, 4, v7")
        e(f"v_add_u32 v6, {L_CS1}, v7")
        e(f"v_add_u32 v7, s{sT0}, v7")
        if not tracked: e("s_waitcnt lgkmcnt(0)")
    def p1_passA(loads):
        L1.n = 0; rid1.clear()
        for n in range(PRE1): issue1(n)
        for n in range(64):
            s, t = seq1[n]
            if loads and t == 1:
                e(f"s_waitcnt vmcnt({XA + 7 if s < XA else min(XA, 32-s)-1})")
                if s + XA < 32: x_load(s + XA, vX + 4*(s + XA))
            if t == 2 and s == XA:
                if loads: reduce_partials(216)
                p1_stats_ready(True)
            lwait1(rid1[n]); mfma1(n); issue1(n + PRE1)

    e(f"v_and_b32 v6, 31, v{vLANE}"); e(f"v_lshrrev_b32 v7, 5, v{vLANE}"); e(f"v_and_b32 v15, 7, v6")
    e(f"v_xor_b32 v7, v7, v15"); e(f"v_lshlrev_b32 v6, 7, v6"); e(f"v_lshl_add_u32 v6, v7, 4, v6")
    e(f"v_add_u32 v232, s{sW1S}, v6")
    for sp_ in range(1, 4): e(f"v_xor_b32 v{232+sp_}, {sp_*32}, v232")
    e(f"v_add_u32 v236, s{sW1S}, v{vL16}")
    for r in range(8, 12): e(f"v_mov_b32 v{r}, 0x3f803f80")
    def shuffle(c):
        e(f"s_waitcnt vmcnt({4*(7-c)})")
        if c == 0: fstamp("xland")
        for r in range(4):
            e(f"ds_write_b128 v236, {V(vX+4*(4*c+r),4)} offset:{(c % 3)*4096 + r*1024}")
        for sp_ in range(4):
            e(f"ds_read_b128 {V(vX+4*(4*c+sp_),4)}, v{232+sp_} offset:{(c % 3)*4096}")
    shuffle(0)
    for c in range(8):
        if c < 7: shuffle(c + 1)
        e(f"s_waitcnt lgkmcnt({8 if c < 7 else 0})")
        for sp_ in range(4):
            x = vX + 4*(4*c + sp_)
            e(f"v_permlane32_swap_b32 v{x}, v{x+2}"); e(f"v_permlane32_swap_b32 v{x+1}, v{x+3}")
        a.nop(1)
        for sp_ in range(4):
            x = vX + 4*(4*c + sp_); first = (c == 0 and sp_ == 0)
            e(f"{MF} v[16:31], {V(x,4)}, {V(x,4)}, {'0' if first else 'v[16:31]'}")
            e(f"{MF} v[32:47], v[8:11], {V(x,4)}, {'0' if first else 'v[32:47]'}")
    e(f"v_and_b32 v6, 31, v{vLANE}"); e(f"v_lshrrev_b32 v7, 5, v{vLANE}"); e("v_lshlrev_b32 v7, 2, v7"); e("v_sub_u32 v6, v6, v7")
    e("v_mov_b32 v217, 0")
    a.nop(8)
    for r in range(16):
        e(f"v_cmp_eq_u32 vcc, {8*(r >> 2) + (r & 3)}, v6"); a.nop(2)
        e(f"v_cndmask_b32 v217, v217, v{16+r}, vcc")
    e("v_mul_f32 v216, 0.5, v32")
    p1_bases()
    fstamp("xdone")
    e("s_barrier")
    fstamp("p1B")
    p1_passA(False)
    e("s_barrier")
    e("s_branch L_p1_passB")

    a.lab("L_p1_l1")
    team_wait(0, 4)
    fstamp("p1poll")
    e(f"s_lshl_b32 s{sT0+4}, s{sB}, 2"); e(f"s_add_u32 s{sT0+4}, s{sT0+4}, s{sW}")
    x_setup(XF, 32, None, sT0+4)
    for k in range(XA): x_load(k, vX + 4*k)
    load_stats(ST1, 216, 14, sT0+4)
    p1_bases()
    e("s_barrier")
    p1_passA(True)

    a.lab("L_p1_passB")
    fstamp("p1A")
    e("v_mov_b32 v14, 0")
    e(f"buffer_load_dword v15, v14, {srd(sDBG)}, 0 offen sc1")
    e(f"s_lshl_b32 s{sT0+4}, s{sB}, 2"); e(f"s_add_u32 s{sT0+4}, s{sT0+4}, s{sW}")
    e(f"s_lshl_b32 s{sT0}, s{sT0+4}, 15"); e(f"s_lshl_b32 s{sT0+1}, s{sI}, 11")
    e(f"s_add_u32 s{sT0}, s{sT0}, s{sT0+1}"); e(f"s_add_u32 s{sT0}, s{sT0}, s{sKVO}")
    e(f"s_add_u32 s{sT0+1}, s{sT0}, {VF}"); e(f"s_add_u32 s{sT0}, s{sT0}, {KF}")
    gid1 = {}
    def grp1(G):
        b = 232 + 8*(G % 2)
        if G < 4:   gid1[G] = lds1(f"ds_read_b128 {V(b,4)}, v6 offset:{128 + G*32}")
        elif G < 8:
            g = G - 4
            lds1(f"ds_read_b128 {V(b,4)}, v7 offset:{g*32}")
            gid1[G] = lds1(f"ds_read_b128 {V(b+4,4)}, v7 offset:{128 + g*32}")
    items1 = []
    aK, aV, aQ = vAcc + 16, vAcc + 32, vAcc
    for G in range(8):
        b = 232 + 8*(G % 2); g = G % 4; acc = aK if G < 4 else aV
        items1.append(("wait", G))
        for i in range(4):
            r = acc + 4*g + i
            if G < 4:
                items1.append(("v", f"v_mul_f32 v{r}, v{r}, v{vA}"))
                items1.append(("v", f"v_fma_f32 v{r}, -v{vB}, v{b+i}, v{r}"))
            else:
                items1.append(("v", f"v_mul_f32 v{r}, v{r}, v{b+i}"))
                items1.append(("v", f"v_fma_f32 v{r}, -v{b+4+i}, v12, v{r}"))
        items1.append(("next", G + 2))
        for dd in range(2):
            d = 2*g + dd
            items1.append(("v", f"v_cvt_pk_bf16_f32 v{acc+d}, v{acc+2*d}, v{acc+2*d+1}"))
        if g == 3: items1.append(("st", G))
    def run1(budget):
        done = 0
        while items1 and done < budget:
            it = items1.pop(0)
            if it[0] == "v": e(it[1]); done += 1
            elif it[0] == "wait": lwait1(gid1[it[1]])
            elif it[0] == "next": grp1(it[1])
            elif it[0] == "st":
                acc, so = (aK, sT0) if it[1] == 3 else (aV, sT0+1)
                e(f"buffer_store_dwordx4 {V(acc,4)}, v{vL16}, {srd(sWS)}, s{so} offen sc1")
                e(f"buffer_store_dwordx4 {V(acc+4,4)}, v{vL16}, {srd(sWS)}, s{so} offen offset:1024 sc1")
    lds1("ds_read_b32 v12, v13")
    grp1(0); grp1(1)
    for n in range(64, 96):
        lwait1(rid1[n]); mfma1(n)
        if n + PRE1 < 96: issue1(n + PRE1)
        if n == 64: a.nop(10)
        else: run1(4)
    run1(10**6)
    for g in range(4): lds1(f"ds_read_b128 {V(232+4*g,4)}, v6 offset:{g*32}")
    fstamp("p1main")
    e("s_barrier")
    fstamp("p1pre")
    e("s_waitcnt vmcnt(0)")
    fstamp("p1drain")
    Lhn = a.new("L_havenonce")
    e(f"v_readfirstlane_b32 s{sNONCE}, v15")
    e(f"s_cmp_lg_u32 s{sNONCE}, 0"); e(f"s_cbranch_scc1 {Lhn}")
    nonce_poll(14)
    a.lab(Lhn)
    e(f"s_lshl_b32 s{sT0}, s{sI}, 7"); e(f"s_add_u32 s{sT0}, s{sT0}, s{sTEAM}")
    e(f"s_lshl_b32 s{sT0+1}, s{sW}, 3"); e(f"s_add_u32 s{sT0}, s{sT0}, s{sT0+1}"); e(f"s_add_u32 s{sT0}, s{sT0}, {C_KV}")
    e(f"s_add_u32 s{sT0+1}, s{sL}, 1")
    e(f"v_mov_b32 v14, s{sNONCE}"); e(f"v_mov_b32 v15, s{sT0+1}"); e("v_mov_b32 v13, 0")
    e("s_mov_b64 exec, 1")
    e(f"buffer_store_dwordx2 v[14:15], v13, {srd(sWS)}, s{sT0} offen sc1")
    e("s_mov_b64 exec, -1")
    e("s_waitcnt lgkmcnt(0)")
    e(f"v_mul_f32 v152, {f2u(QSCALE):#x}, v{vA}"); e(f"v_mul_f32 v154, {f2u(QSCALE):#x}, v{vB}")
    for p in range(8):
        e(f"v_pk_mul_f32 {V(aQ+2*p,2)}, {V(aQ+2*p,2)}, {V(152,2)} op_sel_hi:[1,0]")
        e(f"v_pk_fma_f32 {V(aQ+2*p,2)}, {V(232+2*p,2)}, {V(154,2)}, {V(aQ+2*p,2)} op_sel_hi:[1,0,1] neg_lo:[0,1,0] neg_hi:[0,1,0]")
    for d in range(8): e(f"v_cvt_pk_bf16_f32 v{aQ+d}, v{aQ+2*d}, v{aQ+2*d+1}")
    e(f"s_lshl_b32 s{sT0+2}, s{sW}, 11"); e(f"v_add_u32 v6, s{sT0+2}, v{vL16}")
    e(f"ds_write_b128 v6, {V(aK,4)} offset:{L_KST+16*1024}"); e(f"ds_write_b128 v6, {V(aK+4,4)} offset:{L_KST+17*1024}")
    e(f"ds_write_b128 v6, {V(aV,4)} offset:{L_VST+16*1024}"); e(f"ds_write_b128 v6, {V(aV+4,4)} offset:{L_VST+17*1024}")
    e(f"ds_write_b128 v6, {V(aQ,4)} offset:{L_QST}"); e(f"ds_write_b128 v6, {V(aQ+4,4)} offset:{L_QST+1024}")
    if args.dbgq:
        e(f"s_lshl_b32 s{sT0}, s{sT0+4}, 15"); e(f"s_lshl_b32 s{sT0+1}, s{sI}, 11")
        e(f"s_add_u32 s{sT0}, s{sT0}, s{sT0+1}"); e(f"s_add_u32 s{sT0}, s{sT0}, {OF}")
        e(f"buffer_store_dwordx4 {V(aQ,4)}, v{vL16}, {srd(sWS)}, s{sT0} offen sc1")
        e(f"buffer_store_dwordx4 {V(aQ+4,4)}, v{vL16}, {srd(sWS)}, s{sT0} offen offset:1024 sc1")
    if STOP == 1:
        e("s_waitcnt vmcnt(0) lgkmcnt(0)"); e("s_barrier"); e("s_branch L_end")
    Lnokv = a.new("L_nokv")
    e(f"s_lshr_b32 s{sT0}, s{sW}, 1"); e(f"s_add_u32 s{sT0}, s{sT0}, s{sB}"); e(f"s_sub_u32 s{sT0}, s{sT0}, 2")
    e(f"s_cbranch_scc1 {Lnokv}")
    e(f"s_lshl_b32 s{sT0}, s{sT0}, 12")
    e(f"s_lshl_b32 s{sT0+1}, s{sI}, 7"); e(f"s_add_u32 s{sT0}, s{sT0}, s{sT0+1}")
    e(f"s_lshl_b32 s{sT0+1}, s{sW}, 4"); e(f"s_and_b32 s{sT0+1}, s{sT0+1}, 16")
    e(f"s_add_u32 s{sT0}, s{sT0}, s{sT0+1}"); e(f"s_add_u32 s{sT0}, s{sT0}, {C_KV}")
    e(f"v_and_b32 v10, 1, v{vLANE}"); e(f"v_lshlrev_b32 v10, 3, v10")
    e(f"s_add_u32 s{sTGT}, s{sL}, 1")
    poll64(10, sT0, sTGT, 12, sleep=args.kvsleep)
    fstamp("kvpoll")
    for zz in range(2):
        e(f"s_lshl_b32 s{sT0}, s{sB}, 2"); e(f"s_lshl_b32 s{sT0+1}, s{sW}, 1")
        e(f"s_add_u32 s{sT0}, s{sT0}, s{sT0+1}"); e(f"s_add_u32 s{sT0}, s{sT0}, {zz}"); e(f"s_sub_u32 s{sT0}, s{sT0}, 8")
        e(f"s_lshl_b32 s{sT0}, s{sT0}, 15"); e(f"s_lshl_b32 s{sT0+2}, s{sI}, 11")
        e(f"s_add_u32 s{sT0}, s{sT0}, s{sT0+2}"); e(f"s_add_u32 s{sT0}, s{sT0}, s{sKVO}")
        e(f"s_add_u32 s{sT0+2}, s{sT0}, {VF}"); e(f"s_add_u32 s{sT0}, s{sT0}, {KF}")
        e(f"s_lshl_b32 s{sT0+1}, s{sW}, 12")
        e(f"s_add_u32 m0, s{sT0+1}, {L_KST + zz*2048}"); e("s_nop 0")
        e(f"buffer_load_dwordx4 v{vL16}, {srd(sWS)}, s{sT0} offen sc1 lds")
        e(f"buffer_load_dwordx4 v{vL16}, {srd(sWS)}, s{sT0} offen offset:1024 sc1 lds")
        e(f"s_add_u32 m0, s{sT0+1}, {L_VST + zz*2048}"); e("s_nop 0")
        e(f"buffer_load_dwordx4 v{vL16}, {srd(sWS)}, s{sT0+2} offen sc1 lds")
        e(f"buffer_load_dwordx4 v{vL16}, {srd(sWS)}, s{sT0+2} offen offset:1024 sc1 lds")
    a.lab(Lnokv)
    e("s_waitcnt vmcnt(0) lgkmcnt(0)")
    e("s_barrier")
    e("s_branch L_p2")

    def helper_prefetch():
        e(f"s_sub_u32 s{sT0+6}, s{sW}, 4"); e(f"s_lshl_b32 s{sT0+6}, s{sT0+6}, 14")
        e(f"s_and_b32 s{sT0+5}, s{sI}, 7"); e(f"s_lshl_b32 s{sT0+5}, s{sT0+5}, 16")
        e(f"s_add_u32 s{sT0+5}, s{sT0+5}, s{sT0+6}"); e(f"s_add_u32 s{sT0+5}, s{sT0+5}, {PKO}")
        e(f"s_add_u32 m0, s{sT0+6}, {L_WO}")
        L = a.new("L_wo")
        e(f"s_mov_b32 s{sCNT}, 16")
        a.lab(L)
        e(f"buffer_load_dwordx4 v{vL16}, {srd(sWS)}, s{sT0+5} offen sc1 lds")
        e(f"s_add_u32 m0, m0, 1024"); e(f"s_add_u32 s{sT0+5}, s{sT0+5}, 1024")
        e(f"s_sub_u32 s{sCNT}, s{sCNT}, 1"); e(f"s_cmp_lg_u32 s{sCNT}, 0"); e(f"s_cbranch_scc1 {L}")
        if args.hpre == 2: return
        e(f"s_min_u32 s{sW1S}, s{sI}, 13"); e(f"s_lshl_b32 s{sW1S}, s{sW1S}, 17"); e(f"s_lshl_b32 s{sT0+6}, s{sW}, 14")
        e(f"s_add_u32 s{sW1S}, s{sW1S}, s{sT0+6}"); e(f"s_add_u32 s{sW1S}, s{sW1S}, {PK1}")
        for k in range(16):
            if k and k % 4 == 0: e(f"s_add_u32 s{sW1S}, s{sW1S}, 4096")
            e(f"buffer_load_dwordx4 {V(vSTG+4*k,4)}, v{vL16}, {srd(sWS)}, s{sW1S} offen offset:{(k%4)*1024} sc1")

    a.lab("L_pro_helper")
    fstamp("start")
    def l2_prefetch(srd_reg, bytes_per_wg, per_wave, dst=48, base=0):
        e(f"s_lshr_b32 s{sT0}, s2, 3"); e(f"s_mul_i32 s{sT0}, s{sT0}, {bytes_per_wg}")
        e(f"s_sub_u32 s{sT0+1}, s{sW}, 4"); e(f"s_mul_i32 s{sT0+1}, s{sT0+1}, {per_wave*1024}")
        e(f"s_add_u32 s{sT0}, s{sT0}, s{sT0+1}")
        if base: e(f"s_add_u32 s{sT0}, s{sT0}, {base}")
        for k in range(per_wave):
            if k and k % 4 == 0: e(f"s_add_u32 s{sT0}, s{sT0}, 4096")
            e(f"buffer_load_dwordx4 v[{dst}:{dst+3}], v{vL16}, {srd(srd_reg)}, s{sT0} offen offset:{(k%4)*1024}")
    def l2_prefetch1(bytes_per_wg, nkb, base, dst=48, sleep=0):
        e(f"s_lshr_b32 s{sT0}, s2, 3"); e(f"s_mul_i32 s{sT0}, s{sT0}, {bytes_per_wg}"); e(f"s_add_u32 s{sT0}, s{sT0}, {base}")
        L = a.new("L_pf")
        e(f"s_mov_b32 s{sCNT}, {nkb}")
        a.lab(L)
        e(f"buffer_load_dwordx4 v[{dst}:{dst+3}], v{vL16}, {srd(sWS)}, s{sT0} offen sc1")
        if sleep: e(f"s_sleep {sleep}")
        e(f"s_add_u32 s{sT0}, s{sT0}, 1024")
        e(f"s_sub_u32 s{sCNT}, s{sCNT}, 1"); e(f"s_cmp_lg_u32 s{sCNT}, 0"); e(f"s_cbranch_scc1 {L}")
    if args.pf0:
        l2_prefetch(sWQ, 49152, 12)
        e("s_waitcnt vmcnt(0)")
    dma_wqkv(0, args.l0pre)
    fstamp("hissued")
    Lreg = a.new("L_noreg"); Lnl = a.new("L_noleader"); Lnn = a.new("L_nononce")
    e(f"s_cmp_lg_u32 s{sW}, 4"); e(f"s_cbranch_scc1 {Lreg}")
    e(f"s_cmp_lg_u32 s2, 0"); e(f"s_cbranch_scc1 {Lnn}")
    e(f"s_memrealtime s[{sT0}:{sT0+1}]"); e("s_waitcnt lgkmcnt(0)")
    e(f"s_or_b32 s{sT0}, s{sT0}, 1")
    e(f"v_mov_b32 v4, s{sT0}"); e("v_mov_b32 v8, 0")
    e("s_mov_b64 exec, 1"); e(f"buffer_store_dword v4, v8, {srd(sDBG)}, 0 offen sc1"); e("s_mov_b64 exec, -1")
    a.lab(Lnn)
    e(f"s_cmp_lg_u32 s{sI}, 0"); e(f"s_cbranch_scc1 {Lnl}")
    e("v_mov_b32 v4, 0"); e(f"v_lshlrev_b32 v5, 2, v{vLANE}")
    e(f"buffer_store_dword v4, v5, {srd(sWS)}, s{sTEAM} offen sc1")
    a.lab(Lnl)
    if args.touch:
        e(f"v_lshlrev_b32 v9, 21, v{vLANE}"); e(f"s_mov_b64 exec, 0xffff")
        e(f"buffer_load_dword v52, v9, {srd(sWS)}, 0 offen")
        e("s_mov_b64 exec, 1")
        e(f"buffer_load_dword v53, v9, {srd(sOUT)}, 0 offen")
        e("s_mov_b64 exec, -1")
    vPK = 64
    def pack_gather():
        voff_qkv(56, 59); voff_n64(57, 59); voff_n128(58, 59)
        e(f"s_lshr_b32 s{sT0}, s2, 4"); e(f"s_lshl_b32 s{sT0}, s{sT0}, 6")
        e(f"s_and_b32 s{sT0+1}, s2, 15"); e(f"s_mul_i32 s{sT0+1}, s{sT0+1}, 6")
        for k in range(6):
            e(f"s_add_u32 s{sT0+2}, s{sT0+1}, {k}")
            e(f"s_lshr_b32 s{sT0+3}, s{sT0+2}, 5"); e(f"s_lshl_b32 s{sT0+3}, s{sT0+3}, 10")
            e(f"s_and_b32 s{sT0+2}, s{sT0+2}, 31"); e(f"s_mul_i32 s{sT0+2}, s{sT0+2}, {16*3072}")
            e(f"s_add_u32 s{sT0+2}, s{sT0+2}, s{sT0+3}"); e(f"s_add_u32 s{sT0+2}, s{sT0+2}, s{sT0}")
            e(f"buffer_load_dwordx4 {V(vPK+4*k,4)}, v56, {srd(sWQ)}, s{sT0+2} offen")
        e(f"s_lshr_b32 s{sT0}, s2, 5"); e(f"s_lshl_b32 s{sT0}, s{sT0}, 7")
        e(f"s_and_b32 s{sT0+1}, s2, 31"); e(f"s_lshl_b32 s{sT0+2}, s{sT0+1}, 14"); e(f"s_add_u32 s{sT0+2}, s{sT0+2}, s{sT0}")
        e(f"buffer_load_dwordx4 {V(vPK+24,4)}, v57, {srd(sWO)}, s{sT0+2} offen")
        e(f"s_add_u32 s{sT0+2}, s{sT0+2}, 8192")
        e(f"buffer_load_dwordx4 {V(vPK+28,4)}, v57, {srd(sWO)}, s{sT0+2} offen")
        e(f"s_mul_i32 s{sT0+2}, s{sT0+1}, {7*8192}"); e(f"s_add_u32 s{sT0+2}, s{sT0+2}, s{sT0}")
        for k in range(7):
            e(f"buffer_load_dwordx4 {V(vPK+60+4*k,4)}, v57, {srd(sW2)}, s{sT0+2} offen")
            if k < 6: e(f"s_add_u32 s{sT0+2}, s{sT0+2}, 8192")
        e(f"s_mul_i32 s{sT0+1}, s2, 7")
        for k in range(7):
            e(f"s_add_u32 s{sT0+2}, s{sT0+1}, {k}")
            e(f"s_lshr_b32 s{sT0+3}, s{sT0+2}, 7"); e(f"s_lshl_b32 s{sT0+3}, s{sT0+3}, 8")
            e(f"s_and_b32 s{sT0+2}, s{sT0+2}, 127"); e(f"s_mul_i32 s{sT0+2}, s{sT0+2}, {4*3584}")
            e(f"s_add_u32 s{sT0+2}, s{sT0+2}, s{sT0+3}")
            e(f"buffer_load_dwordx4 {V(vPK+32+4*k,4)}, v58, {srd(sW1)}, s{sT0+2} offen")
    if args.packq < 0: pack_gather()
    def pack_store():
        e("s_waitcnt vmcnt(0)")
        for (base, per, r0) in ((PKQ, 6, 0), (PKO, 2, 24), (PK1, 7, 32), (PK2, 7, 60)):
            e(f"s_mul_i32 s{sT0}, s2, {per*1024}"); e(f"s_add_u32 s{sT0}, s{sT0}, {base}")
            for k in range(per):
                if k == 4: e(f"s_add_u32 s{sT0}, s{sT0}, 4096")
                e(f"buffer_store_dwordx4 {V(vPK+r0+4*k,4)}, v{vL16}, {srd(sWS)}, s{sT0} offen offset:{(k%4)*1024} sc1")
    a.lab(Lreg)
    Lplain, Lc1 = a.new("L_plain"), a.new("L_c1")
    def l0_chunk(q, cs):
        Lsw = a.new("L_skipwait")
        e(f"s_cmp_eq_u32 s{sW}, 4"); e(f"s_cbranch_scc1 {Lsw}")
        iss = min(32, args.l0pre + 8*q)
        e(f"s_waitcnt vmcnt({iss - 8*(q+1)})")
        a.lab(Lsw)
        fstamp(f"hc{q}"); e("s_barrier"); fstamp(f"hb{q}")
        if args.l0pre + 8*q < 32: dma_wqkv(args.l0pre + 8*q, 8)
        if cs: colsum_chunk("qkv", 16, q == 0)
        def w4only(fn):
            Lnp = a.new("L_w4o")
            e(f"s_cmp_lg_u32 s{sW}, 4"); e(f"s_cbranch_scc1 {Lnp}")
            fn(); a.lab(Lnp)
        def reg_write():
            nonce_poll(4 + 50)
            e(f"s_add_u32 s{sT0}, s{sXCC}, 1")
            e(f"v_mov_b32 v56, s{sNONCE}"); e(f"v_mov_b32 v57, s{sT0}"); e("v_mov_b32 v58, 0")
            e(f"s_lshl_b32 s{sT0+1}, s{sB}, 4"); e(f"s_add_u32 s{sT0+1}, s{sT0+1}, s{sI}"); e(f"s_lshl_b32 s{sT0+1}, s{sT0+1}, 3")
            e(f"s_add_u32 s{sT0+1}, s{sT0+1}, {REGA}")
            e("s_mov_b64 exec, 1")
            e(f"buffer_store_dwordx2 v[56:57], v58, {srd(sWS)}, s{sT0+1} offen sc1")
            e("s_mov_b64 exec, -1")
        l0_chunk.reg_write = reg_write; l0_chunk.w4only = w4only
        if cs and q == args.packq: w4only(pack_gather)
        if cs and q == args.packst: w4only(pack_store)
        if cs and q == args.regq: w4only(reg_write)
    e(f"s_cmp_eq_u32 s{sW}, 7"); e(f"s_cbranch_scc1 {Lplain}")
    colsum_init("qkv"); pass
    for q in range(4): l0_chunk(q, True)
    colsum_fin("qkv"); pass
    e(f"s_branch {Lc1}")
    a.lab(Lplain)
    for q in range(4): l0_chunk(q, False)
    a.lab(Lc1)
    e("s_barrier")
    e("s_barrier")
    if STOP == 1:
        e("s_barrier"); e("s_branch L_end")
    Lnr = a.new("L_noreg2")
    e(f"s_cmp_lg_u32 s{sW}, 4"); e(f"s_cbranch_scc1 {Lnr}")
    if args.packst > 3: pack_store()
    if args.regq > 3: l0_chunk.reg_write()
    e(f"s_mov_b32 s{sTGT}, 1")
    e(f"v_lshlrev_b32 v4, 3, v{vLANE}")
    for r in range(4):
        e(f"s_mov_b32 s{sT0}, {REGA + r*512}")
        poll64(4, sT0, sTGT, 6, sleep=16)
    e(f"v_and_b32 v4, 15, v{vLANE}"); e(f"v_lshlrev_b32 v4, 3, v4")
    e(f"s_lshl_b32 s{sT0}, s{sB}, 7"); e(f"s_add_u32 s{sT0}, s{sT0}, {REGA}")
    e(f"v_mov_b32 v7, 0")
    poll64(4, sT0, sTGT, 6, sleep=2)
    e(f"s_add_u32 s{sT0}, s{sXCC}, 1")
    e(f"v_cmp_ne_u32 vcc, s{sT0}, v7")
    e(f"s_cmp_eq_u64 vcc, 0"); e(f"s_cselect_b32 s{sMODE}, 1, 0")
    if args.slow: e(f"s_mov_b32 s{sMODE}, 0")
    e(f"v_mov_b32 v5, s{sMODE}"); e(f"v_mov_b32 v4, {L_MODE}")
    e("ds_write_b32 v4, v5"); e("s_waitcnt lgkmcnt(0)")
    a.lab(Lnr)
    e("s_barrier")
    if args.hpre: helper_prefetch()
    e("s_branch L_p2")
    a.lab("L_p1_helper_l1")
    e("s_waitcnt vmcnt(8)"); e("s_barrier")
    fstamp("hb0")
    Lw4, Lw4j = a.new("L_w4pf"), a.new("L_w4j")
    if args.pfa:
        e(f"s_cmp_eq_u32 s{sW}, 4"); e(f"s_cbranch_scc1 {Lw4}")
    dma_wqkv_packed(16, 8)
    e("s_waitcnt vmcnt(8)"); fstamp("hc1"); e("s_barrier")
    dma_wqkv_packed(24, 8)
    e("s_waitcnt vmcnt(8)"); fstamp("hc2"); e("s_barrier")
    e("s_waitcnt vmcnt(0)"); fstamp("hc3"); e("s_barrier")
    if args.pfa:
        e(f"s_branch {Lw4j}")
        a.lab(Lw4)
        l2_prefetch1(16384, 16, PKO); e("s_barrier")
        l2_prefetch1(57344, 20, PK1); e("s_barrier")
        l2_prefetch1(57344, 18, PK1 + 20*1024); e("s_barrier")
        l2_prefetch1(57344, 18, PK1 + 38*1024)
        a.lab(Lw4j)
    e("s_barrier")
    if args.hpre: helper_prefetch()
    e("s_barrier")

    a.lab("L_p2")
    if args.prio and args.prio2 >= 0: e(f"s_setprio {args.prio2}")
    fstamp("p2start")
    vQ = 4; vK = 8; vV = 44; vS = 60; vP = 108; vO = 116; vCb = 132; vMB = 148; vM = 156
    vAK, vAV, vAQ, vWO, vW1 = 158, 159, 160, 161, 162
    e(f"v_mov_b32 v{vAQ}, {L_MODE}"); e(f"ds_read_b32 v{vM}, v{vAQ}")
    e(f"s_and_b32 s{sT0}, s{sW}, 3"); e(f"s_lshr_b32 s{sT0+1}, s{sW}, 2")
    e(f"s_lshl_b32 s{sN}, s{sB}, 2"); e(f"s_add_u32 s{sN}, s{sN}, s{sT0}"); e(f"s_add_u32 s{sN}, s{sN}, 1"); e(f"s_min_u32 s{sN}, s{sN}, 9")
    e(f"s_lshl_b32 s{sT0+2}, s{sT0}, 11"); e(f"s_lshl_b32 s{sT0+3}, s{sT0+1}, 10"); e(f"s_add_u32 s{sT0+4}, s{sT0+2}, s{sT0+3}")
    e(f"v_add_u32 v{vAK}, s{sT0+4}, v{vL16}")
    e(f"s_lshl_b32 s{sT0+3}, s{sT0+1}, 8"); e(f"s_add_u32 s{sT0+4}, s{sT0+2}, s{sT0+3}")
    e(f"v_add_u32 v{vAV}, s{sT0+4}, v{vL16}")
    e(f"ds_read_b128 {V(vQ,4)}, v{vAK} offset:{L_QST}")
    for j in range(9): e(f"ds_read_b128 {V(vK+4*j,4)}, v{vAK} offset:{L_KST + (8-j)*2048}")
    e(f"v_add_u32 v{vAQ}, {L_MD}, v{vL16}")
    for g in range(2): e(f"ds_read_b128 {V(vMB+4*g,4)}, v{vAQ} offset:{8192+g*1024}")
    e(f"s_and_b32 s{sT0+5}, s{sI}, 7"); e(f"s_lshl_b32 s{sT0+5}, s{sT0+5}, 16")
    e(f"s_lshl_b32 s{sT0+6}, s{sW}, 13"); e(f"s_add_u32 s{sT0+5}, s{sT0+5}, s{sT0+6}"); e(f"s_add_u32 s{sT0+5}, s{sT0+5}, {PKO}")
    e(f"s_add_u32 m0, s{sT0+6}, {L_WO}")
    e(f"s_min_u32 s{sW1S}, s{sI}, 13"); e(f"s_lshl_b32 s{sW1S}, s{sW1S}, 17"); e(f"s_lshl_b32 s{sT0+6}, s{sW}, 14")
    e(f"s_add_u32 s{sW1S}, s{sW1S}, s{sT0+6}"); e(f"s_add_u32 s{sW1S}, s{sW1S}, {PK1}")
    def wo_dma():
        e(f"buffer_load_dwordx4 v{vL16}, {srd(sWS)}, s{sT0+5} offen sc1 lds")
        e(f"s_add_u32 m0, m0, 1024"); e(f"s_add_u32 s{sT0+5}, s{sT0+5}, 1024")
    def w1_load(k):
        if k and k % 4 == 0: e(f"s_add_u32 s{sW1S}, s{sW1S}, 4096")
        e(f"buffer_load_dwordx4 {V(vSTG+4*k,4)}, v{vL16}, {srd(sWS)}, s{sW1S} offen offset:{(k%4)*1024} sc1")
    for r in range(16): e(f"v_mov_b32 v{vV+r}, 0x3f803f80")
    e("s_waitcnt lgkmcnt(0)")
    e(f"v_readfirstlane_b32 s{sMODE}, v{vM}")
    def Sb(j): return vS + 16*(j % 3)
    def smfma(j, c): e(f"{MF} {V(Sb(j),16)}, {V(vK+4*j,4)}, {V(vQ,4)}, {c}")
    def vread(j):
        Vb = vV + 8*(j % 2)
        e(f"s_mov_b64 exec, {sp(sM16)}")
        e(f"ds_read_b128 {V(Vb,4)}, v{vAV} offset:{L_VST + (8-j)*2048}")
        e(f"ds_read_b128 {V(Vb+4,4)}, v{vAV} offset:{L_VST + (8-j)*2048 + 1024}")
        e("s_mov_b64 exec, -1")
    def mf_read(j):
        for g in range(4): e(f"ds_read_b128 {V(Sb(j)+4*g,4)}, v{vAQ} offset:{4096+g*1024}")
    def maxes(j):
        for k in range(8): e(f"v_max3_f32 v{vM}, v{Sb(j)+2*k}, v{Sb(j)+2*k+1}, v{vM}")
    def finish_max():
        e(f"v_mov_b32 v{vM+1}, v{vM}"); a.nop(2)
        e(f"v_permlane32_swap_b32 v{vM+1}, v{vM}"); a.nop(1)
        e(f"v_max_f32 v{vM}, v{vM}, v{vM+1}")
        e(f"v_sub_f32 v{vM}, 0, v{vM}")
        for r in range(16): e(f"v_mov_b32 v{vCb+r}, v{vM}")
        a.nop(2)
    def tile2(j, first):
        S = Sb(j); Vb = vV + 8*(j % 2)
        for r in range(8): e(f"v_exp_f32 v{S+r}, v{S+r}")
        for d in range(4): e(f"v_cvt_pk_bf16_f32 v{vP+d}, v{S+2*d}, v{S+2*d+1}")
        if j == 0:
            for d in range(4): e(f"v_and_b32 v{vP+d}, v{vP+d}, v{vMB+d}")
        if j == 8:
            for d in range(4): e(f"v_bfi_b32 v{vP+d}, v{vMB+d}, 0, v{vP+d}")
        for r in range(8, 16): e(f"v_exp_f32 v{S+r}, v{S+r}")
    def tile2b(j, first):
        S = Sb(j); Vb = vV + 8*(j % 2)
        e(f"{MF} {V(vO,16)}, {V(Vb,4)}, {V(vP,4)}, {'0' if first else V(vO,16)}")
        for d in range(4, 8): e(f"v_cvt_pk_bf16_f32 v{vP+d}, v{S+2*d}, v{S+2*d+1}")
        if j == 0:
            for d in range(4, 8): e(f"v_and_b32 v{vP+d}, v{vP+d}, v{vMB+d}")
        if j == 8:
            for d in range(4, 8): e(f"v_bfi_b32 v{vP+d}, v{vMB+d}, 0, v{vP+d}")
        a.nop(2)
        e(f"{MF} {V(vO,16)}, {V(Vb+4,4)}, {V(vP+4,4)}, {V(vO,16)}")

    Lgen, Lfin = a.new("L_att_gen"), a.new("L_att_fin")
    bg = [("wo", k) for k in range(8)] + [("w1", k) for k in range(16)]
    if args.hpre == 2: bg = [("w1", k) for k in range(16)]
    if args.nobg == 1: bg = []
    def bg_issue(n, guard=False):
        for _ in range(n):
            if bg:
                kind, k = bg.pop(0)
                Ls = None
                if guard or (args.w1late and kind == "w1"):
                    Ls = a.new("L_bgs")
                    if guard: e(f"s_cbranch_vccz {Ls}")
                    if args.w1late and kind == "w1": e(f"s_bitcmp1_b32 s{sW}, 2"); e(f"s_cbranch_scc1 {Ls}")
                wo_dma() if kind == "wo" else w1_load(k)
                if Ls: a.lab(Ls)
    def exact_path(nmax):
        for g in range(4): e(f"ds_read_b128 {V(vS+4*g,4)}, v{vAQ} offset:{g*1024}")
        e(f"v_mov_b32 v{vM}, {NEG:#x}")
        e("s_waitcnt lgkmcnt(0)")
        Lp1 = a.new("L_p1done")
        for j in range(nmax):
            if j == 8:
                mf_read(8); e("s_waitcnt lgkmcnt(0)")
            smfma(j, V(Sb(j), 16) if j in (0, 8) else "0")
            a.nop(14)
            maxes(j)
            if j < nmax - 1:
                e(f"s_cmp_le_u32 s{sN}, {j+1}"); e(f"s_cbranch_scc1 {Lp1}")
        a.lab(Lp1)
        finish_max()
        Lp2 = a.new("L_p2done")
        for j in range(nmax):
            smfma(j, V(vCb,16)); vread(j)
            a.nop(12)
            tile2(j, j == 0)
            e("s_waitcnt lgkmcnt(0)")
            tile2b(j, j == 0)
            if j < nmax - 1:
                e(f"s_cmp_le_u32 s{sN}, {j+1}"); e(f"s_cbranch_scc1 {Lp2}")
        a.lab(Lp2)
    if args.nomax:
        Lup, Lgo, Lfd = a.new("L_bgup"), a.new("L_fastgo"), a.new("L_fastdone")
        e(f"s_cmp_eq_u32 s{sN}, 9"); e("s_cselect_b64 vcc, -1, 0")
        e(f"s_cbranch_vccnz {Lgo}")
        saved = list(bg)
        bg_issue(len(bg))
        bg.extend(saved)
        a.lab(Lgo)
        if args.p2prio:
            Lpr = a.new("L_prio")
            e(f"s_cmp_lt_u32 s{sW}, 4"); e(f"s_cbranch_scc1 {Lpr}")
            e("s_setprio 1")
            a.lab(Lpr)
        smfma(0, "0"); smfma(1, "0"); vread(0)
        bg_issue(3, True)
        a.nop(10)
        for j in range(9):
            if j + 2 <= 8: smfma(j + 2, "0")
            if j + 1 <= 8: vread(j + 1)
            bg_issue(args.bg2, True)
            tile2(j, j == 0)
            if j < 8: bg_issue(1, True)
            e(f"s_waitcnt lgkmcnt({2 if j < 8 else 0})")
            tile2b(j, j == 0)
            if args.p2prio and j == args.p2prio - 1: e("s_setprio 0")
            if j < 8:
                e(f"s_cmp_le_u32 s{sN}, {j+1}"); e(f"s_cbranch_scc1 {Lfd}")
        bg_issue(len(bg), True)
        a.lab(Lfd)
        if args.p2prio: e("s_setprio 0")
        a.nop(14)
        e(f"v_max3_f32 v{vM}, |v{vO}|, |v{vO+1}|, |v{vO+2}|")
        e(f"v_max3_f32 v{vM}, |v{vO+3}|, |v{vO+4}|, v{vM}")
        e(f"v_max3_f32 v{vM}, |v{vO+5}|, |v{vO+6}|, v{vM}")
        e(f"v_max_f32 v{vM}, |v{vO+7}|, v{vM}")
        e(f"s_mov_b32 s{sT0}, {f2u(2.0**-40):#x}"); e(f"s_mov_b32 s{sT0+1}, {f2u(2.0**40):#x}"); e(f"s_mov_b32 s{sT0+2}, {f2u(2.0**120):#x}")
        e(f"v_cmp_le_f32 vcc, s{sT0}, v{vO+8}")
        e(f"v_cmp_ge_f32 s[{sT0+10}:{sT0+11}], s{sT0+1}, v{vO+8}")
        e(f"s_and_b64 vcc, vcc, s[{sT0+10}:{sT0+11}]")
        e(f"v_cmp_ge_f32 s[{sT0+10}:{sT0+11}], s{sT0+2}, v{vM}")
        e(f"s_and_b64 vcc, vcc, s[{sT0+10}:{sT0+11}]")
        if args.forcefb: e("s_mov_b64 vcc, 0")
        e(f"s_cmp_eq_u64 vcc, -1"); e(f"s_cbranch_scc1 {Lfin}")
        e("s_waitcnt lgkmcnt(0)")
        exact_path(9)
    else:
        e(f"s_cmp_lt_u32 s{sN}, 9"); e(f"s_cbranch_scc1 {Lgen}")
        for g in range(4): e(f"ds_read_b128 {V(vS+4*g,4)}, v{vAQ} offset:{g*1024}")
        e(f"v_mov_b32 v{vM}, {NEG:#x}")
        e("s_waitcnt lgkmcnt(0)")
        saved = list(bg)
        for j in range(11):
            if j <= 8:
                if j == 8: e("s_waitcnt lgkmcnt(0)")
                smfma(j, V(Sb(j), 16) if j in (0, 8) else "0")
            bg_issue(args.bg1)
            if j == 2: a.nop(10)
            if j >= 2: maxes(j - 2)
            if j == 7: mf_read(8)
        finish_max()
        smfma(0, V(vCb,16)); smfma(1, V(vCb,16)); vread(0)
        a.nop(10)
        for j in range(9):
            if j + 2 <= 8: smfma(j + 2, V(vCb,16))
            if j + 1 <= 8: vread(j + 1)
            bg_issue(args.bg2)
            tile2(j, j == 0)
            e(f"s_waitcnt lgkmcnt({2 if j < 8 else 0})")
            tile2b(j, j == 0)
        bg_issue(len(bg))
        e(f"s_branch {Lfin}")
        a.lab(Lgen)
        bg.extend(saved); bg_issue(len(bg))
        exact_path(8)
    a.lab(Lfin)
    a.nop(14)
    e(f"v_rcp_f32 v{vM}, v{vO+8}"); a.nop(1)
    for r in range(8): e(f"v_mul_f32 v{vO+r}, v{vO+r}, v{vM}")
    for d in range(4): e(f"v_cvt_pk_bf16_f32 v{vP+d}, v{vO+2*d}, v{vO+2*d+1}")
    e(f"s_and_b32 s{sT0}, s{sW}, 3"); e(f"s_lshr_b32 s{sT0+1}, s{sW}, 2")
    e(f"s_lshl_b32 s{sT0+2}, s{sB}, 2"); e(f"s_add_u32 s{sT0+2}, s{sT0+2}, s{sT0}"); e(f"s_lshl_b32 s{sT0+2}, s{sT0+2}, 15")
    e(f"s_lshl_b32 s{sT0+3}, s{sI}, 11"); e(f"s_add_u32 s{sT0+2}, s{sT0+2}, s{sT0+3}")
    e(f"s_lshl_b32 s{sT0+3}, s{sT0+1}, 10"); e(f"s_add_u32 s{sT0+2}, s{sT0+2}, s{sT0+3}")
    e(f"s_add_u32 s{sT0+2}, s{sT0+2}, {OF}")
    moded(lambda fl: e(f"buffer_store_dwordx4 {V(vP,4)}, v{vL16}, {srd(sWS)}, s{sT0+2} offen{fl}"))
    fstamp("p2pre")
    e("s_waitcnt vmcnt(0)")
    e("s_barrier")
    fstamp("p2end")
    if args.prio and args.prio2 >= 0: e("s_setprio 0")
    e(f"s_cmp_ge_u32 s{sW}, 4"); e("s_cbranch_scc1 L_p3_helper")
    if args.prio: e(f"s_setprio {args.prio}")
    team_signal(1, 4)
    def w1_to_lds():
        e(f"s_lshl_b32 s{sT0}, s{sW}, 14"); e(f"v_add_u32 v7, s{sT0}, v{vL16}")
        for k in range(16): e(f"ds_write_b128 v7, {V(vSTG+4*k,4)} offset:{k*1024}")
    if STOP == 2:
        e("s_waitcnt vmcnt(0) lgkmcnt(0)"); e("s_branch L_end")

    def n64_bases(vmine, vother, lds_base_sreg):
        tr_base_common(vmine, vother, 6)
        e(f"v_bfe_u32 v6, v{vmine}, 1, 1")
        e(f"v_lshl_add_u32 v{vother}, v{vmine}, 7, v{vother}")
        e(f"s_lshr_b32 s{sT0+3}, s{sW}, 1")
        e(f"v_xor_b32 v6, s{sT0+3}, v6")
        e(f"v_lshl_add_u32 v{vmine}, v6, 6, v{vother}")
        e(f"v_xor_b32 v6, 1, v6")
        e(f"v_lshl_add_u32 v{vother}, v6, 6, v{vother}")
        e(f"v_add_u32 v{vmine}, s{lds_base_sreg}, v{vmine}")
        e(f"v_add_u32 v{vother}, s{lds_base_sreg}, v{vother}")
    def unpack_res(dst, bias):
        for d in range(8):
            e(f"v_lshlrev_b32 v{dst+2*d}, 16, v{vRES+d}")
            e(f"v_and_b32 v{dst+2*d+1}, 0xffff0000, v{vRES+d}")
        if bias is not None:
            for p in range(8): e(f"v_pk_add_f32 {V(dst+2*p,2)}, {V(dst+2*p,2)}, {V(bias+2*p,2)}")

    def exchange_and_epilogue(is_p5):
        accM, accO = 16, 32
        nm = "p5" if is_p5 else "p3"
        a.nop(12)
        e(f"s_lshl_b32 s{sT0}, s{sW}, 12"); e(f"s_add_u32 s{sT0}, s{sT0}, {L_EX}")
        e(f"v_add_u32 v6, s{sT0}, v{vL16}")
        for q in range(4): e(f"ds_write_b128 v6, {V(accO+4*q,4)} offset:{q*1024}")
        tile_ids()
        e(f"s_lshl_b32 s{sT0}, s{sT0+4}, 15")
        e(f"s_and_b32 s{sT0+1}, s{sI}, 7"); e(f"s_lshl_b32 s{sT0+2}, s{sT0+1}, 12"); e(f"s_add_u32 s{sT0}, s{sT0}, s{sT0+2}")
        e(f"s_lshl_b32 s{sT0+2}, s{sT0+3}, 11"); e(f"s_add_u32 s{sT0}, s{sT0}, s{sT0+2}")
        e(f"s_add_u32 s{sT0}, s{sT0}, {XF if is_p5 else X2F}")
        e(f"s_lshl_b32 s{sT0+5}, s{sT0+4}, 12")
        e(f"s_lshl_b32 s{sT0+2}, s{sT0+1}, 9"); e(f"s_add_u32 s{sT0+5}, s{sT0+5}, s{sT0+2}")
        e(f"s_lshl_b32 s{sT0+2}, s{sT0+3}, 8"); e(f"s_add_u32 s{sT0+5}, s{sT0+5}, s{sT0+2}")
        e(f"s_add_u32 s{sT0+5}, s{sT0+5}, {ST1 if is_p5 else ST2}")
        e(f"s_xor_b32 s{sT0+6}, s{sW}, 2"); e(f"s_lshl_b32 s{sT0+6}, s{sT0+6}, 12"); e(f"s_add_u32 s{sT0+6}, s{sT0+6}, {L_EX}")
        e(f"v_add_u32 v7, s{sT0+6}, v{vL16}")
        e(f"v_and_b32 v10, 31, v{vLANE}"); e(f"v_lshlrev_b32 v10, 3, v10")
        e("s_waitcnt lgkmcnt(0)")
        e("s_barrier")
        fstamp(nm + "x")
        for q in range(4): e(f"ds_read_b128 {V(accO+4*q,4)}, v7 offset:{q*1024}")
        for q in range(4):
            e(f"s_waitcnt lgkmcnt({3-q})")
            e(f"v_pk_add_f32 {V(accM+4*q,2)}, {V(accM+4*q,2)}, {V(accO+4*q,2)}")
            e(f"v_pk_add_f32 {V(accM+4*q+2,2)}, {V(accM+4*q+2,2)}, {V(accO+4*q+2,2)}")
        for d in range(8): e(f"v_cvt_pk_bf16_f32 v{vRES+d}, v{accM+2*d}, v{accM+2*d+1}")
        def st_data(fl):
            e(f"buffer_store_dwordx4 {V(vRES,4)}, v{vL16}, {srd(sWS)}, s{sT0} offen{fl}")
            e(f"buffer_store_dwordx4 {V(vRES+4,4)}, v{vL16}, {srd(sWS)}, s{sT0} offen offset:1024{fl}")
        def stats():
            e(f"v_pk_mul_f32 {V(32,2)}, {V(accM,2)}, {V(accM,2)}")
            e(f"v_pk_add_f32 {V(34,2)}, {V(accM,2)}, {V(accM+2,2)}")
            e(f"v_pk_fma_f32 {V(32,2)}, {V(accM+2,2)}, {V(accM+2,2)}, {V(32,2)}")
            for p in range(2, 8):
                e(f"v_pk_add_f32 {V(34,2)}, {V(34,2)}, {V(accM+2*p,2)}")
                e(f"v_pk_fma_f32 {V(32,2)}, {V(accM+2*p,2)}, {V(accM+2*p,2)}, {V(32,2)}")
            e("v_add_f32 v8, v34, v35"); e("v_add_f32 v9, v32, v33")
            e("v_mov_b32 v12, v8"); e("v_mov_b32 v13, v9"); a.nop(2)
            e("v_permlane32_swap_b32 v12, v8"); e("v_permlane32_swap_b32 v13, v9"); a.nop(1)
            e(f"v_pk_add_f32 {V(8,2)}, {V(8,2)}, {V(12,2)}")
        def st_stats(fl):
            e(f"s_mov_b64 exec, {sp(sM32)}")
            e(f"buffer_store_dwordx2 v[8:9], v10, {srd(sWS)}, s{sT0+5} offen{fl}")
            e("s_mov_b64 exec, -1")
        def normal(delta):
            moded(st_data); stats(); moded(st_stats)
            fstamp(nm + "pre")
            e("s_waitcnt vmcnt(0)")
            fstamp(nm + "drain")
            team_signal(delta, 4)
        if is_p5:
            Lf, Lj = a.new("L_final"), a.new("L_fj")
            e(f"s_cmp_eq_u32 s{sL}, 1"); e(f"s_cbranch_scc1 {Lf}")
            normal(4)
            e(f"s_branch {Lj}")
            a.lab(Lf)
            e(f"v_and_b32 v10, 31, v{vLANE}"); e(f"v_lshlrev_b32 v10, 10, v10")
            e(f"v_lshrrev_b32 v11, 5, v{vLANE}"); e(f"v_lshl_add_u32 v10, v11, 3, v10")
            e(f"s_lshl_b32 s{sT0}, s{sT0+4}, 15")
            e(f"s_lshl_b32 s{sT0+2}, s{sT0+1}, 7"); e(f"s_add_u32 s{sT0}, s{sT0}, s{sT0+2}")
            e(f"s_lshl_b32 s{sT0+2}, s{sT0+3}, 6"); e(f"s_add_u32 s{sT0}, s{sT0}, s{sT0+2}")
            for g in range(4):
                e(f"buffer_store_dwordx2 {V(vRES+2*g,2)}, v10, {srd(sOUT)}, s{sT0} offen offset:{g*16}")
            e("s_branch L_end")
            a.lab(Lj)
        else:
            normal(2)

    w1_to_lds()
    unpack_res(48, None)
    e("s_waitcnt lgkmcnt(0)")
    team_wait(1, 4)
    fstamp("p3poll")
    tile_ids()
    e(f"s_lshl_b32 s{sT0+2}, s{sT0+3}, 4")
    x_setup(OF, 32, sT0+2, sT0+4)
    for k in range(XA): x_load(k, 64 + 4*k)
    e(f"s_lshl_b32 s{sT0+8}, s{sT0+3}, 15"); e(f"s_add_u32 s{sT0+8}, s{sT0+8}, {L_WO}")
    n64_bases(4, 5, sT0+8)
    vWf = 128
    def wread3(s):
        dst = vWf + 8*(s % 3); off = s*2048
        e(f"ds_read_b64_tr_b16 {V(dst,2)}, v4 offset:{off}"); e(f"ds_read_b64_tr_b16 {V(dst+2,2)}, v4 offset:{off+1024}")
        e(f"ds_read_b64_tr_b16 {V(dst+4,2)}, v5 offset:{off}"); e(f"ds_read_b64_tr_b16 {V(dst+6,2)}, v5 offset:{off+1024}")
    wread3(0); wread3(1)
    for s in range(16):
        e(f"s_waitcnt vmcnt({min(XA, 16-s)-1})")
        if s == 0: fstamp("p3x0")
        if s + XA < 16: x_load(s + XA, 64 + 4*(s + XA))
        if s + 2 < 16: wread3(s + 2)
        e(f"s_waitcnt lgkmcnt({4*min(2, 15-s)})")
        w = vWf + 8*(s % 3); x = 64 + 4*s
        e(f"{MF} v[16:31], {V(w,4)}, {V(x,4)}, {'v[48:63]' if s == 0 else 'v[16:31]'}")
        e(f"{MF} v[32:47], {V(w+4,4)}, {V(x,4)}, {'0' if s == 0 else 'v[32:47]'}")
    fstamp("p3main")
    exchange_and_epilogue(False)
    if STOP == 3:
        e("s_waitcnt vmcnt(0) lgkmcnt(0)"); e("s_branch L_end")
    e("s_branch L_p4_compute")

    a.lab("L_p3_helper")
    if STOP == 2: e("s_branch L_end")
    if args.w1late:
        for k in range(16): w1_load(k)
    if args.pfb: l2_prefetch(sWS, 57344, 14, dst=48, base=PK2)
    e("s_barrier")
    if STOP == 3: e("s_branch L_end")
    if args.w1late: e("s_waitcnt vmcnt(0)")
    e(f"s_lshl_b32 s{sT0}, s{sW}, 14"); e(f"v_add_u32 v6, s{sT0}, v{vL16}")
    for k in range(16): e(f"ds_write_b128 v6, {V(vSTG+4*k,4)} offset:{k*1024}")
    e(f"s_sub_u32 s{sT0}, s{sW}, 4")
    e(f"s_lshr_b32 s{sT0+1}, s{sT0}, 1"); e(f"s_and_b32 s{sT0+2}, s{sT0}, 1")
    e(f"s_mul_i32 s{sW1S}, s{sT0+1}, {112*1024}"); e(f"s_lshl_b32 s{sT0+4}, s{sT0+2}, 13"); e(f"s_add_u32 s{sW1S}, s{sW1S}, s{sT0+4}")
    e(f"s_and_b32 s{sT0+4}, s{sI}, 7"); e(f"s_mul_i32 s{sT0+4}, s{sT0+4}, {224*1024}"); e(f"s_add_u32 s{sW1S}, s{sW1S}, s{sT0+4}")
    e(f"s_add_u32 s{sW1S}, s{sW1S}, {PK2}")
    e("s_waitcnt lgkmcnt(0)")
    e("s_barrier")
    def w2_load(q, k, sleep=0):
        e(f"buffer_load_dwordx4 {V(16+32*q+4*k,4)}, v{vL16}, {srd(sWS)}, s{sW1S} offen offset:{(k%4)*1024} sc1")
        if k == 3: e(f"s_add_u32 s{sW1S}, s{sW1S}, 4096")
        if k == 7: e(f"s_add_u32 s{sW1S}, s{sW1S}, {16*1024 - 4096}")
        if sleep: e(f"s_sleep {sleep}")
    Lcs, Lw2d = a.new("L_cs4"), a.new("L_w2done")
    e(f"s_cmp_lg_u32 s{sL}, 0"); e(f"s_cbranch_scc1 {Lcs}")
    colsum_init("n128"); pass
    for q in range(4): colsum_chunk("n128", 208, q == 0, extra=lambda k, q=q: w2_load(q, k, args.l0w2s))
    colsum_fin("n128"); pass
    e("s_barrier")
    for q in range(4, args.w2pre):
        for k in range(8): w2_load(q, k, args.w2sleep)
    e(f"s_branch {Lw2d}")
    a.lab(Lcs)
    W2S = [int(x) for x in args.w2s.split(",")] if args.w2s else [args.w2sleep]*7
    for q in range(args.w2pre):
        for k in range(8): w2_load(q, k, W2S[q])
    a.lab(Lw2d)
    if args.pfq == 1:
        Lnq = a.new("L_nopfq")
        e(f"s_cmp_eq_u32 s{sL}, 1"); e(f"s_cbranch_scc1 {Lnq}")
        l2_prefetch(sWS, 49152, 12, dst=244, base=PKQ)
        a.lab(Lnq)
    e("s_barrier")
    if STOP == 4: e("s_branch L_end")
    if args.w2late == 0:
        for q in range(args.w2pre, 7):
            for k in range(8): w2_load(q, k)
    e(f"s_sub_u32 s{sT0}, s{sW}, 4"); e(f"s_lshl_b32 s{sT0}, s{sT0}, 13"); e(f"v_add_u32 v6, s{sT0}, v{vL16}")
    e("v_add_u32 v7, 65536, v6")
    issued = {"n": 7 if args.w2late == 0 else args.w2pre}
    def ring_write(q):
        y = 8*(issued["n"] - 1 - q)
        extra = 12 if ((args.pfq == 1 and q < args.w2pre) or (args.pfq == 2 and q >= PF)) else 0
        if extra:
            La, Lb = a.new("L_wa"), a.new("L_wb")
            e(f"s_cmp_eq_u32 s{sL}, 1"); e(f"s_cbranch_scc1 {La}")
            e(f"s_waitcnt vmcnt({min(63, y + extra)})"); e(f"s_branch {Lb}")
            a.lab(La); e(f"s_waitcnt vmcnt({y})"); a.lab(Lb)
        else:
            e(f"s_waitcnt vmcnt({y})")
        slot = (q % 4) * 32768
        for k in range(8):
            if args.p5now: break
            e(f"ds_write_b128 v{6 if slot < 65536 else 7}, {V(16+32*q+4*k,4)} offset:{slot % 65536 + k*1024}")
    PF = args.ringpre
    for q in range(PF): ring_write(q)
    e("s_waitcnt lgkmcnt(0)")
    for q in range(7):
        e("s_barrier")
        if q == 0 and args.pfq == 2:
            Lnq = a.new("L_nopfq")
            e(f"s_cmp_eq_u32 s{sL}, 1"); e(f"s_cbranch_scc1 {Lnq}")
            l2_prefetch(sWS, 49152, 12, dst=244, base=PKQ)
            a.lab(Lnq)
        if q == 0 and args.w2late == 1:
            for qq in range(args.w2pre, 7):
                for k in range(8): w2_load(qq, k)
            issued["n"] = 7
        nxt = [c for c in range(PF, 7) if (c == q + 1 and c < 4) or (c >= 4 and c == q + 2)]
        for c in nxt: ring_write(c)
        if nxt: e("s_waitcnt lgkmcnt(0)")
    e("s_barrier")
    e(f"s_cmp_eq_u32 s{sL}, 1"); e("s_cbranch_scc1 L_end")
    if STOP == 5: e("s_branch L_end")
    dma_wqkv_packed(0, 16)
    e(f"s_mov_b32 s{sL}, 1"); e(f"s_mov_b32 s{sKVO}, {LSTRIDE}")
    e("s_branch L_p1_helper_l1")

    a.lab("L_p4_compute")
    Lidle, Lp4e = a.new("L_p4idle"), a.new("L_p4end")
    e(f"s_cmp_ge_u32 s{sI}, 14"); e(f"s_cbranch_scc1 {Lidle}")
    team_wait(2, 4)
    fstamp("p4poll")
    vX = 80; vAcc = 16; vWf = 208
    e(f"s_lshl_b32 s{sT0+4}, s{sB}, 2"); e(f"s_add_u32 s{sT0+4}, s{sT0+4}, s{sW}")
    x_setup(X2F, 32, None, sT0+4)
    for k in range(XA): x_load(k, vX + 4*k)
    load_stats(ST2, 232, 4, sT0+4)
    tr_base_common(4, 5, 6)
    e("v_lshl_add_u32 v5, v4, 8, v5"); e("v_and_b32 v8, 3, v4")
    for ft in range(4):
        e(f"v_xor_b32 v9, {ft}, v8"); e(f"v_lshl_add_u32 v{10+ft}, v9, 6, v5")
    vA, vB = 4, 6
    e(f"v_lshrrev_b32 v8, 5, v{vLANE}"); e("v_lshlrev_b32 v8, 4, v8"); e(f"v_add_u32 v8, {L_CS4}, v8")
    e(f"s_mul_i32 s{sT0}, s{sT0+4}, {112*1024}")
    e(f"s_lshl_b32 s{sT0+1}, s{sI}, 13"); e(f"s_add_u32 s{sT0}, s{sT0}, s{sT0+1}"); e(f"s_add_u32 s{sT0}, s{sT0}, {HF}")
    e("s_barrier")
    class Lg:
        n = 0
    def lds(instr):
        e(instr); Lg.n += 1; return Lg.n
    def lwait(k):
        e(f"s_waitcnt lgkmcnt({min(15, Lg.n - k)})")
    NS = 6; PRE = NS - 1
    seq = [(s, ft) for s in range(32) for ft in range(3)] + [(s, 3) for s in range(32)]
    rid = {}
    def slot4(n): return vWf + 4*(n % NS)
    bumped = set()
    def issue4(n):
        s, ft = seq[n]
        if s >= 16 and ft not in bumped:
            e(f"v_add_u32 v{10+ft}, 65536, v{10+ft}"); bumped.add(ft)
        off = (s % 16) * 4096; dst = slot4(n)
        lds(f"ds_read_b64_tr_b16 {V(dst,2)}, v{10+ft} offset:{off}")
        rid[n] = lds(f"ds_read_b64_tr_b16 {V(dst+2,2)}, v{10+ft} offset:{off+2048}")
    gid = {}
    def grp_reads(G):
        ft, g = divmod(G, 4); b = 232 + 8*(G % 2)
        lds(f"ds_read_b128 {V(b,4)}, v8 offset:{ft*128 + g*32}")
        gid[G] = lds(f"ds_read_b128 {V(b+4,4)}, v8 offset:{512 + ft*128 + g*32}")
    def store_tile(ft):
        acc = vAcc + 16*ft
        if ft == 2: e(f"s_add_u32 s{sT0}, s{sT0}, 4096")
        def st4(fl):
            e(f"buffer_store_dwordx4 {V(acc,4)}, v{vL16}, {srd(sWS)}, s{sT0} offen offset:{(ft%2)*2048}{fl}")
            e(f"buffer_store_dwordx4 {V(acc+4,4)}, v{vL16}, {srd(sWS)}, s{sT0} offen offset:{(ft%2)*2048+1024}{fl}")
        moded(st4)
    items = []
    for G in range(12):
        ft, g = divmod(G, 4); b = 232 + 8*(G % 2); acc = vAcc + 16*ft
        items.append(("wait", G))
        for i in range(4):
            r = acc + 4*g + i
            items.append(("v", f"v_fma_f32 v{r}, v{r}, v{vA}, v{b+4+i}"))
            items.append(("v", f"v_fma_f32 v{r}, -v{vB}, v{b+i}, v{r}"))
        items.append(("next", G + 2))
        for i in range(4):
            r = acc + 4*g + i
            items.append(("v", f"v_max_f32 v{r}, 0, v{r}"))
            items.append(("v", f"v_mul_f32 v{r}, v{r}, v{r}"))
        for dd in range(2):
            d = 2*g + dd
            items.append(("v", f"v_cvt_pk_bf16_f32 v{acc+d}, v{acc+2*d}, v{acc+2*d+1}"))
        if g == 3: items.append(("st", ft))
    nv = sum(1 for it in items if it[0] == "v")
    def run_items(budget):
        done = 0
        while items and done < budget:
            it = items.pop(0)
            if it[0] == "v": e(it[1]); done += 1
            elif it[0] == "wait": lwait(gid[it[1]])
            elif it[0] == "next":
                if it[1] < 16: grp_reads(it[1])
            elif it[0] == "st": store_tile(it[1])
    for n in range(PRE): issue4(n)
    for n, (s, ft) in enumerate(seq):
        passB = n >= 96
        if not passB and ft == 0:
            e(f"s_waitcnt vmcnt({XA + 7 if s < XA else min(XA, 32-s)-1})")
            if s == 0: fstamp("p4x0")
            if s + XA < 32: x_load(s + XA, vX + 4*(s + XA))
        if not passB and ft == 1 and s == XA:
            reduce_partials(232); finish_stats(232, vA, vB)
        if n == 96:
            fstamp("p4A")
            Lnb4 = a.new("L_nob4b")
            e(f"s_cmp_lg_u32 s{sL}, 0"); e(f"s_cbranch_scc1 {Lnb4}")
            e("s_barrier")
            a.lab(Lnb4)
            grp_reads(0); grp_reads(1)
        lwait(rid[n])
        acc = vAcc + 16*ft; x = vX + 4*s; w = slot4(n)
        e(f"{MF} {V(acc,16)}, {V(w,4)}, {V(x,4)}, {'0' if s == 0 else V(acc,16)}")
        if n + PRE < len(seq): issue4(n + PRE)
        if n == 96: a.nop(10)
        if passB and n > 96: run_items(7)
    run_items(10**6)
    fstamp("p4main")
    e("s_barrier")
    acc = vAcc + 48
    for G in range(12, 16):
        g = G - 12; b = 232 + 8*(G % 2)
        lwait(gid[G])
        if G == 12: a.nop(8)
        for p in range(2):
            r = acc + 4*g + 2*p
            e(f"v_pk_fma_f32 {V(r,2)}, {V(r,2)}, {V(vA,2)}, {V(b+4+2*p,2)} op_sel_hi:[1,0,1]")
            e(f"v_pk_fma_f32 {V(r,2)}, {V(b+2*p,2)}, {V(vB,2)}, {V(r,2)} op_sel_hi:[1,0,1] neg_lo:[0,1,0] neg_hi:[0,1,0]")
        if G + 2 < 16: grp_reads(G + 2)
        for p in range(2):
            r = acc + 4*g + 2*p
            e(f"v_max_f32 v{r}, 0, v{r}"); e(f"v_max_f32 v{r+1}, 0, v{r+1}")
            e(f"v_pk_mul_f32 {V(r,2)}, {V(r,2)}, {V(r,2)}")
        for dd in range(2):
            d = 2*g + dd
            e(f"v_cvt_pk_bf16_f32 v{acc+d}, v{acc+2*d}, v{acc+2*d+1}")
    store_tile(3)
    fstamp("p4pre")
    e("s_waitcnt vmcnt(0)")
    fstamp("p4drain")
    e(f"s_branch {Lp4e}")
    a.lab(Lidle)
    e("s_barrier")
    Lnb4i = a.new("L_nob4bi")
    e(f"s_cmp_lg_u32 s{sL}, 0"); e(f"s_cbranch_scc1 {Lnb4i}")
    e("s_barrier")
    a.lab(Lnb4i)
    e("s_barrier")
    a.lab(Lp4e)
    team_signal(3, 4)
    fstamp("p4flag")
    if STOP == 4:
        e("s_waitcnt vmcnt(0) lgkmcnt(0)"); e("s_branch L_end")

    e(f"v_lshrrev_b32 v7, 5, v{vLANE}"); e(f"v_lshlrev_b32 v7, 4, v7")
    e(f"s_lshr_b32 s{sT0}, s{sW}, 1"); e(f"s_lshl_b32 s{sT0}, s{sT0}, 7"); e(f"s_add_u32 s{sT0}, s{sT0}, {L_B2}")
    e(f"v_add_u32 v7, s{sT0}, v7")
    for g in range(4): e(f"ds_read_b128 {V(32+4*g,4)}, v7 offset:{g*32}")
    e("s_waitcnt lgkmcnt(0)")
    unpack_res(48, 32)
    fstamp("p5pp")
    team_wait(3, 4)
    if args.fine and "p5cnt" in args.fine.split(","):
        k = args.fine.split(",").index("p5cnt"); e(f"s_mov_b32 s{64+2*k}, s{sCNT}")
    fstamp("p5poll")
    tile_ids()
    e(f"s_mul_i32 s{sT0+2}, s{sT0+3}, 56")
    NX = args.xahead5
    x_setup(HF, 112, sT0+2, sT0+4)
    def x5(k):
        if args.p5nox and k >= NX: return
        x_load(k, 64 + 4*(k % NX))
    for k in range(NX): x5(k)
    e(f"s_lshl_b32 s{sT0+8}, s{sT0+3}, 14")
    n64_bases(4, 5, sT0+8)
    e("v_add_u32 v8, 65536, v4"); e("v_add_u32 v9, 65536, v5")
    vWf = 176
    def wread5(s):
        q, ss = divmod(s, 8); dst = vWf + 8*(s % 3); off = (q % 4)*32768 + ss*2048
        b0, b1 = (8, 9) if off >= 65536 else (4, 5); off %= 65536
        e(f"ds_read_b64_tr_b16 {V(dst,2)}, v{b0} offset:{off}"); e(f"ds_read_b64_tr_b16 {V(dst+2,2)}, v{b0} offset:{off+1024}")
        e(f"ds_read_b64_tr_b16 {V(dst+4,2)}, v{b1} offset:{off}"); e(f"ds_read_b64_tr_b16 {V(dst+6,2)}, v{b1} offset:{off+1024}")
    e("s_barrier")
    fstamp("p5B")
    wread5(0); wread5(1)
    for s in range(56):
        e(f"s_waitcnt vmcnt({min(56, s + NX) - s - 1})")
        if s + 2 < 56:
            if (s + 2) % 8 == 0: e("s_barrier")
            wread5(s + 2)
        e(f"s_waitcnt lgkmcnt({4*min(2, 55-s)})")
        w = vWf + 8*(s % 3); x = 64 + 4*(s % NX)
        e(f"{MF} v[16:31], {V(w,4)}, {V(x,4)}, {'v[48:63]' if s == 0 else 'v[16:31]'}")
        e(f"{MF} v[32:47], {V(w+4,4)}, {V(x,4)}, {'0' if s == 0 else 'v[32:47]'}")
        if s + NX < 56: x5(s + NX)
    fstamp("p5main")
    exchange_and_epilogue(True)
    if STOP == 5:
        e("s_waitcnt vmcnt(0) lgkmcnt(0)"); e("s_branch L_end")
    e(f"s_mov_b32 s{sL}, 1"); e(f"s_mov_b32 s{sKVO}, {LSTRIDE}")
    e("s_branch L_p1_l1")
    a.lab("L_end")
    if args.fine:
        n = len(args.fine.split(","))
        e("s_waitcnt lgkmcnt(0)")
        e("s_cmp_ge_u32 s2, 256"); e("s_cbranch_scc1 L_end2")
        e(f"s_lshl_b32 s98, s2, 3"); e(f"s_add_u32 s98, s98, s{sW}"); e(f"s_lshl_b32 s98, s98, 8"); e(f"s_add_u32 s98, s98, {STAMP}")
        e("v_mov_b32 v3, 0"); e("s_mov_b64 exec, 1")
        for k in range(n):
            e(f"v_mov_b32 v2, s{64+2*k}")
            e(f"buffer_store_dword v2, v3, {srd(sWS)}, s98 offen offset:{4*k}"); e("s_nop 1")
        a.lab("L_end2")
    e("s_endpgm")
    return a.text()

HEADER = """; Fused 2-layer (sliding-window attention + squared-ReLU MLP) megakernel for gfx950.
; @launch grid=(256,1,1) block=(512,1,1) lds=163840
.amdgcn_target "amdgcn-amd-amdhsa--gfx950"
.text
.globl {n}_kernel
.p2align 8
.type {n}_kernel,@function
{n}_kernel:
"""
FOOTER = """.section .rodata,"a"
.p2align 6
.amdhsa_kernel {n}_kernel
  .amdhsa_next_free_vgpr 256
  .amdhsa_next_free_sgpr 102
  .amdhsa_accum_offset 256
  .amdhsa_group_segment_fixed_size 0
  .amdhsa_kernarg_size 88
  .amdhsa_user_sgpr_count 2
  .amdhsa_user_sgpr_kernarg_segment_ptr 1
  .amdhsa_system_sgpr_workgroup_id_x 1
.end_amdhsa_kernel
"""
def parse(argv=None):
    ap = argparse.ArgumentParser()
    ap.add_argument("--stop", type=int, default=-1)
    ap.add_argument("--slow", action="store_true")
    ap.add_argument("--dbgq", action="store_true")
    ap.add_argument("--rt", action="store_true")
    ap.add_argument("--fine", default="")
    ap.add_argument("--xahead", type=int, default=8)
    ap.add_argument("--xahead0", type=int, default=12)
    ap.add_argument("--xahead5", type=int, default=12)
    ap.add_argument("--w2sleep", type=int, default=1)
    ap.add_argument("--nobg", type=int, default=0)
    ap.add_argument("--cpf", type=int, default=1)
    ap.add_argument("--l0w2s", type=int, default=1)
    ap.add_argument("--touch", type=int, default=0)
    ap.add_argument("--packq", type=int, default=-1)
    ap.add_argument("--packst", type=int, default=0)
    ap.add_argument("--regq", type=int, default=2)
    ap.add_argument("--xreg", type=int, default=1)
    ap.add_argument("--l0pre", type=int, default=16)
    ap.add_argument("--w1late", type=int, default=0)
    ap.add_argument("--psleep", type=int, default=1)
    ap.add_argument("--kvsleep", type=int, default=1)
    ap.add_argument("--p2prio", type=int, default=0)
    ap.add_argument("--pfa", type=int, default=0)
    ap.add_argument("--pfa_n", type=int, default=40)
    ap.add_argument("--pfb", type=int, default=0)
    ap.add_argument("--hpre", type=int, default=0)
    ap.add_argument("--nomax", type=int, default=1)
    ap.add_argument("--forcefb", type=int, default=0)
    ap.add_argument("--w2pre", type=int, default=7)
    ap.add_argument("--w2late", type=int, default=0)
    ap.add_argument("--ringpre", type=int, default=4)
    ap.add_argument("--w2s", default="2,2,2,2,1,1,1")
    ap.add_argument("--prio", type=int, default=0)
    ap.add_argument("--prio2", type=int, default=0)
    ap.add_argument("--p5nox", type=int, default=0)
    ap.add_argument("--p5now", type=int, default=0)
    ap.add_argument("--bg1", type=int, default=1)
    ap.add_argument("--bg2", type=int, default=1)
    ap.add_argument("--bgorder", type=int, default=0)
    ap.add_argument("--pf0", type=int, default=0)
    ap.add_argument("--pfq", type=int, default=2)
    ap.add_argument("-o", default="/dev/stdout")
    return ap.parse_args(argv)
if __name__ == "__main__":
    args = parse()
    open(args.o, "w").write(HEADER.format(n=NAME) + build(args) + FOOTER.format(n=NAME))
```

```python
import sys, argparse, struct

NAME = "interleave_layers__sliding_block__dense_activation_squared_relu__prompt"

CTRL = 0x0
C_KV  = 1024
REGA = 0x18000
ERRA = 0x1C000
STAMP= 0x20000
XF   = 0x100000
X2F  = 0x300000
OF   = 0x500000
ST1  = 0x700000
ST2  = 0x740000
KF   = 0x800000
VF   = 0xC00000
HF   = 0x1000000
LSTRIDE = 0x200000
PKQ  = 0x1800000
PKO  = 0x1A00000
PK1  = 0x1B00000
PK2  = 0x1D00000

L_KST  = 0
L_VST  = 24576
L_QST  = 49152
L_WO   = 65536
L_EX   = 131072
L_STA  = 147456
L_MD   = 151552
L_MF   = L_MD + 4096
L_MB   = L_MF + 4096
L_CS1  = L_MB + 2048
L_CS4  = L_CS1 + 512
L_B1   = L_CS4 + 512
L_B2   = L_B1 + 512
L_MODE = L_B2 + 256
LDS_BYTES = 163840
assert L_MODE + 16 <= LDS_BYTES

NEG = 0xF149F2CA
QSCALE = 0.25 * 1.4426950408889634
def f2u(f): return struct.unpack("<I", struct.pack("<f", f))[0]

sWS, sWQ, sWO, sW1, sW2, sX, sOUT, sDBG, sTS = 8, 12, 16, 20, 24, 28, 32, 36, 40
sB, sI, sW, sMODE, sL, sTEAM, sMYF, sFAIL = 44, 45, 46, 47, 48, 49, 50, 51
sT0 = 52
sKA = 64
sM16, sM32 = 86, 88
sTGT, sCNT, sXCC, sN, sKVO, sNONCE = 90, 91, 92, 93, 94, 95
sXS = 61
sW1S = 60
def srd(x): return f"s[{x}:{x+3}]"
def sp(x): return f"s[{x}:{x+1}]"
def V(a, n=1): return f"v{a}" if n == 1 else f"v[{a}:{a+n-1}]"

vLANE, vL16 = 0, 1
vRES = 248
vSTG = 180

class Asm:
    def __init__(self): self.l = []; self.uid = 0
    def e(self, s): self.l.append("  " + s)
    def lab(self, s): self.l.append(s + ":")
    def new(self, p="L"):
        self.uid += 1; return f"{p}_{self.uid}"
    def text(self): return "\n".join(self.l) + "\n"
    def nop(self, n):
        while n > 0:
            k = min(n, 16); self.e(f"s_nop {k-1}"); n -= k

def build(args):
    a = Asm(); e = a.e
    STOP = args.stop
    POLL_LIMIT = 1 << args.plog
    XA = args.xahead
    MF = "v_mfma_f32_32x32x16_bf16"

    def fstamp(name):
        if not args.fine or name not in args.fine.split(","): return
        k = args.fine.split(",").index(name)
        if name.endswith("cnt"): return
        e(f"s_memrealtime s[{64+2*k}:{65+2*k}]" if args.rt else f"s_memtime s[{64+2*k}:{65+2*k}]")

    pid = {"n": 0}
    def fail_record():
        pid["n"] += 1
        e(f"s_mov_b32 s{sFAIL}, 1")
        if args.diag:
            e(f"s_lshl_b32 s96, s2, 3"); e(f"s_add_u32 s96, s96, s{sW}"); e(f"s_lshl_b32 s96, s96, 2"); e(f"s_add_u32 s96, s96, {ERRA}")
            e(f"s_lshl_b32 s97, s{sL}, 8"); e(f"s_add_u32 s97, s97, {0x1000 + pid['n']}")
            e("v_mov_b32 v2, s97"); e("v_mov_b32 v3, 0"); e("s_mov_b64 s[98:99], exec"); e("s_mov_b64 exec, 1")
            e(f"buffer_store_dword v2, v3, {srd(sWS)}, s96 offen sc1"); e("s_mov_b64 exec, s[98:99]")
    def poll(voff, soff, tgt, vtmp, sleep=1):
        L = a.new("L_poll"); D = a.new("L_pdone")
        e(f"s_mov_b32 s{sCNT}, {POLL_LIMIT}")
        e(f"s_cmp_eq_u32 s{sFAIL}, 0"); e(f"s_cbranch_scc0 {D}")
        a.lab(L)
        e(f"buffer_load_dword v{vtmp}, v{voff}, {srd(sWS)}, s{soff} offen sc1")
        e("s_waitcnt vmcnt(0)")
        e(f"v_cmp_gt_u32 vcc, s{tgt}, v{vtmp}")
        e(f"s_cbranch_vccz {D}")
        if sleep: e(f"s_sleep {sleep}")
        e(f"s_sub_u32 s{sCNT}, s{sCNT}, 1"); e(f"s_cbranch_scc0 {L}")
        fail_record()
        a.lab(D)

    def poll64(voff, soff, tgt, vtmp, sleep=2):
        L = a.new("L_poll"); D = a.new("L_pdone")
        e(f"s_mov_b32 s{sCNT}, {POLL_LIMIT}")
        e(f"s_cmp_eq_u32 s{sFAIL}, 0"); e(f"s_cbranch_scc0 {D}")
        a.lab(L)
        e(f"buffer_load_dwordx2 v[{vtmp}:{vtmp+1}], v{voff}, {srd(sWS)}, s{soff} offen sc1")
        e("s_waitcnt vmcnt(0)")
        e(f"v_subrev_u32 v{vtmp+2}, s{tgt}, v{vtmp+1}")
        e(f"v_cmp_ne_u32 vcc, s{sNONCE}, v{vtmp}")
        e(f"v_cmp_lt_u32 s[{sT0+10}:{sT0+11}], 31, v{vtmp+2}")
        e(f"s_or_b64 vcc, vcc, s[{sT0+10}:{sT0+11}]")
        e(f"s_cbranch_vccz {D}")
        if sleep: e(f"s_sleep {sleep}")
        e(f"s_sub_u32 s{sCNT}, s{sCNT}, 1"); e(f"s_cbranch_scc0 {L}")
        fail_record()
        a.lab(D)

    def nonce_poll(v):
        L = a.new("L_npoll"); D = a.new("L_ndone")
        e(f"v_mov_b32 v{v}, 0")
        e(f"s_mov_b32 s{sCNT}, {POLL_LIMIT}")
        a.lab(L)
        e(f"buffer_load_dword v{v+1}, v{v}, {srd(sDBG)}, 0 offen sc1")
        e("s_waitcnt vmcnt(0)")
        e(f"v_readfirstlane_b32 s{sNONCE}, v{v+1}")
        e(f"s_cmp_lg_u32 s{sNONCE}, 0"); e(f"s_cbranch_scc1 {D}")
        e("s_sleep 2")
        e(f"s_sub_u32 s{sCNT}, s{sCNT}, 1"); e(f"s_cbranch_scc0 {L}")
        fail_record()
        a.lab(D)

    def moded(fn):
        F = a.new("L_fast"); J = a.new("L_join")
        e(f"s_cmp_eq_u32 s{sMODE}, 1"); e(f"s_cbranch_scc1 {F}")
        fn(" sc1"); e(f"s_branch {J}")
        a.lab(F); fn(""); a.lab(J)

    def team_wait(delta, vt):
        e(f"s_lshl_b32 s{sTGT}, s{sL}, 2")
        e(f"s_add_u32 s{sTGT}, s{sTGT}, {delta}")
        e(f"v_lshlrev_b32 v{vt}, 2, v{vLANE}")
        poll(vt, sTEAM, sTGT, vt + 1, sleep=args.psleep)

    def team_signal(delta, vt):
        e(f"s_lshl_b32 s{sT0}, s{sL}, 2")
        e(f"s_add_u32 s{sT0}, s{sT0}, {delta}")
        e(f"v_mov_b32 v{vt}, s{sT0}"); e(f"v_mov_b32 v{vt+1}, 0")
        e("s_mov_b64 exec, 1")
        moded(lambda fl: e(f"buffer_store_dword v{vt}, v{vt+1}, {srd(sWS)}, s{sMYF} offen{fl}"))
        e("s_mov_b64 exec, -1")

    def tr_base_common(vrow, vcol, vt):
        e(f"v_lshrrev_b32 v{vrow}, 5, v{vLANE}")
        e(f"v_lshlrev_b32 v{vrow}, 2, v{vrow}")
        e(f"v_bfe_u32 v{vt}, v{vLANE}, 2, 2")
        e(f"v_add_u32 v{vrow}, v{vrow}, v{vt}")
        e(f"v_bfe_u32 v{vcol}, v{vLANE}, 4, 1")
        e(f"v_lshlrev_b32 v{vcol}, 5, v{vcol}")
        e(f"v_and_b32 v{vt}, 3, v{vLANE}")
        e(f"v_lshlrev_b32 v{vt}, 3, v{vt}")
        e(f"v_add_u32 v{vcol}, v{vcol}, v{vt}")

    def voff_qkv(v, vt):
        e(f"v_lshrrev_b32 v{v}, 2, v{vLANE}")
        e(f"v_mul_u32_u24 v{v}, 3072, v{v}")
        e(f"v_and_b32 v{vt}, 3, v{vLANE}")
        e(f"v_lshl_add_u32 v{v}, v{vt}, 4, v{v}")
    def voff_n64(v, vt):
        e(f"v_lshrrev_b32 v{v}, 3, v{vLANE}")
        e(f"v_lshlrev_b32 v{v}, 10, v{v}")
        e(f"v_lshrrev_b32 v{vt}, 2, v{vLANE}")
        e(f"v_lshrrev_b32 v{vt+1}, 4, v{vLANE}")
        e(f"v_xor_b32 v{vt}, v{vt}, v{vt+1}")
        e(f"v_and_b32 v{vt}, 1, v{vt}")
        e(f"v_lshl_add_u32 v{v}, v{vt}, 6, v{v}")
        e(f"v_and_b32 v{vt}, 3, v{vLANE}")
        e(f"v_lshl_add_u32 v{v}, v{vt}, 4, v{v}")
    def voff_n128(v, vt):
        e(f"v_lshrrev_b32 v{v}, 4, v{vLANE}")
        e(f"v_bfe_u32 v{vt}, v{vLANE}, 2, 2")
        e(f"v_xor_b32 v{vt}, v{vt}, v{v}")
        e(f"v_mul_u32_u24 v{v}, 3584, v{v}")
        e(f"v_lshl_add_u32 v{v}, v{vt}, 6, v{v}")
        e(f"v_and_b32 v{vt}, 3, v{vLANE}")
        e(f"v_lshl_add_u32 v{v}, v{vt}, 4, v{v}")

    def dma_loop(srd_reg, voff, soff_reg, soff_step, lds_step, count, sleep=0):
        L = a.new("L_dma")
        e(f"s_mov_b32 s{sCNT}, {count}")
        a.lab(L)
        e(f"buffer_load_dwordx4 v{voff}, {srd(srd_reg)}, s{soff_reg} offen lds")
        if sleep: e(f"s_sleep {sleep}")
        e(f"s_add_u32 m0, m0, {lds_step}")
        e(f"s_add_u32 s{soff_reg}, s{soff_reg}, {soff_step}")
        e(f"s_sub_u32 s{sCNT}, s{sCNT}, 1"); e(f"s_cmp_lg_u32 s{sCNT}, 0"); e(f"s_cbranch_scc1 {L}")

    def dma_wqkv(first, count):
        S = a.new("L_skip")
        e(f"s_cmp_lt_u32 s{sW}, 5"); e(f"s_cbranch_scc1 {S}")
        voff_qkv(2, 3)
        e(f"s_sub_u32 s{sT0}, s{sW}, 5")
        e(f"s_lshl_b32 s{sT0+1}, s{sT0}, 10")
        e(f"s_lshl_b32 s{sT0+2}, s{sI}, 6")
        e(f"s_add_u32 s{sT0+1}, s{sT0+1}, s{sT0+2}")
        if first: e(f"s_add_u32 s{sT0+1}, s{sT0+1}, {first*16*3072}")
        e(f"s_lshl_b32 s{sT0}, s{sT0}, 15")
        e(f"s_add_u32 m0, s{sT0}, {first*1024}")
        dma_loop(sWQ, 2, sT0+1, 16*3072, 1024, count)
        a.lab(S)

    vCSA = 240
    def dma_wqkv_packed(first, count):
        S = a.new("L_skip")
        e(f"s_cmp_lt_u32 s{sW}, 5"); e(f"s_cbranch_scc1 {S}")
        e(f"s_sub_u32 s{sT0}, s{sW}, 5"); e(f"s_lshl_b32 s{sT0}, s{sT0}, 15")
        e(f"s_mul_i32 s{sT0+1}, s{sI}, 98304"); e(f"s_add_u32 s{sT0+1}, s{sT0+1}, s{sT0}")
        e(f"s_add_u32 s{sT0+1}, s{sT0+1}, {PKQ + first*1024}")
        e(f"s_add_u32 m0, s{sT0}, {first*1024}")
        L = a.new("L_dma")
        e(f"s_mov_b32 s{sCNT}, {count}")
        a.lab(L)
        e(f"buffer_load_dwordx4 v{vL16}, {srd(sWS)}, s{sT0+1} offen sc1 lds")
        e(f"s_add_u32 m0, m0, 1024"); e(f"s_add_u32 s{sT0+1}, s{sT0+1}, 1024")
        e(f"s_sub_u32 s{sCNT}, s{sCNT}, 1"); e(f"s_cmp_lg_u32 s{sCNT}, 0"); e(f"s_cbranch_scc1 {L}")
        a.lab(S)

    def colsum_init(kind):
        tr_base_common(4, 5, 6)
        e(f"s_sub_u32 s{sT0}, s{sW}, 4")
        if kind == "qkv":
            e(f"v_lshl_add_u32 v4, v4, 6, v5")
            e(f"s_lshl_b32 s{sT0+1}, s{sT0}, 15")
            e(f"v_add_u32 v4, s{sT0+1}, v4")
        else:
            e(f"v_and_b32 v6, 3, v4")
            e(f"v_xor_b32 v6, s{sT0}, v6")
            e(f"v_lshl_add_u32 v5, v6, 6, v5")
            e(f"v_lshl_add_u32 v4, v4, 8, v5")
        for r in range(8, 12): e(f"v_mov_b32 v{r}, 0x3f803f80")
    def colsum_chunk(kind, tmp, first, extra=None):
        step, second = (1024, 512) if kind == "qkv" else (4096, 2048)
        for k in range(8):
            e(f"ds_read_b64_tr_b16 v[{tmp+4*k}:{tmp+4*k+1}], v4 offset:{k*step}")
            e(f"ds_read_b64_tr_b16 v[{tmp+4*k+2}:{tmp+4*k+3}], v4 offset:{k*step+second}")
        e(f"v_add_u32 v4, {8*step}, v4")
        for k in range(8):
            if extra: extra(k)
            e(f"s_waitcnt lgkmcnt({14-2*k})")
            e(f"{MF} {V(vCSA,16)}, {V(tmp+4*k,4)}, v[8:11], {'0' if (first and k == 0) else V(vCSA,16)}")
    def colsum_fin(kind):
        cs = L_CS1 if kind == "qkv" else L_CS4
        a.nop(14)
        e(f"s_sub_u32 s{sT0}, s{sW}, 4")
        e(f"s_lshl_b32 s{sT0+1}, s{sT0}, 7"); e(f"s_add_u32 s{sT0+1}, s{sT0+1}, {cs}")
        e(f"v_lshrrev_b32 v10, 5, v{vLANE}"); e(f"v_lshl_add_u32 v10, v10, 4, s{sT0+1}")
        e(f"s_mov_b32 s{sT0+2}, 1"); e(f"s_mov_b32 s{sT0+3}, 1")
        e(f"s_mov_b64 exec, s[{sT0+2}:{sT0+3}]")
        for g in range(4): e(f"ds_write_b128 v10, {V(vCSA+4*g,4)} offset:{g*32}")
        e("s_mov_b64 exec, -1")
        e("s_waitcnt lgkmcnt(0)")

    def load_stats(st_base, vdst, voff, tile_sreg):
        e(f"v_lshrrev_b32 v{voff}, 5, v{vLANE}")
        e(f"v_lshlrev_b32 v{voff}, 11, v{voff}")
        e(f"v_and_b32 v{voff+1}, 31, v{vLANE}")
        e(f"v_lshl_add_u32 v{voff}, v{voff+1}, 3, v{voff}")
        e(f"s_lshl_b32 s{sT0+5}, s{tile_sreg}, 12")
        e(f"s_add_u32 s{sT0+5}, s{sT0+5}, {st_base}")
        for k in range(8):
            e(f"buffer_load_dwordx2 v[{vdst+2*k}:{vdst+2*k+1}], v{voff}, {srd(sWS)}, s{sT0+5} offen offset:{k*256} sc1")

    def reduce_partials(vsrc):
        for k in (1, 3, 5, 7):
            e(f"v_pk_add_f32 v[{vsrc+2*(k-1)}:{vsrc+2*(k-1)+1}], v[{vsrc+2*(k-1)}:{vsrc+2*(k-1)+1}], v[{vsrc+2*k}:{vsrc+2*k+1}]")
        e(f"v_pk_add_f32 v[{vsrc}:{vsrc+1}], v[{vsrc}:{vsrc+1}], v[{vsrc+4}:{vsrc+5}]")
        e(f"v_pk_add_f32 v[{vsrc+8}:{vsrc+9}], v[{vsrc+8}:{vsrc+9}], v[{vsrc+12}:{vsrc+13}]")
        e(f"v_pk_add_f32 v[{vsrc}:{vsrc+1}], v[{vsrc}:{vsrc+1}], v[{vsrc+8}:{vsrc+9}]")
    def finish_stats(vsrc, vA, vB):
        e(f"v_mov_b32 v{vsrc+2}, v{vsrc}"); e(f"v_mov_b32 v{vsrc+3}, v{vsrc+1}")
        a.nop(2)
        e(f"v_permlane32_swap_b32 v{vsrc+2}, v{vsrc}"); e(f"v_permlane32_swap_b32 v{vsrc+3}, v{vsrc+1}")
        a.nop(1)
        e(f"v_pk_add_f32 v[{vsrc}:{vsrc+1}], v[{vsrc}:{vsrc+1}], v[{vsrc+2}:{vsrc+3}]")
        e(f"v_mul_f32 v{vsrc}, {f2u(1/512):#x}, v{vsrc}")
        e(f"v_mul_f32 v{vsrc+1}, {f2u(1/512):#x}, v{vsrc+1}")
        e(f"v_fma_f32 v{vsrc+1}, -v{vsrc}, v{vsrc}, v{vsrc+1}")
        e(f"v_max_f32 v{vsrc+1}, 0, v{vsrc+1}")
        e(f"v_add_f32 v{vsrc+1}, {f2u(1e-5):#x}, v{vsrc+1}")
        e(f"v_rsq_f32 v{vA}, v{vsrc+1}")
        a.nop(1)
        e(f"v_mul_f32 v{vB}, v{vsrc}, v{vA}")

    def x_setup(base, nsteps_total, s0_sreg, tile_sreg):
        e(f"s_mul_i32 s{sXS}, s{tile_sreg}, {nsteps_total*1024}")
        e(f"s_add_u32 s{sXS}, s{sXS}, {base}")
        if s0_sreg is not None:
            e(f"s_lshl_b32 s{sT0+7}, s{s0_sreg}, 10")
            e(f"s_add_u32 s{sXS}, s{sXS}, s{sT0+7}")
    def x_load(k, dst):
        if k and k % 4 == 0: e(f"s_add_u32 s{sXS}, s{sXS}, 4096")
        e(f"buffer_load_dwordx4 v[{dst}:{dst+3}], v{vL16}, {srd(sWS)}, s{sXS} offen offset:{(k%4)*1024} sc1")

    def tile_ids():
        e(f"s_lshl_b32 s{sT0+4}, s{sB}, 2")
        e(f"s_lshr_b32 s{sT0+1}, s{sI}, 3"); e(f"s_lshl_b32 s{sT0+1}, s{sT0+1}, 1")
        e(f"s_add_u32 s{sT0+4}, s{sT0+4}, s{sT0+1}")
        e(f"s_and_b32 s{sT0+1}, s{sW}, 1"); e(f"s_add_u32 s{sT0+4}, s{sT0+4}, s{sT0+1}")
        e(f"s_lshr_b32 s{sT0+3}, s{sW}, 1")

    e("s_cmp_ge_u32 s2, 256"); e("s_cbranch_scc1 L_end")
    e(f"s_load_dwordx16 s[{sKA}:{sKA+15}], s[0:1], 0")
    e(f"s_load_dwordx4 s[{sKA+16}:{sKA+19}], s[0:1], 64")
    e(f"s_load_dwordx2 s[{sKA+20}:{sKA+21}], s[0:1], 80")
    e(f"v_lshrrev_b32 v2, 6, v0")
    e(f"v_and_b32 v{vLANE}, 63, v0")
    e(f"v_readfirstlane_b32 s{sW}, v2")
    e(f"v_lshlrev_b32 v{vL16}, 4, v{vLANE}")
    e(f"s_and_b32 s{sB}, s2, 7"); e(f"s_lshl_b32 s{sB}, s{sB}, 1")
    e(f"s_lshr_b32 s{sT0}, s2, 7"); e(f"s_or_b32 s{sB}, s{sB}, s{sT0}")
    e(f"s_bfe_u32 s{sI}, s2, 0x40003")
    e(f"s_mov_b32 s{sL}, 0"); e(f"s_mov_b32 s{sFAIL}, 0"); e(f"s_mov_b32 s{sKVO}, 0"); e(f"s_mov_b32 s{sMODE}, 0"); e(f"s_mov_b32 s{sNONCE}, 0")
    e(f"s_mov_b32 s{sM16}, 0x0000ffff"); e(f"s_mov_b32 s{sM16+1}, 0x0000ffff")
    e(f"s_mov_b32 s{sM32}, -1"); e(f"s_mov_b32 s{sM32+1}, 0")
    e(f"s_getreg_b32 s{sXCC}, hwreg(HW_REG_XCC_ID, 0, 4)")
    e(f"s_lshl_b32 s{sTEAM}, s{sB}, 12")
    e(f"s_lshl_b32 s{sMYF}, s{sI}, 4"); e(f"s_add_u32 s{sMYF}, s{sMYF}, s{sTEAM}")
    e(f"s_and_b32 s{sT0}, s{sW}, 3"); e(f"s_lshl_b32 s{sT0}, s{sT0}, 2"); e(f"s_add_u32 s{sMYF}, s{sMYF}, s{sT0}")
    e("s_waitcnt lgkmcnt(0)")
    def mk(dst, src, size):
        e(f"s_mov_b32 s{dst}, s{src}"); e(f"s_and_b32 s{dst+1}, s{src+1}, 0xffff")
        e(f"s_mov_b32 s{dst+2}, {size}"); e(f"s_mov_b32 s{dst+3}, 0x00020000")
    mk(sX, sKA+0, 2048*512*2); mk(sWQ, sKA+2, 512*1536*2); mk(sWO, sKA+4, 512*512*2)
    mk(sW1, sKA+8, 512*1792*2); mk(sW2, sKA+12, 1792*512*2); mk(sOUT, sKA+16, 2048*512*2)
    mk(sDBG, sKA+18, 256); mk(sWS, sKA+20, 0x10000000)
    if args.cpf:
        Lcp = a.new("L_nocpf")
        e(f"s_cmp_lg_u32 s{sW}, 7"); e(f"s_cbranch_scc1 {Lcp}")
        e(f"s_lshr_b32 s{sT0+2}, s2, 3")
        e(f"s_cmp_ge_u32 s{sT0+2}, (L_end - L_cpf0) >> 11"); e(f"s_cbranch_scc1 {Lcp}")
        e(f"s_getpc_b64 s[{sT0}:{sT0+1}]")
        a.lab("L_cpf0")
        e(f"s_lshl_b32 s{sT0+2}, s{sT0+2}, 11")
        e(f"v_add_u32 v2, s{sT0+2}, v{vL16}")
        e(f"global_load_dwordx4 v[60:63], v2, s[{sT0}:{sT0+1}]")
        e(f"global_load_dwordx4 v[60:63], v2, s[{sT0}:{sT0+1}] offset:1024")
        a.lab(Lcp)
    e(f"s_cmp_ge_u32 s{sW}, 4"); e("s_cbranch_scc1 L_pro_helper")

    if args.prio: e(f"s_setprio {args.prio}")
    vX = 64; vAcc = 16; vWf = 192
    vXO = 14
    Lnb = a.new("L_nobias")
    e(f"s_cmp_lg_u32 s{sW}, 3"); e(f"s_cbranch_scc1 {Lnb}")
    mk(sTS, sKA+10, 1792*2)
    e(f"v_lshlrev_b32 v20, 1, v{vLANE}")
    e(f"s_lshl_b32 s{sT0+2}, s{sI}, 8")
    e(f"buffer_load_ushort v21, v20, {srd(sTS)}, s{sT0+2} offen")
    e(f"buffer_load_ushort v22, v20, {srd(sTS)}, s{sT0+2} offen offset:128")
    mk(sTS, sKA+14, 512*2)
    e(f"s_and_b32 s{sT0+2}, s{sI}, 7"); e(f"s_lshl_b32 s{sT0+2}, s{sT0+2}, 7")
    e(f"buffer_load_ushort v23, v20, {srd(sTS)}, s{sT0+2} offen")
    a.lab(Lnb)
    fstamp("start")
    tile_ids()
    e(f"v_and_b32 v10, 31, v{vLANE}"); e(f"v_lshlrev_b32 v10, 10, v10")
    e(f"v_lshrrev_b32 v11, 5, v{vLANE}")
    e(f"v_lshl_add_u32 v{vXO}, v11, 4, v10")
    e(f"v_lshl_add_u32 v10, v11, 3, v10")
    e(f"s_lshl_b32 s{sT0}, s{sT0+4}, 15")
    e(f"s_and_b32 s{sT0+1}, s{sI}, 7"); e(f"s_lshl_b32 s{sT0+1}, s{sT0+1}, 7"); e(f"s_add_u32 s{sT0}, s{sT0}, s{sT0+1}")
    e(f"s_lshl_b32 s{sT0+1}, s{sT0+3}, 6"); e(f"s_add_u32 s{sT0}, s{sT0}, s{sT0+1}")
    for g in range(4):
        e(f"buffer_load_dwordx2 v[{vRES+2*g}:{vRES+2*g+1}], v10, {srd(sX)}, s{sT0} offen offset:{g*16}")
    e(f"s_lshl_b32 s{sXS}, s{sB}, 2"); e(f"s_add_u32 s{sXS}, s{sXS}, s{sW}"); e(f"s_lshl_b32 s{sXS}, s{sXS}, 15")
    L_XR = 98304
    e(f"v_lshrrev_b32 v{vXO}, 3, v{vLANE}"); e(f"v_and_b32 v15, 7, v{vLANE}"); e(f"v_xor_b32 v15, v15, v{vXO}")
    e(f"v_lshlrev_b32 v{vXO}, 10, v{vXO}"); e(f"v_lshl_add_u32 v{vXO}, v15, 4, v{vXO}")
    e(f"s_mul_i32 s{sW1S}, s{sW}, 12288"); e(f"s_add_u32 s{sW1S}, s{sW1S}, {L_XR}")
    def x0_dma(c):
        e(f"s_add_u32 m0, s{sW1S}, {(c % 3)*4096}")
        e(f"s_add_u32 s{sT0+6}, s{sXS}, {c*128}")
        for r in range(4):
            e(f"buffer_load_dwordx4 v{vXO}, {srd(sX)}, s{sT0+6} offen lds")
            if r < 3:
                e(f"s_add_u32 m0, m0, 1024"); e(f"s_add_u32 s{sT0+6}, s{sT0+6}, 8192")
    if args.xreg:
        for c in range(8):
            for r in range(4):
                e(f"s_add_u32 s{sT0+6}, s{sXS}, {c*128 + r*8192}")
                e(f"buffer_load_dwordx4 {V(vX+4*(4*c+r),4)}, v{vXO}, {srd(sX)}, s{sT0+6} offen")
        XA0 = 32
    else:
        for c in range(3): x0_dma(c)
        XA0 = 12
    fstamp("xissued")
    Lw1, Lw2, Lw3, Ltab = a.new("L_w1"), a.new("L_w2"), a.new("L_w3"), a.new("L_tabdone")
    e(f"v_and_b32 v16, 31, v{vLANE}"); e(f"v_lshrrev_b32 v17, 5, v{vLANE}"); e(f"v_lshlrev_b32 v17, 2, v17")
    e(f"v_sub_u32 v16, v16, v17")
    e(f"v_mov_b32 v18, 0"); e(f"v_mov_b32 v19, {NEG:#x}")
    e(f"s_cmp_eq_u32 s{sW}, 3"); e(f"s_cbranch_scc1 {Lw3}")
    e(f"s_cmp_eq_u32 s{sW}, 2"); e(f"s_cbranch_scc1 {Lw2}")
    e(f"s_cmp_eq_u32 s{sW}, 1"); e(f"s_cbranch_scc1 {Lw1}")
    for (lab, base, inv) in ((None, L_MD, False), (Lw1, L_MF, True)):
        if lab: a.lab(lab)
        for g in range(4):
            for i in range(4):
                e(f"v_cmp_le_i32 vcc, {8*g+i}, v16"); a.nop(2)
                e(f"v_cndmask_b32 v{24+i}, v19, v18, vcc" if not inv else f"v_cndmask_b32 v{24+i}, v18, v19, vcc")
            e(f"v_add_u32 v28, {base + g*1024}, v{vL16}")
            e(f"ds_write_b128 v28, v[24:27]"); a.nop(2)
        e(f"s_branch {Ltab}")
    a.lab(Lw2)
    e(f"v_mov_b32 v29, 0xffff"); e(f"v_mov_b32 v30, 0xffff0000")
    for half in range(2):
        for dd in range(4):
            d = half*4 + dd; r0, r1 = 2*d, 2*d+1
            c0 = 8*(r0 >> 2) + (r0 & 3); c1 = 8*(r1 >> 2) + (r1 & 3)
            e(f"v_cmp_le_i32 vcc, {c0}, v16"); a.nop(2); e(f"v_cndmask_b32 v31, v18, v29, vcc")
            e(f"v_cmp_le_i32 vcc, {c1}, v16"); a.nop(2); e(f"v_cndmask_b32 v32, v18, v30, vcc")
            e(f"v_or_b32 v{24+dd}, v31, v32")
        e(f"v_add_u32 v28, {L_MB + half*1024}, v{vL16}")
        e(f"ds_write_b128 v28, v[24:27]"); a.nop(2)
    e(f"s_branch {Ltab}")
    a.lab(Lw3)
    e(f"s_waitcnt vmcnt({4 + XA0})")
    e("v_lshlrev_b32 v21, 16, v21"); e("v_lshlrev_b32 v22, 16, v22"); e("v_lshlrev_b32 v23, 16, v23")
    e(f"v_lshlrev_b32 v24, 2, v{vLANE}"); e(f"v_add_u32 v24, {L_B1}, v24")
    e(f"ds_write_b32 v24, v21"); e(f"ds_write_b32 v24, v22 offset:256"); e(f"ds_write_b32 v24, v23 offset:512")
    a.lab(Ltab)

    def p1_bases():
        tr_base_common(4, 5, 6)
        e("v_lshl_add_u32 v4, v4, 6, v5"); e("v_add_u32 v5, 65536, v4")
    class L1:
        n = 0
    def lds1(instr):
        e(instr); L1.n += 1; return L1.n
    def lwait1(k): e(f"s_waitcnt lgkmcnt({min(15, L1.n - k)})")
    seq1 = [(s, t) for s in range(32) for t in (1, 2)] + [(s, 0) for s in range(32)]
    NS1 = 6; PRE1 = NS1 - 1
    rid1 = {}
    def slot1(n): return vWf + 4*(n % NS1)
    def issue1(n):
        s, t = seq1[n]
        if n < 64 and t == 1 and s % 8 == 0 and s > 0: e("s_barrier")
        b = 4 if t < 2 else 5; off = (t % 2) * 32768 + s * 1024; dst = slot1(n)
        lds1(f"ds_read_b64_tr_b16 v[{dst}:{dst+1}], v{b} offset:{off}")
        rid1[n] = lds1(f"ds_read_b64_tr_b16 v[{dst+2}:{dst+3}], v{b} offset:{off+512}")
    def mfma1(n):
        s, t = seq1[n]
        acc = vAcc + 16*t; c = "0" if s == 0 else V(acc, 16); x = vX + 4*s; w = slot1(n)
        if t < 2: e(f"{MF} {V(acc,16)}, {V(w,4)}, {V(x,4)}, {c}")
        else:     e(f"{MF} {V(acc,16)}, {V(x,4)}, {V(w,4)}, {c}")
    vA, vB = 8, 10
    def p1_stats_ready(tracked=False):
        finish_stats(216, vA, vB)
        e(f"v_and_b32 v6, 31, v{vLANE}"); e(f"v_lshlrev_b32 v6, 2, v6")
        e(f"v_add_u32 v13, {L_CS1+256}, v6")
        e(f"s_lshl_b32 s{sT0}, s{sW}, 8"); e(f"s_add_u32 s{sT0}, s{sT0}, {L_STA}")
        e(f"v_add_u32 v6, s{sT0}, v6")
        (lds1 if tracked else e)(f"ds_write_b32 v6, v{vA}"); (lds1 if tracked else e)(f"ds_write_b32 v6, v{vB} offset:128")
        e(f"v_lshrrev_b32 v7, 5, v{vLANE}"); e(f"v_lshlrev_b32 v7, 4, v7")
        e(f"v_add_u32 v6, {L_CS1}, v7")
        e(f"v_add_u32 v7, s{sT0}, v7")
        if not tracked: e("s_waitcnt lgkmcnt(0)")
    def p1_passA(loads):
        L1.n = 0; rid1.clear()
        for n in range(PRE1): issue1(n)
        for n in range(64):
            s, t = seq1[n]
            if loads and t == 1:
                e(f"s_waitcnt vmcnt({XA + 7 if s < XA else min(XA, 32-s)-1})")
                if s + XA < 32: x_load(s + XA, vX + 4*(s + XA))
            if t == 2 and s == XA:
                if loads: reduce_partials(216)
                p1_stats_ready(True)
            lwait1(rid1[n]); mfma1(n); issue1(n + PRE1)

    e(f"v_and_b32 v6, 31, v{vLANE}"); e(f"v_lshrrev_b32 v7, 5, v{vLANE}"); e(f"v_and_b32 v15, 7, v6")
    e(f"v_xor_b32 v7, v7, v15"); e(f"v_lshlrev_b32 v6, 7, v6"); e(f"v_lshl_add_u32 v6, v7, 4, v6")
    e(f"v_add_u32 v232, s{sW1S}, v6")
    for sp_ in range(1, 4): e(f"v_xor_b32 v{232+sp_}, {sp_*32}, v232")
    e(f"v_add_u32 v236, s{sW1S}, v{vL16}")
    for r in range(8, 12): e(f"v_mov_b32 v{r}, 0x3f803f80")
    def shuffle(c):
        e(f"s_waitcnt vmcnt({4*(7-c)})")
        if c == 0: fstamp("xland")
        for r in range(4):
            e(f"ds_write_b128 v236, {V(vX+4*(4*c+r),4)} offset:{(c % 3)*4096 + r*1024}")
        for sp_ in range(4):
            e(f"ds_read_b128 {V(vX+4*(4*c+sp_),4)}, v{232+sp_} offset:{(c % 3)*4096}")
    shuffle(0)
    for c in range(8):
        if c < 7: shuffle(c + 1)
        e(f"s_waitcnt lgkmcnt({8 if c < 7 else 0})")
        for sp_ in range(4):
            x = vX + 4*(4*c + sp_)
            e(f"v_permlane32_swap_b32 v{x}, v{x+2}"); e(f"v_permlane32_swap_b32 v{x+1}, v{x+3}")
        a.nop(1)
        for sp_ in range(4):
            x = vX + 4*(4*c + sp_); first = (c == 0 and sp_ == 0)
            e(f"{MF} v[16:31], {V(x,4)}, {V(x,4)}, {'0' if first else 'v[16:31]'}")
            e(f"{MF} v[32:47], v[8:11], {V(x,4)}, {'0' if first else 'v[32:47]'}")
    e(f"v_and_b32 v6, 31, v{vLANE}"); e(f"v_lshrrev_b32 v7, 5, v{vLANE}"); e("v_lshlrev_b32 v7, 2, v7"); e("v_sub_u32 v6, v6, v7")
    e("v_mov_b32 v217, 0")
    a.nop(8)
    for r in range(16):
        e(f"v_cmp_eq_u32 vcc, {8*(r >> 2) + (r & 3)}, v6"); a.nop(2)
        e(f"v_cndmask_b32 v217, v217, v{16+r}, vcc")
    e("v_mul_f32 v216, 0.5, v32")
    p1_bases()
    fstamp("xdone")
    e("s_barrier")
    fstamp("p1B")
    p1_passA(False)
    e("s_barrier")
    e("s_branch L_p1_passB")

    a.lab("L_p1_l1")
    team_wait(0, 4)
    fstamp("p1poll")
    e(f"s_lshl_b32 s{sT0+4}, s{sB}, 2"); e(f"s_add_u32 s{sT0+4}, s{sT0+4}, s{sW}")
    x_setup(XF, 32, None, sT0+4)
    for k in range(XA): x_load(k, vX + 4*k)
    load_stats(ST1, 216, 14, sT0+4)
    p1_bases()
    e("s_barrier")
    p1_passA(True)

    a.lab("L_p1_passB")
    fstamp("p1A")
    e("v_mov_b32 v14, 0")
    e(f"buffer_load_dword v15, v14, {srd(sDBG)}, 0 offen sc1")
    e(f"s_lshl_b32 s{sT0+4}, s{sB}, 2"); e(f"s_add_u32 s{sT0+4}, s{sT0+4}, s{sW}")
    e(f"s_lshl_b32 s{sT0}, s{sT0+4}, 15"); e(f"s_lshl_b32 s{sT0+1}, s{sI}, 11")
    e(f"s_add_u32 s{sT0}, s{sT0}, s{sT0+1}"); e(f"s_add_u32 s{sT0}, s{sT0}, s{sKVO}")
    e(f"s_add_u32 s{sT0+1}, s{sT0}, {VF}"); e(f"s_add_u32 s{sT0}, s{sT0}, {KF}")
    gid1 = {}
    def grp1(G):
        b = 232 + 8*(G % 2)
        if G < 4:   gid1[G] = lds1(f"ds_read_b128 {V(b,4)}, v6 offset:{128 + G*32}")
        elif G < 8:
            g = G - 4
            lds1(f"ds_read_b128 {V(b,4)}, v7 offset:{g*32}")
            gid1[G] = lds1(f"ds_read_b128 {V(b+4,4)}, v7 offset:{128 + g*32}")
    items1 = []
    aK, aV, aQ = vAcc + 16, vAcc + 32, vAcc
    for G in range(8):
        b = 232 + 8*(G % 2); g = G % 4; acc = aK if G < 4 else aV
        items1.append(("wait", G))
        for i in range(4):
            r = acc + 4*g + i
            if G < 4:
                items1.append(("v", f"v_mul_f32 v{r}, v{r}, v{vA}"))
                items1.append(("v", f"v_fma_f32 v{r}, -v{vB}, v{b+i}, v{r}"))
            else:
                items1.append(("v", f"v_mul_f32 v{r}, v{r}, v{b+i}"))
                items1.append(("v", f"v_fma_f32 v{r}, -v{b+4+i}, v12, v{r}"))
        items1.append(("next", G + 2))
        for dd in range(2):
            d = 2*g + dd
            items1.append(("v", f"v_cvt_pk_bf16_f32 v{acc+d}, v{acc+2*d}, v{acc+2*d+1}"))
        if g == 3: items1.append(("st", G))
    def run1(budget):
        done = 0
        while items1 and done < budget:
            it = items1.pop(0)
            if it[0] == "v": e(it[1]); done += 1
            elif it[0] == "wait": lwait1(gid1[it[1]])
            elif it[0] == "next": grp1(it[1])
            elif it[0] == "st":
                acc, so = (aK, sT0) if it[1] == 3 else (aV, sT0+1)
                e(f"buffer_store_dwordx4 {V(acc,4)}, v{vL16}, {srd(sWS)}, s{so} offen sc1")
                e(f"buffer_store_dwordx4 {V(acc+4,4)}, v{vL16}, {srd(sWS)}, s{so} offen offset:1024 sc1")
    lds1("ds_read_b32 v12, v13")
    grp1(0); grp1(1)
    for n in range(64, 96):
        lwait1(rid1[n]); mfma1(n)
        if n + PRE1 < 96: issue1(n + PRE1)
        if n == 64: a.nop(10)
        else: run1(4)
    run1(10**6)
    for g in range(4): lds1(f"ds_read_b128 {V(232+4*g,4)}, v6 offset:{g*32}")
    fstamp("p1main")
    e("s_barrier")
    fstamp("p1pre")
    e("s_waitcnt vmcnt(0)")
    fstamp("p1drain")
    Lhn = a.new("L_havenonce")
    e(f"v_readfirstlane_b32 s{sNONCE}, v15")
    e(f"s_cmp_lg_u32 s{sNONCE}, 0"); e(f"s_cbranch_scc1 {Lhn}")
    nonce_poll(14)
    a.lab(Lhn)
    e(f"s_lshl_b32 s{sT0}, s{sI}, 7"); e(f"s_add_u32 s{sT0}, s{sT0}, s{sTEAM}")
    e(f"s_lshl_b32 s{sT0+1}, s{sW}, 3"); e(f"s_add_u32 s{sT0}, s{sT0}, s{sT0+1}"); e(f"s_add_u32 s{sT0}, s{sT0}, {C_KV}")
    e(f"s_add_u32 s{sT0+1}, s{sL}, 1")
    e(f"v_mov_b32 v14, s{sNONCE}"); e(f"v_mov_b32 v15, s{sT0+1}"); e("v_mov_b32 v13, 0")
    e("s_mov_b64 exec, 1")
    e(f"buffer_store_dwordx2 v[14:15], v13, {srd(sWS)}, s{sT0} offen sc1")
    e("s_mov_b64 exec, -1")
    e("s_waitcnt lgkmcnt(0)")
    e(f"v_mul_f32 v152, {f2u(QSCALE):#x}, v{vA}"); e(f"v_mul_f32 v154, {f2u(QSCALE):#x}, v{vB}")
    for p in range(8):
        e(f"v_pk_mul_f32 {V(aQ+2*p,2)}, {V(aQ+2*p,2)}, {V(152,2)} op_sel_hi:[1,0]")
        e(f"v_pk_fma_f32 {V(aQ+2*p,2)}, {V(232+2*p,2)}, {V(154,2)}, {V(aQ+2*p,2)} op_sel_hi:[1,0,1] neg_lo:[0,1,0] neg_hi:[0,1,0]")
    for d in range(8): e(f"v_cvt_pk_bf16_f32 v{aQ+d}, v{aQ+2*d}, v{aQ+2*d+1}")
    e(f"s_lshl_b32 s{sT0+2}, s{sW}, 11"); e(f"v_add_u32 v6, s{sT0+2}, v{vL16}")
    e(f"ds_write_b128 v6, {V(aK,4)} offset:{L_KST+16*1024}"); e(f"ds_write_b128 v6, {V(aK+4,4)} offset:{L_KST+17*1024}")
    e(f"ds_write_b128 v6, {V(aV,4)} offset:{L_VST+16*1024}"); e(f"ds_write_b128 v6, {V(aV+4,4)} offset:{L_VST+17*1024}")
    e(f"ds_write_b128 v6, {V(aQ,4)} offset:{L_QST}"); e(f"ds_write_b128 v6, {V(aQ+4,4)} offset:{L_QST+1024}")
    if args.dbgq:
        e(f"s_lshl_b32 s{sT0}, s{sT0+4}, 15"); e(f"s_lshl_b32 s{sT0+1}, s{sI}, 11")
        e(f"s_add_u32 s{sT0}, s{sT0}, s{sT0+1}"); e(f"s_add_u32 s{sT0}, s{sT0}, {OF}")
        e(f"buffer_store_dwordx4 {V(aQ,4)}, v{vL16}, {srd(sWS)}, s{sT0} offen sc1")
        e(f"buffer_store_dwordx4 {V(aQ+4,4)}, v{vL16}, {srd(sWS)}, s{sT0} offen offset:1024 sc1")
    if STOP == 1:
        e("s_waitcnt vmcnt(0) lgkmcnt(0)"); e("s_barrier"); e("s_branch L_end")
    Lnokv = a.new("L_nokv")
    e(f"s_lshr_b32 s{sT0}, s{sW}, 1"); e(f"s_add_u32 s{sT0}, s{sT0}, s{sB}"); e(f"s_sub_u32 s{sT0}, s{sT0}, 2")
    e(f"s_cbranch_scc1 {Lnokv}")
    e(f"s_lshl_b32 s{sT0}, s{sT0}, 12")
    e(f"s_lshl_b32 s{sT0+1}, s{sI}, 7"); e(f"s_add_u32 s{sT0}, s{sT0}, s{sT0+1}")
    e(f"s_lshl_b32 s{sT0+1}, s{sW}, 4"); e(f"s_and_b32 s{sT0+1}, s{sT0+1}, 16")
    e(f"s_add_u32 s{sT0}, s{sT0}, s{sT0+1}"); e(f"s_add_u32 s{sT0}, s{sT0}, {C_KV}")
    e(f"v_and_b32 v10, 1, v{vLANE}"); e(f"v_lshlrev_b32 v10, 3, v10")
    e(f"s_add_u32 s{sTGT}, s{sL}, 1")
    poll64(10, sT0, sTGT, 12, sleep=args.kvsleep)
    fstamp("kvpoll")
    for zz in range(2):
        e(f"s_lshl_b32 s{sT0}, s{sB}, 2"); e(f"s_lshl_b32 s{sT0+1}, s{sW}, 1")
        e(f"s_add_u32 s{sT0}, s{sT0}, s{sT0+1}"); e(f"s_add_u32 s{sT0}, s{sT0}, {zz}"); e(f"s_sub_u32 s{sT0}, s{sT0}, 8")
        e(f"s_lshl_b32 s{sT0}, s{sT0}, 15"); e(f"s_lshl_b32 s{sT0+2}, s{sI}, 11")
        e(f"s_add_u32 s{sT0}, s{sT0}, s{sT0+2}"); e(f"s_add_u32 s{sT0}, s{sT0}, s{sKVO}")
        e(f"s_add_u32 s{sT0+2}, s{sT0}, {VF}"); e(f"s_add_u32 s{sT0}, s{sT0}, {KF}")
        e(f"s_lshl_b32 s{sT0+1}, s{sW}, 12")
        e(f"s_add_u32 m0, s{sT0+1}, {L_KST + zz*2048}"); e("s_nop 0")
        e(f"buffer_load_dwordx4 v{vL16}, {srd(sWS)}, s{sT0} offen sc1 lds")
        e(f"buffer_load_dwordx4 v{vL16}, {srd(sWS)}, s{sT0} offen offset:1024 sc1 lds")
        e(f"s_add_u32 m0, s{sT0+1}, {L_VST + zz*2048}"); e("s_nop 0")
        e(f"buffer_load_dwordx4 v{vL16}, {srd(sWS)}, s{sT0+2} offen sc1 lds")
        e(f"buffer_load_dwordx4 v{vL16}, {srd(sWS)}, s{sT0+2} offen offset:1024 sc1 lds")
    a.lab(Lnokv)
    e("s_waitcnt vmcnt(0) lgkmcnt(0)")
    e("s_barrier")
    e("s_branch L_p2")

    def helper_prefetch():
        e(f"s_sub_u32 s{sT0+6}, s{sW}, 4"); e(f"s_lshl_b32 s{sT0+6}, s{sT0+6}, 14")
        e(f"s_and_b32 s{sT0+5}, s{sI}, 7"); e(f"s_lshl_b32 s{sT0+5}, s{sT0+5}, 16")
        e(f"s_add_u32 s{sT0+5}, s{sT0+5}, s{sT0+6}"); e(f"s_add_u32 s{sT0+5}, s{sT0+5}, {PKO}")
        e(f"s_add_u32 m0, s{sT0+6}, {L_WO}")
        L = a.new("L_wo")
        e(f"s_mov_b32 s{sCNT}, 16")
        a.lab(L)
        e(f"buffer_load_dwordx4 v{vL16}, {srd(sWS)}, s{sT0+5} offen sc1 lds")
        e(f"s_add_u32 m0, m0, 1024"); e(f"s_add_u32 s{sT0+5}, s{sT0+5}, 1024")
        e(f"s_sub_u32 s{sCNT}, s{sCNT}, 1"); e(f"s_cmp_lg_u32 s{sCNT}, 0"); e(f"s_cbranch_scc1 {L}")
        if args.hpre == 2: return
        e(f"s_min_u32 s{sW1S}, s{sI}, 13"); e(f"s_lshl_b32 s{sW1S}, s{sW1S}, 17"); e(f"s_lshl_b32 s{sT0+6}, s{sW}, 14")
        e(f"s_add_u32 s{sW1S}, s{sW1S}, s{sT0+6}"); e(f"s_add_u32 s{sW1S}, s{sW1S}, {PK1}")
        for k in range(16):
            if k and k % 4 == 0: e(f"s_add_u32 s{sW1S}, s{sW1S}, 4096")
            e(f"buffer_load_dwordx4 {V(vSTG+4*k,4)}, v{vL16}, {srd(sWS)}, s{sW1S} offen offset:{(k%4)*1024} sc1")

    a.lab("L_pro_helper")
    fstamp("start")
    def l2_prefetch(srd_reg, bytes_per_wg, per_wave, dst=48, base=0):
        e(f"s_lshr_b32 s{sT0}, s2, 3"); e(f"s_mul_i32 s{sT0}, s{sT0}, {bytes_per_wg}")
        e(f"s_sub_u32 s{sT0+1}, s{sW}, 4"); e(f"s_mul_i32 s{sT0+1}, s{sT0+1}, {per_wave*1024}")
        e(f"s_add_u32 s{sT0}, s{sT0}, s{sT0+1}")
        if base: e(f"s_add_u32 s{sT0}, s{sT0}, {base}")
        for k in range(per_wave):
            if k and k % 4 == 0: e(f"s_add_u32 s{sT0}, s{sT0}, 4096")
            e(f"buffer_load_dwordx4 v[{dst}:{dst+3}], v{vL16}, {srd(srd_reg)}, s{sT0} offen offset:{(k%4)*1024}")
    def l2_prefetch1(bytes_per_wg, nkb, base, dst=48, sleep=0):
        e(f"s_lshr_b32 s{sT0}, s2, 3"); e(f"s_mul_i32 s{sT0}, s{sT0}, {bytes_per_wg}"); e(f"s_add_u32 s{sT0}, s{sT0}, {base}")
        L = a.new("L_pf")
        e(f"s_mov_b32 s{sCNT}, {nkb}")
        a.lab(L)
        e(f"buffer_load_dwordx4 v[{dst}:{dst+3}], v{vL16}, {srd(sWS)}, s{sT0} offen sc1")
        if sleep: e(f"s_sleep {sleep}")
        e(f"s_add_u32 s{sT0}, s{sT0}, 1024")
        e(f"s_sub_u32 s{sCNT}, s{sCNT}, 1"); e(f"s_cmp_lg_u32 s{sCNT}, 0"); e(f"s_cbranch_scc1 {L}")
    if args.pf0:
        l2_prefetch(sWQ, 49152, 12)
        e("s_waitcnt vmcnt(0)")
    dma_wqkv(0, args.l0pre)
    fstamp("hissued")
    Lreg = a.new("L_noreg"); Lnl = a.new("L_noleader"); Lnn = a.new("L_nononce")
    e(f"s_cmp_lg_u32 s{sW}, 4"); e(f"s_cbranch_scc1 {Lreg}")
    e(f"s_cmp_lg_u32 s2, 0"); e(f"s_cbranch_scc1 {Lnn}")
    e(f"s_memrealtime s[{sT0}:{sT0+1}]"); e("s_waitcnt lgkmcnt(0)")
    e(f"s_or_b32 s{sT0}, s{sT0}, 1")
    e(f"v_mov_b32 v4, s{sT0}"); e("v_mov_b32 v8, 0")
    e("s_mov_b64 exec, 1"); e(f"buffer_store_dword v4, v8, {srd(sDBG)}, 0 offen sc1"); e("s_mov_b64 exec, -1")
    a.lab(Lnn)
    e(f"s_cmp_lg_u32 s{sI}, 0"); e(f"s_cbranch_scc1 {Lnl}")
    e("v_mov_b32 v4, 0"); e(f"v_lshlrev_b32 v5, 2, v{vLANE}")
    e(f"buffer_store_dword v4, v5, {srd(sWS)}, s{sTEAM} offen sc1")
    a.lab(Lnl)
    if args.touch:
        e(f"v_lshlrev_b32 v9, 21, v{vLANE}"); e(f"s_mov_b64 exec, 0xffff")
        e(f"buffer_load_dword v52, v9, {srd(sWS)}, 0 offen")
        e("s_mov_b64 exec, 1")
        e(f"buffer_load_dword v53, v9, {srd(sOUT)}, 0 offen")
        e("s_mov_b64 exec, -1")
    vPK = 64
    def pack_gather():
        voff_qkv(56, 59); voff_n64(57, 59); voff_n128(58, 59)
        e(f"s_lshr_b32 s{sT0}, s2, 4"); e(f"s_lshl_b32 s{sT0}, s{sT0}, 6")
        e(f"s_and_b32 s{sT0+1}, s2, 15"); e(f"s_mul_i32 s{sT0+1}, s{sT0+1}, 6")
        for k in range(6):
            e(f"s_add_u32 s{sT0+2}, s{sT0+1}, {k}")
            e(f"s_lshr_b32 s{sT0+3}, s{sT0+2}, 5"); e(f"s_lshl_b32 s{sT0+3}, s{sT0+3}, 10")
            e(f"s_and_b32 s{sT0+2}, s{sT0+2}, 31"); e(f"s_mul_i32 s{sT0+2}, s{sT0+2}, {16*3072}")
            e(f"s_add_u32 s{sT0+2}, s{sT0+2}, s{sT0+3}"); e(f"s_add_u32 s{sT0+2}, s{sT0+2}, s{sT0}")
            e(f"buffer_load_dwordx4 {V(vPK+4*k,4)}, v56, {srd(sWQ)}, s{sT0+2} offen")
        e(f"s_lshr_b32 s{sT0}, s2, 5"); e(f"s_lshl_b32 s{sT0}, s{sT0}, 7")
        e(f"s_and_b32 s{sT0+1}, s2, 31"); e(f"s_lshl_b32 s{sT0+2}, s{sT0+1}, 14"); e(f"s_add_u32 s{sT0+2}, s{sT0+2}, s{sT0}")
        e(f"buffer_load_dwordx4 {V(vPK+24,4)}, v57, {srd(sWO)}, s{sT0+2} offen")
        e(f"s_add_u32 s{sT0+2}, s{sT0+2}, 8192")
        e(f"buffer_load_dwordx4 {V(vPK+28,4)}, v57, {srd(sWO)}, s{sT0+2} offen")
        e(f"s_mul_i32 s{sT0+2}, s{sT0+1}, {7*8192}"); e(f"s_add_u32 s{sT0+2}, s{sT0+2}, s{sT0}")
        for k in range(7):
            e(f"buffer_load_dwordx4 {V(vPK+60+4*k,4)}, v57, {srd(sW2)}, s{sT0+2} offen")
            if k < 6: e(f"s_add_u32 s{sT0+2}, s{sT0+2}, 8192")
        e(f"s_mul_i32 s{sT0+1}, s2, 7")
        for k in range(7):
            e(f"s_add_u32 s{sT0+2}, s{sT0+1}, {k}")
            e(f"s_lshr_b32 s{sT0+3}, s{sT0+2}, 7"); e(f"s_lshl_b32 s{sT0+3}, s{sT0+3}, 8")
            e(f"s_and_b32 s{sT0+2}, s{sT0+2}, 127"); e(f"s_mul_i32 s{sT0+2}, s{sT0+2}, {4*3584}")
            e(f"s_add_u32 s{sT0+2}, s{sT0+2}, s{sT0+3}")
            e(f"buffer_load_dwordx4 {V(vPK+32+4*k,4)}, v58, {srd(sW1)}, s{sT0+2} offen")
    if args.packq < 0: pack_gather()
    def pack_store():
        e("s_waitcnt vmcnt(0)")
        for (base, per, r0) in ((PKQ, 6, 0), (PKO, 2, 24), (PK1, 7, 32), (PK2, 7, 60)):
            e(f"s_mul_i32 s{sT0}, s2, {per*1024}"); e(f"s_add_u32 s{sT0}, s{sT0}, {base}")
            for k in range(per):
                if k == 4: e(f"s_add_u32 s{sT0}, s{sT0}, 4096")
                e(f"buffer_store_dwordx4 {V(vPK+r0+4*k,4)}, v{vL16}, {srd(sWS)}, s{sT0} offen offset:{(k%4)*1024} sc1")
    a.lab(Lreg)
    Lplain, Lc1 = a.new("L_plain"), a.new("L_c1")
    def l0_chunk(q, cs):
        Lsw = a.new("L_skipwait")
        e(f"s_cmp_eq_u32 s{sW}, 4"); e(f"s_cbranch_scc1 {Lsw}")
        iss = min(32, args.l0pre + 8*q)
        e(f"s_waitcnt vmcnt({iss - 8*(q+1)})")
        a.lab(Lsw)
        fstamp(f"hc{q}"); e("s_barrier"); fstamp(f"hb{q}")
        if args.l0pre + 8*q < 32: dma_wqkv(args.l0pre + 8*q, 8)
        if cs: colsum_chunk("qkv", 16, q == 0)
        def w4only(fn):
            Lnp = a.new("L_w4o")
            e(f"s_cmp_lg_u32 s{sW}, 4"); e(f"s_cbranch_scc1 {Lnp}")
            fn(); a.lab(Lnp)
        def reg_write():
            nonce_poll(4 + 50)
            e(f"s_add_u32 s{sT0}, s{sXCC}, 1")
            e(f"v_mov_b32 v56, s{sNONCE}"); e(f"v_mov_b32 v57, s{sT0}"); e("v_mov_b32 v58, 0")
            e(f"s_lshl_b32 s{sT0+1}, s{sB}, 4"); e(f"s_add_u32 s{sT0+1}, s{sT0+1}, s{sI}"); e(f"s_lshl_b32 s{sT0+1}, s{sT0+1}, 3")
            e(f"s_add_u32 s{sT0+1}, s{sT0+1}, {REGA}")
            e("s_mov_b64 exec, 1")
            e(f"buffer_store_dwordx2 v[56:57], v58, {srd(sWS)}, s{sT0+1} offen sc1")
            e("s_mov_b64 exec, -1")
        l0_chunk.reg_write = reg_write; l0_chunk.w4only = w4only
        if cs and q == args.packq: w4only(pack_gather)
        if cs and q == args.packst: w4only(pack_store)
        if cs and q == args.regq: w4only(reg_write)
    e(f"s_cmp_eq_u32 s{sW}, 7"); e(f"s_cbranch_scc1 {Lplain}")
    colsum_init("qkv"); pass
    for q in range(4): l0_chunk(q, True)
    colsum_fin("qkv"); pass
    e(f"s_branch {Lc1}")
    a.lab(Lplain)
    for q in range(4): l0_chunk(q, False)
    a.lab(Lc1)
    e("s_barrier")
    e("s_barrier")
    if STOP == 1:
        e("s_barrier"); e("s_branch L_end")
    Lnr = a.new("L_noreg2")
    e(f"s_cmp_lg_u32 s{sW}, 4"); e(f"s_cbranch_scc1 {Lnr}")
    if args.packst > 3: pack_store()
    if args.regq > 3: l0_chunk.reg_write()
    e(f"s_mov_b32 s{sTGT}, 1")
    e(f"v_lshlrev_b32 v4, 3, v{vLANE}")
    for r in range(4):
        e(f"s_mov_b32 s{sT0}, {REGA + r*512}")
        poll64(4, sT0, sTGT, 6, sleep=16)
    e(f"v_and_b32 v4, 15, v{vLANE}"); e(f"v_lshlrev_b32 v4, 3, v4")
    e(f"s_lshl_b32 s{sT0}, s{sB}, 7"); e(f"s_add_u32 s{sT0}, s{sT0}, {REGA}")
    e(f"v_mov_b32 v7, 0")
    poll64(4, sT0, sTGT, 6, sleep=2)
    e(f"s_add_u32 s{sT0}, s{sXCC}, 1")
    e(f"v_cmp_ne_u32 vcc, s{sT0}, v7")
    e(f"s_cmp_eq_u64 vcc, 0"); e(f"s_cselect_b32 s{sMODE}, 1, 0")
    if args.slow: e(f"s_mov_b32 s{sMODE}, 0")
    e(f"v_mov_b32 v5, s{sMODE}"); e(f"v_mov_b32 v4, {L_MODE}")
    e("ds_write_b32 v4, v5"); e("s_waitcnt lgkmcnt(0)")
    a.lab(Lnr)
    e("s_barrier")
    e("s_branch L_p2_helper")
    a.lab("L_p1_helper_l1")
    e("s_waitcnt vmcnt(8)"); e("s_barrier")
    fstamp("hb0")
    Lw4, Lw4j = a.new("L_w4pf"), a.new("L_w4j")
    if args.pfa:
        e(f"s_cmp_eq_u32 s{sW}, 4"); e(f"s_cbranch_scc1 {Lw4}")
    dma_wqkv_packed(16, 8)
    e("s_waitcnt vmcnt(8)"); fstamp("hc1"); e("s_barrier")
    dma_wqkv_packed(24, 8)
    e("s_waitcnt vmcnt(8)"); fstamp("hc2"); e("s_barrier")
    e("s_waitcnt vmcnt(0)"); fstamp("hc3"); e("s_barrier")
    if args.pfa:
        e(f"s_branch {Lw4j}")
        a.lab(Lw4)
        l2_prefetch1(16384, 16, PKO); e("s_barrier")
        l2_prefetch1(57344, 20, PK1); e("s_barrier")
        l2_prefetch1(57344, 18, PK1 + 20*1024); e("s_barrier")
        l2_prefetch1(57344, 18, PK1 + 38*1024)
        a.lab(Lw4j)
    e("s_barrier")
    e("s_barrier")
    e("s_branch L_p2_helper")

    a.lab("L_p2")
    fstamp("p2start")
    vQ = 4; vK = 8; vV = 44; vS = 60; vP = 108; vO = 116; vCb = 132; vMB = 148; vM = 156
    vAK, vAV, vAQ = 158, 159, 160
    sHH = sT0 + 8
    e(f"v_mov_b32 v{vAQ}, {L_MODE}"); e(f"ds_read_b32 v{vM}, v{vAQ}")
    e(f"s_lshl_b32 s{sN}, s{sB}, 2"); e(f"s_add_u32 s{sN}, s{sN}, s{sW}"); e(f"s_add_u32 s{sN}, s{sN}, 1"); e(f"s_min_u32 s{sN}, s{sN}, 9")
    e(f"v_add_u32 v{vAQ}, {L_MD}, v{vL16}")
    for g in range(2): e(f"ds_read_b128 {V(vMB+4*g,4)}, v{vAQ} offset:{8192+g*1024}")
    for r in range(16): e(f"v_mov_b32 v{vV+r}, 0x3f803f80")
    e(f"s_mov_b32 s{sHH}, 0")
    e("s_waitcnt lgkmcnt(0)")
    e(f"v_readfirstlane_b32 s{sMODE}, v{vM}")
    a.lab("L_att_task")
    e(f"s_lshl_b32 s{sT0+2}, s{sW}, 11"); e(f"s_lshl_b32 s{sT0+3}, s{sHH}, 10"); e(f"s_add_u32 s{sT0+4}, s{sT0+2}, s{sT0+3}")
    e(f"v_add_u32 v{vAK}, s{sT0+4}, v{vL16}")
    e(f"s_lshl_b32 s{sT0+3}, s{sHH}, 8"); e(f"s_add_u32 s{sT0+4}, s{sT0+2}, s{sT0+3}")
    e(f"v_add_u32 v{vAV}, s{sT0+4}, v{vL16}")
    e(f"ds_read_b128 {V(vQ,4)}, v{vAK} offset:{L_QST}")
    for j in range(9): e(f"ds_read_b128 {V(vK+4*j,4)}, v{vAK} offset:{L_KST + (8-j)*2048}")
    e("s_waitcnt lgkmcnt(7)")
    def Sb(j): return vS + 16*(j % 3)
    def smfma(j, c): e(f"{MF} {V(Sb(j),16)}, {V(vK+4*j,4)}, {V(vQ,4)}, {c}")
    def vread(j):
        Vb = vV + 8*(j % 2)
        e(f"s_mov_b64 exec, {sp(sM16)}")
        e(f"ds_read_b128 {V(Vb,4)}, v{vAV} offset:{L_VST + (8-j)*2048}")
        e(f"ds_read_b128 {V(Vb+4,4)}, v{vAV} offset:{L_VST + (8-j)*2048 + 1024}")
        e("s_mov_b64 exec, -1")
    def mf_read(j):
        for g in range(4): e(f"ds_read_b128 {V(Sb(j)+4*g,4)}, v{vAQ} offset:{4096+g*1024}")
    def maxes(j):
        for k in range(8): e(f"v_max3_f32 v{vM}, v{Sb(j)+2*k}, v{Sb(j)+2*k+1}, v{vM}")
    def finish_max():
        e(f"v_mov_b32 v{vM+1}, v{vM}"); a.nop(2)
        e(f"v_permlane32_swap_b32 v{vM+1}, v{vM}"); a.nop(1)
        e(f"v_max_f32 v{vM}, v{vM}, v{vM+1}")
        e(f"v_sub_f32 v{vM}, 0, v{vM}")
        for r in range(16): e(f"v_mov_b32 v{vCb+r}, v{vM}")
        a.nop(2)
    def tile2(j, first):
        S = Sb(j); Vb = vV + 8*(j % 2)
        for r in range(8): e(f"v_exp_f32 v{S+r}, v{S+r}")
        for d in range(4): e(f"v_cvt_pk_bf16_f32 v{vP+d}, v{S+2*d}, v{S+2*d+1}")
        if j == 0:
            for d in range(4): e(f"v_and_b32 v{vP+d}, v{vP+d}, v{vMB+d}")
        if j == 8:
            for d in range(4): e(f"v_bfi_b32 v{vP+d}, v{vMB+d}, 0, v{vP+d}")
        for r in range(8, 16): e(f"v_exp_f32 v{S+r}, v{S+r}")
    def tile2b(j, first):
        S = Sb(j); Vb = vV + 8*(j % 2)
        e(f"{MF} {V(vO,16)}, {V(Vb,4)}, {V(vP,4)}, {'0' if first else V(vO,16)}")
        for d in range(4, 8): e(f"v_cvt_pk_bf16_f32 v{vP+d}, v{S+2*d}, v{S+2*d+1}")
        if j == 0:
            for d in range(4, 8): e(f"v_and_b32 v{vP+d}, v{vP+d}, v{vMB+d}")
        if j == 8:
            for d in range(4, 8): e(f"v_bfi_b32 v{vP+d}, v{vMB+d}, 0, v{vP+d}")
        a.nop(2)
        e(f"{MF} {V(vO,16)}, {V(Vb+4,4)}, {V(vP+4,4)}, {V(vO,16)}")

    Lgen, Lfin = a.new("L_att_gen"), a.new("L_att_fin")
    def exact_path(nmax):
        for g in range(4): e(f"ds_read_b128 {V(vS+4*g,4)}, v{vAQ} offset:{g*1024}")
        e(f"v_mov_b32 v{vM}, {NEG:#x}")
        e("s_waitcnt lgkmcnt(0)")
        Lp1 = a.new("L_p1done")
        for j in range(nmax):
            if j == 8:
                mf_read(8); e("s_waitcnt lgkmcnt(0)")
            smfma(j, V(Sb(j), 16) if j in (0, 8) else "0")
            a.nop(14)
            maxes(j)
            if j < nmax - 1:
                e(f"s_cmp_le_u32 s{sN}, {j+1}"); e(f"s_cbranch_scc1 {Lp1}")
        a.lab(Lp1)
        finish_max()
        Lp2 = a.new("L_p2done")
        for j in range(nmax):
            smfma(j, V(vCb,16)); vread(j)
            a.nop(12)
            tile2(j, j == 0)
            e("s_waitcnt lgkmcnt(0)")
            tile2b(j, j == 0)
            if j < nmax - 1:
                e(f"s_cmp_le_u32 s{sN}, {j+1}"); e(f"s_cbranch_scc1 {Lp2}")
        a.lab(Lp2)
    if args.nomax:
        Lfd = a.new("L_fastdone")
        smfma(0, "0"); smfma(1, "0")
        e("s_waitcnt lgkmcnt(0)")
        vread(0)
        a.nop(8)
        for j in range(9):
            S = Sb(j); Vb = vV + 8*(j % 2)
            def mask(lo, hi):
                if j == 0:
                    for d in range(lo, hi): e(f"v_and_b32 v{vP+d}, v{vP+d}, v{vMB+d}")
                if j == 8:
                    for d in range(lo, hi): e(f"v_bfi_b32 v{vP+d}, v{vMB+d}, 0, v{vP+d}")
            for r in range(4): e(f"v_exp_f32 v{S+r}, v{S+r}")
            if j + 1 <= 8: vread(j + 1)
            for r in range(4, 8): e(f"v_exp_f32 v{S+r}, v{S+r}")
            if j + 2 <= 8: smfma(j + 2, "0")
            for r in range(8, 10): e(f"v_exp_f32 v{S+r}, v{S+r}")
            for d in range(4): e(f"v_cvt_pk_bf16_f32 v{vP+d}, v{S+2*d}, v{S+2*d+1}")
            mask(0, 4)
            for r in range(10, 16): e(f"v_exp_f32 v{S+r}, v{S+r}")
            e(f"s_waitcnt lgkmcnt({2 if j < 8 else 0})")
            e(f"{MF} {V(vO,16)}, {V(Vb,4)}, {V(vP,4)}, {'0' if j == 0 else V(vO,16)}")
            for d in range(4, 8): e(f"v_cvt_pk_bf16_f32 v{vP+d}, v{S+2*d}, v{S+2*d+1}")
            mask(4, 8)
            if j < 8:
                e(f"s_cmp_le_u32 s{sN}, {j+1}")
                e("s_nop 0")
            else:
                a.nop(2)
            e(f"{MF} {V(vO,16)}, {V(Vb+4,4)}, {V(vP+4,4)}, {V(vO,16)}")
            if j < 8: e(f"s_cbranch_scc1 {Lfd}")
        a.lab(Lfd)
        a.nop(14)
        e(f"v_max3_f32 v{vM}, |v{vO}|, |v{vO+1}|, |v{vO+2}|")
        e(f"v_max3_f32 v{vM}, |v{vO+3}|, |v{vO+4}|, v{vM}")
        e(f"v_max3_f32 v{vM}, |v{vO+5}|, |v{vO+6}|, v{vM}")
        e(f"v_max_f32 v{vM}, |v{vO+7}|, v{vM}")
        e(f"s_mov_b32 s{sT0}, {f2u(2.0**-40):#x}"); e(f"s_mov_b32 s{sT0+1}, {f2u(2.0**40):#x}"); e(f"s_mov_b32 s{sT0+2}, {f2u(2.0**120):#x}")
        e(f"v_cmp_le_f32 vcc, s{sT0}, v{vO+8}")
        e(f"v_cmp_ge_f32 s[{sT0+10}:{sT0+11}], s{sT0+1}, v{vO+8}")
        e(f"s_and_b64 vcc, vcc, s[{sT0+10}:{sT0+11}]")
        e(f"v_cmp_ge_f32 s[{sT0+10}:{sT0+11}], s{sT0+2}, v{vM}")
        e(f"s_and_b64 vcc, vcc, s[{sT0+10}:{sT0+11}]")
        if args.forcefb: e("s_mov_b64 vcc, 0")
        e(f"s_cmp_eq_u64 vcc, -1"); e(f"s_cbranch_scc1 {Lfin}")
        e("s_waitcnt lgkmcnt(0)")
        exact_path(9)
    else:
        e("s_waitcnt lgkmcnt(0)")
        exact_path(9)
    a.lab(Lfin)
    a.nop(14)
    e(f"v_rcp_f32 v{vM}, v{vO+8}"); a.nop(1)
    for r in range(8): e(f"v_mul_f32 v{vO+r}, v{vO+r}, v{vM}")
    for d in range(4): e(f"v_cvt_pk_bf16_f32 v{vP+d}, v{vO+2*d}, v{vO+2*d+1}")
    e(f"s_lshl_b32 s{sT0+2}, s{sB}, 2"); e(f"s_add_u32 s{sT0+2}, s{sT0+2}, s{sW}"); e(f"s_lshl_b32 s{sT0+2}, s{sT0+2}, 15")
    e(f"s_lshl_b32 s{sT0+3}, s{sI}, 11"); e(f"s_add_u32 s{sT0+2}, s{sT0+2}, s{sT0+3}")
    e(f"s_lshl_b32 s{sT0+3}, s{sHH}, 10"); e(f"s_add_u32 s{sT0+2}, s{sT0+2}, s{sT0+3}")
    e(f"s_add_u32 s{sT0+2}, s{sT0+2}, {OF}")
    moded(lambda fl: e(f"buffer_store_dwordx4 {V(vP,4)}, v{vL16}, {srd(sWS)}, s{sT0+2} offen{fl}"))
    e(f"s_cmp_eq_u32 s{sHH}, 0"); e(f"s_mov_b32 s{sHH}, 1"); e("s_cbranch_scc1 L_att_task")
    fstamp("p2pre")
    e("s_waitcnt vmcnt(0)")
    team_signal(1, 4)
    e("s_barrier")
    fstamp("p2end")
    if STOP == 2:
        e("s_waitcnt vmcnt(0) lgkmcnt(0)"); e("s_branch L_end")

    def n64_bases(vmine, vother, lds_base_sreg):
        tr_base_common(vmine, vother, 6)
        e(f"v_bfe_u32 v6, v{vmine}, 1, 1")
        e(f"v_lshl_add_u32 v{vother}, v{vmine}, 7, v{vother}")
        e(f"s_lshr_b32 s{sT0+3}, s{sW}, 1")
        e(f"v_xor_b32 v6, s{sT0+3}, v6")
        e(f"v_lshl_add_u32 v{vmine}, v6, 6, v{vother}")
        e(f"v_xor_b32 v6, 1, v6")
        e(f"v_lshl_add_u32 v{vother}, v6, 6, v{vother}")
        e(f"v_add_u32 v{vmine}, s{lds_base_sreg}, v{vmine}")
        e(f"v_add_u32 v{vother}, s{lds_base_sreg}, v{vother}")
    def unpack_res(dst, bias):
        for d in range(8):
            e(f"v_lshlrev_b32 v{dst+2*d}, 16, v{vRES+d}")
            e(f"v_and_b32 v{dst+2*d+1}, 0xffff0000, v{vRES+d}")
        if bias is not None:
            for p in range(8): e(f"v_pk_add_f32 {V(dst+2*p,2)}, {V(dst+2*p,2)}, {V(bias+2*p,2)}")

    def exchange_and_epilogue(is_p5):
        accM, accO = 16, 32
        nm = "p5" if is_p5 else "p3"
        a.nop(12)
        e(f"s_lshl_b32 s{sT0}, s{sW}, 12"); e(f"s_add_u32 s{sT0}, s{sT0}, {L_EX}")
        e(f"v_add_u32 v6, s{sT0}, v{vL16}")
        for q in range(4): e(f"ds_write_b128 v6, {V(accO+4*q,4)} offset:{q*1024}")
        tile_ids()
        e(f"s_lshl_b32 s{sT0}, s{sT0+4}, 15")
        e(f"s_and_b32 s{sT0+1}, s{sI}, 7"); e(f"s_lshl_b32 s{sT0+2}, s{sT0+1}, 12"); e(f"s_add_u32 s{sT0}, s{sT0}, s{sT0+2}")
        e(f"s_lshl_b32 s{sT0+2}, s{sT0+3}, 11"); e(f"s_add_u32 s{sT0}, s{sT0}, s{sT0+2}")
        e(f"s_add_u32 s{sT0}, s{sT0}, {XF if is_p5 else X2F}")
        e(f"s_lshl_b32 s{sT0+5}, s{sT0+4}, 12")
        e(f"s_lshl_b32 s{sT0+2}, s{sT0+1}, 9"); e(f"s_add_u32 s{sT0+5}, s{sT0+5}, s{sT0+2}")
        e(f"s_lshl_b32 s{sT0+2}, s{sT0+3}, 8"); e(f"s_add_u32 s{sT0+5}, s{sT0+5}, s{sT0+2}")
        e(f"s_add_u32 s{sT0+5}, s{sT0+5}, {ST1 if is_p5 else ST2}")
        e(f"s_xor_b32 s{sT0+6}, s{sW}, 2"); e(f"s_lshl_b32 s{sT0+6}, s{sT0+6}, 12"); e(f"s_add_u32 s{sT0+6}, s{sT0+6}, {L_EX}")
        e(f"v_add_u32 v7, s{sT0+6}, v{vL16}")
        e(f"v_and_b32 v10, 31, v{vLANE}"); e(f"v_lshlrev_b32 v10, 3, v10")
        e("s_waitcnt lgkmcnt(0)")
        e("s_barrier")
        fstamp(nm + "x")
        for q in range(4): e(f"ds_read_b128 {V(accO+4*q,4)}, v7 offset:{q*1024}")
        for q in range(4):
            e(f"s_waitcnt lgkmcnt({3-q})")
            e(f"v_pk_add_f32 {V(accM+4*q,2)}, {V(accM+4*q,2)}, {V(accO+4*q,2)}")
            e(f"v_pk_add_f32 {V(accM+4*q+2,2)}, {V(accM+4*q+2,2)}, {V(accO+4*q+2,2)}")
        for d in range(8): e(f"v_cvt_pk_bf16_f32 v{vRES+d}, v{accM+2*d}, v{accM+2*d+1}")
        def st_data(fl):
            e(f"buffer_store_dwordx4 {V(vRES,4)}, v{vL16}, {srd(sWS)}, s{sT0} offen{fl}")
            e(f"buffer_store_dwordx4 {V(vRES+4,4)}, v{vL16}, {srd(sWS)}, s{sT0} offen offset:1024{fl}")
        def stats():
            e(f"v_pk_mul_f32 {V(32,2)}, {V(accM,2)}, {V(accM,2)}")
            e(f"v_pk_add_f32 {V(34,2)}, {V(accM,2)}, {V(accM+2,2)}")
            e(f"v_pk_fma_f32 {V(32,2)}, {V(accM+2,2)}, {V(accM+2,2)}, {V(32,2)}")
            for p in range(2, 8):
                e(f"v_pk_add_f32 {V(34,2)}, {V(34,2)}, {V(accM+2*p,2)}")
                e(f"v_pk_fma_f32 {V(32,2)}, {V(accM+2*p,2)}, {V(accM+2*p,2)}, {V(32,2)}")
            e("v_add_f32 v8, v34, v35"); e("v_add_f32 v9, v32, v33")
            e("v_mov_b32 v12, v8"); e("v_mov_b32 v13, v9"); a.nop(2)
            e("v_permlane32_swap_b32 v12, v8"); e("v_permlane32_swap_b32 v13, v9"); a.nop(1)
            e(f"v_pk_add_f32 {V(8,2)}, {V(8,2)}, {V(12,2)}")
        def st_stats(fl):
            e(f"s_mov_b64 exec, {sp(sM32)}")
            e(f"buffer_store_dwordx2 v[8:9], v10, {srd(sWS)}, s{sT0+5} offen{fl}")
            e("s_mov_b64 exec, -1")
        def normal(delta):
            moded(st_data); stats(); moded(st_stats)
            fstamp(nm + "pre")
            e("s_waitcnt vmcnt(0)")
            fstamp(nm + "drain")
            team_signal(delta, 4)
        if is_p5:
            Lf, Lj = a.new("L_final"), a.new("L_fj")
            e(f"s_cmp_eq_u32 s{sL}, 1"); e(f"s_cbranch_scc1 {Lf}")
            normal(4)
            e(f"s_branch {Lj}")
            a.lab(Lf)
            e(f"v_and_b32 v10, 31, v{vLANE}"); e(f"v_lshlrev_b32 v10, 10, v10")
            e(f"v_lshrrev_b32 v11, 5, v{vLANE}"); e(f"v_lshl_add_u32 v10, v11, 3, v10")
            e(f"s_lshl_b32 s{sT0}, s{sT0+4}, 15")
            e(f"s_lshl_b32 s{sT0+2}, s{sT0+1}, 7"); e(f"s_add_u32 s{sT0}, s{sT0}, s{sT0+2}")
            e(f"s_lshl_b32 s{sT0+2}, s{sT0+3}, 6"); e(f"s_add_u32 s{sT0}, s{sT0}, s{sT0+2}")
            for g in range(4):
                e(f"buffer_store_dwordx2 {V(vRES+2*g,2)}, v10, {srd(sOUT)}, s{sT0} offen offset:{g*16}")
            e("s_branch L_end")
            a.lab(Lj)
        else:
            normal(2)

    unpack_res(48, None)
    team_wait(1, 4)
    fstamp("p3poll")
    tile_ids()
    e(f"s_lshl_b32 s{sT0+2}, s{sT0+3}, 4")
    x_setup(OF, 32, sT0+2, sT0+4)
    for k in range(XA): x_load(k, 64 + 4*k)
    e(f"s_lshl_b32 s{sT0+8}, s{sT0+3}, 15"); e(f"s_add_u32 s{sT0+8}, s{sT0+8}, {L_WO}")
    n64_bases(4, 5, sT0+8)
    vWf = 128
    def wread3(s):
        dst = vWf + 8*(s % 3); off = s*2048
        e(f"ds_read_b64_tr_b16 {V(dst,2)}, v4 offset:{off}"); e(f"ds_read_b64_tr_b16 {V(dst+2,2)}, v4 offset:{off+1024}")
        e(f"ds_read_b64_tr_b16 {V(dst+4,2)}, v5 offset:{off}"); e(f"ds_read_b64_tr_b16 {V(dst+6,2)}, v5 offset:{off+1024}")
    wread3(0); wread3(1)
    for s in range(16):
        e(f"s_waitcnt vmcnt({min(XA, 16-s)-1})")
        if s == 0: fstamp("p3x0")
        if s + XA < 16: x_load(s + XA, 64 + 4*(s + XA))
        if s + 2 < 16: wread3(s + 2)
        e(f"s_waitcnt lgkmcnt({4*min(2, 15-s)})")
        w = vWf + 8*(s % 3); x = 64 + 4*s
        e(f"{MF} v[16:31], {V(w,4)}, {V(x,4)}, {'v[48:63]' if s == 0 else 'v[16:31]'}")
        e(f"{MF} v[32:47], {V(w+4,4)}, {V(x,4)}, {'0' if s == 0 else 'v[32:47]'}")
    fstamp("p3main")
    exchange_and_epilogue(False)
    if STOP == 3:
        e("s_waitcnt vmcnt(0) lgkmcnt(0)"); e("s_branch L_end")
    e("s_branch L_p4_compute")

    a.lab("L_p2_helper")
    vS1 = 112
    NE = args.w2early
    def w2_load(q, k, sleep=0):
        e(f"buffer_load_dwordx4 {V(16+32*q+4*k,4)}, v{vL16}, {srd(sWS)}, s{sW1S} offen offset:{(k%4)*1024} sc1")
        if k == 3: e(f"s_add_u32 s{sW1S}, s{sW1S}, 4096")
        if k == 7: e(f"s_add_u32 s{sW1S}, s{sW1S}, {16*1024 - 4096}")
        if sleep: e(f"s_sleep {sleep}")
    e(f"s_sub_u32 s{sT0+6}, s{sW}, 4"); e(f"s_lshl_b32 s{sT0+6}, s{sT0+6}, 14")
    e(f"s_and_b32 s{sT0+5}, s{sI}, 7"); e(f"s_lshl_b32 s{sT0+5}, s{sT0+5}, 16")
    e(f"s_add_u32 s{sT0+5}, s{sT0+5}, s{sT0+6}"); e(f"s_add_u32 s{sT0+5}, s{sT0+5}, {PKO}")
    e(f"s_add_u32 m0, s{sT0+6}, {L_WO}")
    Lwo = a.new("L_wo")
    e(f"s_mov_b32 s{sCNT}, 16")
    a.lab(Lwo)
    e(f"buffer_load_dwordx4 v{vL16}, {srd(sWS)}, s{sT0+5} offen sc1 lds")
    if args.p2sleep: e(f"s_sleep {args.p2sleep}")
    e(f"s_add_u32 m0, m0, 1024"); e(f"s_add_u32 s{sT0+5}, s{sT0+5}, 1024")
    e(f"s_sub_u32 s{sCNT}, s{sCNT}, 1"); e(f"s_cmp_lg_u32 s{sCNT}, 0"); e(f"s_cbranch_scc1 {Lwo}")
    e(f"s_min_u32 s{sW1S}, s{sI}, 13"); e(f"s_lshl_b32 s{sW1S}, s{sW1S}, 17")
    e(f"s_add_u32 s{sW1S}, s{sW1S}, s{sT0+6}"); e(f"s_add_u32 s{sW1S}, s{sW1S}, {PK1}")
    for k in range(32):
        if k == 16: e(f"s_add_u32 s{sW1S}, s{sW1S}, {65536 - 12288}")
        elif k and k % 4 == 0: e(f"s_add_u32 s{sW1S}, s{sW1S}, 4096")
        e(f"buffer_load_dwordx4 {V(vS1+4*k,4)}, v{vL16}, {srd(sWS)}, s{sW1S} offen offset:{(k%4)*1024} sc1")
        if args.p2sleep: e(f"s_sleep {args.p2sleep}")
    e(f"s_sub_u32 s{sT0}, s{sW}, 4")
    e(f"s_lshr_b32 s{sT0+1}, s{sT0}, 1"); e(f"s_and_b32 s{sT0+2}, s{sT0}, 1")
    e(f"s_mul_i32 s{sW1S}, s{sT0+1}, {112*1024}"); e(f"s_lshl_b32 s{sT0+4}, s{sT0+2}, 13"); e(f"s_add_u32 s{sW1S}, s{sW1S}, s{sT0+4}")
    e(f"s_and_b32 s{sT0+4}, s{sI}, 7"); e(f"s_mul_i32 s{sT0+4}, s{sT0+4}, {224*1024}"); e(f"s_add_u32 s{sW1S}, s{sW1S}, s{sT0+4}")
    e(f"s_add_u32 s{sW1S}, s{sW1S}, {PK2}")
    for q in range(NE):
        for k in range(8): w2_load(q, k, args.p2sleep)
    e(f"s_waitcnt vmcnt({min(63, 32 + 8*NE)})")
    e("s_barrier")
    if STOP == 2: e("s_branch L_end")
    e(f"s_sub_u32 s{sT0}, s{sW}, 4"); e(f"s_lshl_b32 s{sT0}, s{sT0}, 14"); e(f"v_add_u32 v6, s{sT0}, v{vL16}"); e("v_add_u32 v7, 65536, v6")
    e(f"s_waitcnt vmcnt({16 + 8*NE})")
    for k in range(16): e(f"ds_write_b128 v6, {V(vS1+4*k,4)} offset:{k*1024}")
    e("s_barrier")
    if STOP == 3: e("s_branch L_end")
    e(f"s_waitcnt vmcnt({8*NE})")
    for k in range(16): e(f"ds_write_b128 v7, {V(vS1+64+4*k,4)} offset:{k*1024}")
    e("s_waitcnt lgkmcnt(0)")
    e("s_barrier")
    Lcs, Lw2d = a.new("L_cs4"), a.new("L_w2done")
    e(f"s_cmp_lg_u32 s{sL}, 0"); e(f"s_cbranch_scc1 {Lcs}")
    colsum_init("n128"); pass
    rest = [(q, k) for q in range(NE, 7) for k in range(8)]
    rest0 = list(rest)
    def one(_k):
        if rest0 and rest0[0][0] < 6:
            q, k = rest0.pop(0); w2_load(q, k, args.l0w2s)
    for q in range(4): colsum_chunk("n128", 208, q == 0, extra=one)
    colsum_fin("n128"); pass
    e("s_barrier")
    for (q, k) in rest0: w2_load(q, k, args.w2sleep)
    e(f"s_branch {Lw2d}")
    a.lab(Lcs)
    W2S = [int(x) for x in args.w2s.split(",")]
    for (q, k) in rest: w2_load(q, k, W2S[q])
    a.lab(Lw2d)
    if args.pfq == 1:
        Lnq = a.new("L_nopfq")
        e(f"s_cmp_eq_u32 s{sL}, 1"); e(f"s_cbranch_scc1 {Lnq}")
        l2_prefetch(sWS, 49152, 12, dst=244, base=PKQ)
        a.lab(Lnq)
    e("s_barrier")
    if STOP == 4: e("s_branch L_end")
    if args.w2late == 0:
        for q in range(args.w2pre, 7):
            for k in range(8): w2_load(q, k)
    e(f"s_sub_u32 s{sT0}, s{sW}, 4"); e(f"s_lshl_b32 s{sT0}, s{sT0}, 13"); e(f"v_add_u32 v6, s{sT0}, v{vL16}")
    e("v_add_u32 v7, 65536, v6")
    issued = {"n": 7 if args.w2late == 0 else args.w2pre}
    def ring_write(q):
        y = 8*(issued["n"] - 1 - q)
        extra = 12 if ((args.pfq == 1 and q < args.w2pre) or (args.pfq == 2 and q >= PF)) else 0
        if extra:
            La, Lb = a.new("L_wa"), a.new("L_wb")
            e(f"s_cmp_eq_u32 s{sL}, 1"); e(f"s_cbranch_scc1 {La}")
            e(f"s_waitcnt vmcnt({min(63, y + extra)})"); e(f"s_branch {Lb}")
            a.lab(La); e(f"s_waitcnt vmcnt({y})"); a.lab(Lb)
        else:
            e(f"s_waitcnt vmcnt({y})")
        slot = (q % 4) * 32768
        for k in range(8):
            if args.p5now: break
            e(f"ds_write_b128 v{6 if slot < 65536 else 7}, {V(16+32*q+4*k,4)} offset:{slot % 65536 + k*1024}")
    PF = args.ringpre
    for q in range(PF): ring_write(q)
    e("s_waitcnt lgkmcnt(0)")
    for q in range(7):
        e("s_barrier")
        if q == 0 and args.pfq == 2:
            Lnq = a.new("L_nopfq")
            e(f"s_cmp_eq_u32 s{sL}, 1"); e(f"s_cbranch_scc1 {Lnq}")
            l2_prefetch(sWS, 49152, 12, dst=244, base=PKQ)
            a.lab(Lnq)
        if q == 0 and args.w2late == 1:
            for qq in range(args.w2pre, 7):
                for k in range(8): w2_load(qq, k)
            issued["n"] = 7
        nxt = [c for c in range(PF, 7) if (c == q + 1 and c < 4) or (c >= 4 and c == q + 2)]
        for c in nxt: ring_write(c)
        if nxt: e("s_waitcnt lgkmcnt(0)")
    e("s_barrier")
    e(f"s_cmp_eq_u32 s{sL}, 1"); e("s_cbranch_scc1 L_end")
    if STOP == 5: e("s_branch L_end")
    dma_wqkv_packed(0, 16)
    e(f"s_mov_b32 s{sL}, 1"); e(f"s_mov_b32 s{sKVO}, {LSTRIDE}")
    e("s_branch L_p1_helper_l1")

    a.lab("L_p4_compute")
    Lidle, Lp4e = a.new("L_p4idle"), a.new("L_p4end")
    e(f"s_cmp_ge_u32 s{sI}, 14"); e(f"s_cbranch_scc1 {Lidle}")
    team_wait(2, 4)
    fstamp("p4poll")
    vX = 80; vAcc = 16; vWf = 208
    e(f"s_lshl_b32 s{sT0+4}, s{sB}, 2"); e(f"s_add_u32 s{sT0+4}, s{sT0+4}, s{sW}")
    x_setup(X2F, 32, None, sT0+4)
    for k in range(XA): x_load(k, vX + 4*k)
    load_stats(ST2, 232, 4, sT0+4)
    tr_base_common(4, 5, 6)
    e("v_lshl_add_u32 v5, v4, 8, v5"); e("v_and_b32 v8, 3, v4")
    for ft in range(4):
        e(f"v_xor_b32 v9, {ft}, v8"); e(f"v_lshl_add_u32 v{10+ft}, v9, 6, v5")
    vA, vB = 4, 6
    e(f"v_lshrrev_b32 v8, 5, v{vLANE}"); e("v_lshlrev_b32 v8, 4, v8"); e(f"v_add_u32 v8, {L_CS4}, v8")
    e(f"s_mul_i32 s{sT0}, s{sT0+4}, {112*1024}")
    e(f"s_lshl_b32 s{sT0+1}, s{sI}, 13"); e(f"s_add_u32 s{sT0}, s{sT0}, s{sT0+1}"); e(f"s_add_u32 s{sT0}, s{sT0}, {HF}")
    e("s_barrier")
    class Lg:
        n = 0
    def lds(instr):
        e(instr); Lg.n += 1; return Lg.n
    def lwait(k):
        e(f"s_waitcnt lgkmcnt({min(15, Lg.n - k)})")
    NS = 6; PRE = NS - 1
    seq = [(s, ft) for s in range(32) for ft in range(3)] + [(s, 3) for s in range(32)]
    rid = {}
    def slot4(n): return vWf + 4*(n % NS)
    bumped = set()
    def issue4(n):
        s, ft = seq[n]
        if s >= 16 and ft not in bumped:
            e(f"v_add_u32 v{10+ft}, 65536, v{10+ft}"); bumped.add(ft)
        off = (s % 16) * 4096; dst = slot4(n)
        lds(f"ds_read_b64_tr_b16 {V(dst,2)}, v{10+ft} offset:{off}")
        rid[n] = lds(f"ds_read_b64_tr_b16 {V(dst+2,2)}, v{10+ft} offset:{off+2048}")
    gid = {}
    def grp_reads(G):
        ft, g = divmod(G, 4); b = 232 + 8*(G % 2)
        lds(f"ds_read_b128 {V(b,4)}, v8 offset:{ft*128 + g*32}")
        gid[G] = lds(f"ds_read_b128 {V(b+4,4)}, v8 offset:{512 + ft*128 + g*32}")
    def store_tile(ft):
        acc = vAcc + 16*ft
        if ft == 2: e(f"s_add_u32 s{sT0}, s{sT0}, 4096")
        def st4(fl):
            e(f"buffer_store_dwordx4 {V(acc,4)}, v{vL16}, {srd(sWS)}, s{sT0} offen offset:{(ft%2)*2048}{fl}")
            e(f"buffer_store_dwordx4 {V(acc+4,4)}, v{vL16}, {srd(sWS)}, s{sT0} offen offset:{(ft%2)*2048+1024}{fl}")
        moded(st4)
    items = []
    for G in range(12):
        ft, g = divmod(G, 4); b = 232 + 8*(G % 2); acc = vAcc + 16*ft
        items.append(("wait", G))
        for i in range(4):
            r = acc + 4*g + i
            items.append(("v", f"v_fma_f32 v{r}, v{r}, v{vA}, v{b+4+i}"))
            items.append(("v", f"v_fma_f32 v{r}, -v{vB}, v{b+i}, v{r}"))
        items.append(("next", G + 2))
        for i in range(4):
            r = acc + 4*g + i
            items.append(("v", f"v_max_f32 v{r}, 0, v{r}"))
            items.append(("v", f"v_mul_f32 v{r}, v{r}, v{r}"))
        for dd in range(2):
            d = 2*g + dd
            items.append(("v", f"v_cvt_pk_bf16_f32 v{acc+d}, v{acc+2*d}, v{acc+2*d+1}"))
        if g == 3: items.append(("st", ft))
    nv = sum(1 for it in items if it[0] == "v")
    def run_items(budget):
        done = 0
        while items and done < budget:
            it = items.pop(0)
            if it[0] == "v": e(it[1]); done += 1
            elif it[0] == "wait": lwait(gid[it[1]])
            elif it[0] == "next":
                if it[1] < 16: grp_reads(it[1])
            elif it[0] == "st": store_tile(it[1])
    for n in range(PRE): issue4(n)
    for n, (s, ft) in enumerate(seq):
        passB = n >= 96
        if not passB and ft == 0:
            e(f"s_waitcnt vmcnt({XA + 7 if s < XA else min(XA, 32-s)-1})")
            if s == 0: fstamp("p4x0")
            if s + XA < 32: x_load(s + XA, vX + 4*(s + XA))
        if not passB and ft == 1 and s == XA:
            reduce_partials(232); finish_stats(232, vA, vB)
        if n == 96:
            fstamp("p4A")
            Lnb4 = a.new("L_nob4b")
            e(f"s_cmp_lg_u32 s{sL}, 0"); e(f"s_cbranch_scc1 {Lnb4}")
            e("s_barrier")
            a.lab(Lnb4)
            grp_reads(0); grp_reads(1)
        lwait(rid[n])
        acc = vAcc + 16*ft; x = vX + 4*s; w = slot4(n)
        e(f"{MF} {V(acc,16)}, {V(w,4)}, {V(x,4)}, {'0' if s == 0 else V(acc,16)}")
        if n + PRE < len(seq): issue4(n + PRE)
        if n == 96: a.nop(10)
        if passB and n > 96: run_items(7)
    run_items(10**6)
    fstamp("p4main")
    e("s_barrier")
    acc = vAcc + 48
    for G in range(12, 16):
        g = G - 12; b = 232 + 8*(G % 2)
        lwait(gid[G])
        if G == 12: a.nop(8)
        for p in range(2):
            r = acc + 4*g + 2*p
            e(f"v_pk_fma_f32 {V(r,2)}, {V(r,2)}, {V(vA,2)}, {V(b+4+2*p,2)} op_sel_hi:[1,0,1]")
            e(f"v_pk_fma_f32 {V(r,2)}, {V(b+2*p,2)}, {V(vB,2)}, {V(r,2)} op_sel_hi:[1,0,1] neg_lo:[0,1,0] neg_hi:[0,1,0]")
        if G + 2 < 16: grp_reads(G + 2)
        for p in range(2):
            r = acc + 4*g + 2*p
            e(f"v_max_f32 v{r}, 0, v{r}"); e(f"v_max_f32 v{r+1}, 0, v{r+1}")
            e(f"v_pk_mul_f32 {V(r,2)}, {V(r,2)}, {V(r,2)}")
        for dd in range(2):
            d = 2*g + dd
            e(f"v_cvt_pk_bf16_f32 v{acc+d}, v{acc+2*d}, v{acc+2*d+1}")
    store_tile(3)
    fstamp("p4pre")
    e("s_waitcnt vmcnt(0)")
    fstamp("p4drain")
    e(f"s_branch {Lp4e}")
    a.lab(Lidle)
    e("s_barrier")
    Lnb4i = a.new("L_nob4bi")
    e(f"s_cmp_lg_u32 s{sL}, 0"); e(f"s_cbranch_scc1 {Lnb4i}")
    e("s_barrier")
    a.lab(Lnb4i)
    e("s_barrier")
    a.lab(Lp4e)
    team_signal(3, 4)
    fstamp("p4flag")
    if STOP == 4:
        e("s_waitcnt vmcnt(0) lgkmcnt(0)"); e("s_branch L_end")

    e(f"v_lshrrev_b32 v7, 5, v{vLANE}"); e(f"v_lshlrev_b32 v7, 4, v7")
    e(f"s_lshr_b32 s{sT0}, s{sW}, 1"); e(f"s_lshl_b32 s{sT0}, s{sT0}, 7"); e(f"s_add_u32 s{sT0}, s{sT0}, {L_B2}")
    e(f"v_add_u32 v7, s{sT0}, v7")
    for g in range(4): e(f"ds_read_b128 {V(32+4*g,4)}, v7 offset:{g*32}")
    e("s_waitcnt lgkmcnt(0)")
    unpack_res(48, 32)
    fstamp("p5pp")
    team_wait(3, 4)
    if args.fine and "p5cnt" in args.fine.split(","):
        k = args.fine.split(",").index("p5cnt"); e(f"s_mov_b32 s{64+2*k}, s{sCNT}")
    fstamp("p5poll")
    tile_ids()
    e(f"s_mul_i32 s{sT0+2}, s{sT0+3}, 56")
    NX = args.xahead5
    x_setup(HF, 112, sT0+2, sT0+4)
    def x5(k):
        if args.p5nox and k >= NX: return
        x_load(k, 64 + 4*(k % NX))
    for k in range(NX): x5(k)
    e(f"s_lshl_b32 s{sT0+8}, s{sT0+3}, 14")
    n64_bases(4, 5, sT0+8)
    e("v_add_u32 v8, 65536, v4"); e("v_add_u32 v9, 65536, v5")
    vWf = 176
    def wread5(s):
        q, ss = divmod(s, 8); dst = vWf + 8*(s % 3); off = (q % 4)*32768 + ss*2048
        b0, b1 = (8, 9) if off >= 65536 else (4, 5); off %= 65536
        e(f"ds_read_b64_tr_b16 {V(dst,2)}, v{b0} offset:{off}"); e(f"ds_read_b64_tr_b16 {V(dst+2,2)}, v{b0} offset:{off+1024}")
        e(f"ds_read_b64_tr_b16 {V(dst+4,2)}, v{b1} offset:{off}"); e(f"ds_read_b64_tr_b16 {V(dst+6,2)}, v{b1} offset:{off+1024}")
    e("s_barrier")
    fstamp("p5B")
    wread5(0); wread5(1)
    for s in range(56):
        e(f"s_waitcnt vmcnt({min(56, s + NX) - s - 1})")
        if s + 2 < 56:
            if (s + 2) % 8 == 0: e("s_barrier")
            wread5(s + 2)
        e(f"s_waitcnt lgkmcnt({4*min(2, 55-s)})")
        w = vWf + 8*(s % 3); x = 64 + 4*(s % NX)
        e(f"{MF} v[16:31], {V(w,4)}, {V(x,4)}, {'v[48:63]' if s == 0 else 'v[16:31]'}")
        e(f"{MF} v[32:47], {V(w+4,4)}, {V(x,4)}, {'0' if s == 0 else 'v[32:47]'}")
        if s + NX < 56: x5(s + NX)
    fstamp("p5main")
    exchange_and_epilogue(True)
    if STOP == 5:
        e("s_waitcnt vmcnt(0) lgkmcnt(0)"); e("s_branch L_end")
    e(f"s_mov_b32 s{sL}, 1"); e(f"s_mov_b32 s{sKVO}, {LSTRIDE}")
    e("s_branch L_p1_l1")
    a.lab("L_end")
    if args.fine:
        n = len(args.fine.split(","))
        e("s_waitcnt lgkmcnt(0)")
        e("s_cmp_ge_u32 s2, 256"); e("s_cbranch_scc1 L_end2")
        e(f"s_lshl_b32 s98, s2, 3"); e(f"s_add_u32 s98, s98, s{sW}"); e(f"s_lshl_b32 s98, s98, 8"); e(f"s_add_u32 s98, s98, {STAMP}")
        e("v_mov_b32 v3, 0"); e("s_mov_b64 exec, 1")
        for k in range(n):
            e(f"v_mov_b32 v2, s{64+2*k}")
            e(f"buffer_store_dword v2, v3, {srd(sWS)}, s98 offen offset:{4*k}"); e("s_nop 1")
        a.lab("L_end2")
    e("s_endpgm")
    return a.text()

HEADER = """; Fused 2-layer (sliding-window attention + squared-ReLU MLP) megakernel for gfx950.
; @launch grid=(256,1,1) block=(512,1,1) lds=163840
.amdgcn_target "amdgcn-amd-amdhsa--gfx950"
.text
.globl {n}_kernel
.p2align 8
.type {n}_kernel,@function
{n}_kernel:
"""
FOOTER = """.section .rodata,"a"
.p2align 6
.amdhsa_kernel {n}_kernel
  .amdhsa_next_free_vgpr 256
  .amdhsa_next_free_sgpr 102
  .amdhsa_accum_offset 256
  .amdhsa_group_segment_fixed_size 0
  .amdhsa_kernarg_size 88
  .amdhsa_user_sgpr_count 2
  .amdhsa_user_sgpr_kernarg_segment_ptr 1
  .amdhsa_system_sgpr_workgroup_id_x 1
.end_amdhsa_kernel
"""
def parse(argv=None):
    ap = argparse.ArgumentParser()
    ap.add_argument("--stop", type=int, default=-1)
    ap.add_argument("--slow", action="store_true")
    ap.add_argument("--dbgq", action="store_true")
    ap.add_argument("--rt", action="store_true")
    ap.add_argument("--fine", default="")
    ap.add_argument("--xahead", type=int, default=8)
    ap.add_argument("--xahead0", type=int, default=12)
    ap.add_argument("--xahead5", type=int, default=12)
    ap.add_argument("--w2sleep", type=int, default=1)
    ap.add_argument("--nobg", type=int, default=0)
    ap.add_argument("--diag", type=int, default=0)
    ap.add_argument("--plog", type=int, default=22)
    ap.add_argument("--w2early", type=int, default=0)
    ap.add_argument("--p2sleep", type=int, default=0)
    ap.add_argument("--cpf", type=int, default=1)
    ap.add_argument("--l0w2s", type=int, default=1)
    ap.add_argument("--touch", type=int, default=0)
    ap.add_argument("--packq", type=int, default=-1)
    ap.add_argument("--packst", type=int, default=0)
    ap.add_argument("--regq", type=int, default=2)
    ap.add_argument("--xreg", type=int, default=1)
    ap.add_argument("--l0pre", type=int, default=16)
    ap.add_argument("--w1late", type=int, default=0)
    ap.add_argument("--psleep", type=int, default=1)
    ap.add_argument("--kvsleep", type=int, default=1)
    ap.add_argument("--p2prio", type=int, default=0)
    ap.add_argument("--pfa", type=int, default=0)
    ap.add_argument("--pfa_n", type=int, default=40)
    ap.add_argument("--pfb", type=int, default=0)
    ap.add_argument("--hpre", type=int, default=0)
    ap.add_argument("--nomax", type=int, default=1)
    ap.add_argument("--forcefb", type=int, default=0)
    ap.add_argument("--w2pre", type=int, default=7)
    ap.add_argument("--w2late", type=int, default=0)
    ap.add_argument("--ringpre", type=int, default=4)
    ap.add_argument("--w2s", default="2,2,2,2,1,1,1")
    ap.add_argument("--prio", type=int, default=0)
    ap.add_argument("--prio2", type=int, default=0)
    ap.add_argument("--p5nox", type=int, default=0)
    ap.add_argument("--p5now", type=int, default=0)
    ap.add_argument("--bg1", type=int, default=1)
    ap.add_argument("--bg2", type=int, default=1)
    ap.add_argument("--bgorder", type=int, default=0)
    ap.add_argument("--pf0", type=int, default=0)
    ap.add_argument("--pfq", type=int, default=2)
    ap.add_argument("-o", default="/dev/stdout")
    return ap.parse_args(argv)
if __name__ == "__main__":
    args = parse()
    open(args.o, "w").write(HEADER.format(n=NAME) + build(args) + FOOTER.format(n=NAME))
```

```python
import sys, argparse, struct

NAME = "interleave_layers__sliding_block__dense_activation_squared_relu__prompt"

CTRL = 0x0
C_KV  = 1024
REGA = 0x18000
ERRA = 0x1C000
STAMP= 0x20000
XF   = 0x100000
X2F  = 0x300000
OF   = 0x500000
ST1  = 0x700000
ST2  = 0x740000
KF   = 0x800000
VF   = 0xC00000
HF   = 0x1000000
LSTRIDE = 0x200000
PKQ  = 0x1800000
PKO  = 0x1A00000
PK1  = 0x1B00000
PK2  = 0x1D00000

L_KST  = 0
L_VST  = 24576
L_QST  = 49152
L_WO   = 65536
L_EX   = 131072
L_STA  = 147456
L_MD   = 151552
L_MF   = L_MD + 4096
L_MB   = L_MF + 4096
L_CS1  = L_MB + 2048
L_CS4  = L_CS1 + 512
L_B1   = L_CS4 + 512
L_B2   = L_B1 + 512
L_MODE = L_B2 + 256
L_CSC  = L_MODE + 4
L_C4C  = L_MODE + 8
LDS_BYTES = 163840
assert L_MODE + 16 <= LDS_BYTES

NEG = 0xF149F2CA
QSCALE = 0.25 * 1.4426950408889634
def f2u(f): return struct.unpack("<I", struct.pack("<f", f))[0]

sWS, sWQ, sWO, sW1, sW2, sX, sOUT, sDBG, sTS = 8, 12, 16, 20, 24, 28, 32, 36, 40
sB, sI, sW, sMODE, sL, sTEAM, sMYF, sFAIL = 44, 45, 46, 47, 48, 49, 50, 51
sT0 = 52
sKA = 64
sM16, sM32 = 86, 88
sTGT, sCNT, sXCC, sN, sKVO, sNONCE = 90, 91, 92, 93, 94, 95
sXS = 61
sW1S = 60
def srd(x): return f"s[{x}:{x+3}]"
def sp(x): return f"s[{x}:{x+1}]"
def V(a, n=1): return f"v{a}" if n == 1 else f"v[{a}:{a+n-1}]"

vLANE, vL16 = 0, 1
vRES = 248
vSTG = 180

class Asm:
    def __init__(self): self.l = []; self.uid = 0
    def e(self, s): self.l.append("  " + s)
    def lab(self, s): self.l.append(s + ":")
    def new(self, p="L"):
        self.uid += 1; return f"{p}_{self.uid}"
    def text(self): return "\n".join(self.l) + "\n"
    def nop(self, n):
        while n > 0:
            k = min(n, 16); self.e(f"s_nop {k-1}"); n -= k

def build(args):
    a = Asm(); e = a.e
    STOP = args.stop
    POLL_LIMIT = 1 << args.plog
    XA = args.xahead
    MF = "v_mfma_f32_32x32x16_bf16"
    PKF = {0: " sc1", 1: "", 2: " nt", 3: " sc0 sc1"}[args.pkf]

    def fstamp(name):
        if not args.fine or name not in args.fine.split(","): return
        k = args.fine.split(",").index(name)
        if name.endswith("cnt"): return
        e(f"s_memrealtime s[{64+2*k}:{65+2*k}]" if args.rt else f"s_memtime s[{64+2*k}:{65+2*k}]")

    pid = {"n": 0}
    def fail_record():
        pid["n"] += 1
        e(f"s_mov_b32 s{sFAIL}, 1")
        if args.diag:
            e(f"s_lshl_b32 s96, s2, 3"); e(f"s_add_u32 s96, s96, s{sW}"); e(f"s_lshl_b32 s96, s96, 2"); e(f"s_add_u32 s96, s96, {ERRA}")
            e(f"s_lshl_b32 s97, s{sL}, 8"); e(f"s_add_u32 s97, s97, {0x1000 + pid['n']}")
            e("v_mov_b32 v2, s97"); e("v_mov_b32 v3, 0"); e("s_mov_b64 s[98:99], exec"); e("s_mov_b64 exec, 1")
            e(f"buffer_store_dword v2, v3, {srd(sWS)}, s96 offen sc1"); e("s_mov_b64 exec, s[98:99]")
    def poll(voff, soff, tgt, vtmp, sleep=1):
        L = a.new("L_poll"); D = a.new("L_pdone")
        e(f"s_mov_b32 s{sCNT}, {POLL_LIMIT}")
        e(f"s_cmp_eq_u32 s{sFAIL}, 0"); e(f"s_cbranch_scc0 {D}")
        a.lab(L)
        e(f"buffer_load_dword v{vtmp}, v{voff}, {srd(sWS)}, s{soff} offen sc1")
        e("s_waitcnt vmcnt(0)")
        e(f"v_cmp_gt_u32 vcc, s{tgt}, v{vtmp}")
        e(f"s_cbranch_vccz {D}")
        if sleep: e(f"s_sleep {sleep}")
        e(f"s_sub_u32 s{sCNT}, s{sCNT}, 1"); e(f"s_cbranch_scc0 {L}")
        fail_record()
        a.lab(D)

    def poll64(voff, soff, tgt, vtmp, sleep=2):
        L = a.new("L_poll"); D = a.new("L_pdone")
        e(f"s_mov_b32 s{sCNT}, {POLL_LIMIT}")
        e(f"s_cmp_eq_u32 s{sFAIL}, 0"); e(f"s_cbranch_scc0 {D}")
        a.lab(L)
        e(f"buffer_load_dwordx2 v[{vtmp}:{vtmp+1}], v{voff}, {srd(sWS)}, s{soff} offen sc1")
        e("s_waitcnt vmcnt(0)")
        e(f"v_subrev_u32 v{vtmp+2}, s{tgt}, v{vtmp+1}")
        e(f"v_cmp_ne_u32 vcc, s{sNONCE}, v{vtmp}")
        e(f"v_cmp_lt_u32 s[{sT0+10}:{sT0+11}], 31, v{vtmp+2}")
        e(f"s_or_b64 vcc, vcc, s[{sT0+10}:{sT0+11}]")
        e(f"s_cbranch_vccz {D}")
        if sleep: e(f"s_sleep {sleep}")
        e(f"s_sub_u32 s{sCNT}, s{sCNT}, 1"); e(f"s_cbranch_scc0 {L}")
        fail_record()
        a.lab(D)

    def nonce_poll(v):
        L = a.new("L_npoll"); D = a.new("L_ndone")
        e(f"v_mov_b32 v{v}, 0")
        e(f"s_mov_b32 s{sCNT}, {POLL_LIMIT}")
        a.lab(L)
        e(f"buffer_load_dword v{v+1}, v{v}, {srd(sDBG)}, 0 offen sc1")
        e("s_waitcnt vmcnt(0)")
        e(f"v_readfirstlane_b32 s{sNONCE}, v{v+1}")
        e(f"s_cmp_lg_u32 s{sNONCE}, 0"); e(f"s_cbranch_scc1 {D}")
        e("s_sleep 2")
        e(f"s_sub_u32 s{sCNT}, s{sCNT}, 1"); e(f"s_cbranch_scc0 {L}")
        fail_record()
        a.lab(D)

    def moded(fn):
        F = a.new("L_fast"); J = a.new("L_join")
        e(f"s_cmp_eq_u32 s{sMODE}, 1"); e(f"s_cbranch_scc1 {F}")
        fn(" sc1"); e(f"s_branch {J}")
        a.lab(F); fn(""); a.lab(J)

    def team_wait(delta, vt):
        e(f"s_lshl_b32 s{sTGT}, s{sL}, 2")
        e(f"s_add_u32 s{sTGT}, s{sTGT}, {delta}")
        e(f"v_lshlrev_b32 v{vt}, 2, v{vLANE}")
        poll(vt, sTEAM, sTGT, vt + 1, sleep=args.psleep)

    def team_signal(delta, vt):
        e(f"s_lshl_b32 s{sT0}, s{sL}, 2")
        e(f"s_add_u32 s{sT0}, s{sT0}, {delta}")
        e(f"v_mov_b32 v{vt}, s{sT0}"); e(f"v_mov_b32 v{vt+1}, 0")
        e("s_mov_b64 exec, 1")
        moded(lambda fl: e(f"buffer_store_dword v{vt}, v{vt+1}, {srd(sWS)}, s{sMYF} offen{fl}"))
        e("s_mov_b64 exec, -1")

    def tr_base_common(vrow, vcol, vt):
        e(f"v_lshrrev_b32 v{vrow}, 5, v{vLANE}")
        e(f"v_lshlrev_b32 v{vrow}, 2, v{vrow}")
        e(f"v_bfe_u32 v{vt}, v{vLANE}, 2, 2")
        e(f"v_add_u32 v{vrow}, v{vrow}, v{vt}")
        e(f"v_bfe_u32 v{vcol}, v{vLANE}, 4, 1")
        e(f"v_lshlrev_b32 v{vcol}, 5, v{vcol}")
        e(f"v_and_b32 v{vt}, 3, v{vLANE}")
        e(f"v_lshlrev_b32 v{vt}, 3, v{vt}")
        e(f"v_add_u32 v{vcol}, v{vcol}, v{vt}")

    def voff_qkv(v, vt):
        e(f"v_lshrrev_b32 v{v}, 2, v{vLANE}")
        e(f"v_mul_u32_u24 v{v}, 3072, v{v}")
        e(f"v_and_b32 v{vt}, 3, v{vLANE}")
        e(f"v_lshl_add_u32 v{v}, v{vt}, 4, v{v}")
    def voff_n64(v, vt):
        e(f"v_lshrrev_b32 v{v}, 3, v{vLANE}")
        e(f"v_lshlrev_b32 v{v}, 10, v{v}")
        e(f"v_lshrrev_b32 v{vt}, 2, v{vLANE}")
        e(f"v_lshrrev_b32 v{vt+1}, 4, v{vLANE}")
        e(f"v_xor_b32 v{vt}, v{vt}, v{vt+1}")
        e(f"v_and_b32 v{vt}, 1, v{vt}")
        e(f"v_lshl_add_u32 v{v}, v{vt}, 6, v{v}")
        e(f"v_and_b32 v{vt}, 3, v{vLANE}")
        e(f"v_lshl_add_u32 v{v}, v{vt}, 4, v{v}")
    def voff_n128(v, vt):
        e(f"v_lshrrev_b32 v{v}, 4, v{vLANE}")
        e(f"v_bfe_u32 v{vt}, v{vLANE}, 2, 2")
        e(f"v_xor_b32 v{vt}, v{vt}, v{v}")
        e(f"v_mul_u32_u24 v{v}, 3584, v{v}")
        e(f"v_lshl_add_u32 v{v}, v{vt}, 6, v{v}")
        e(f"v_and_b32 v{vt}, 3, v{vLANE}")
        e(f"v_lshl_add_u32 v{v}, v{vt}, 4, v{v}")

    def dma_loop(srd_reg, voff, soff_reg, soff_step, lds_step, count, sleep=0):
        L = a.new("L_dma")
        e(f"s_mov_b32 s{sCNT}, {count}")
        a.lab(L)
        e(f"buffer_load_dwordx4 v{voff}, {srd(srd_reg)}, s{soff_reg} offen lds")
        if sleep: e(f"s_sleep {sleep}")
        e(f"s_add_u32 m0, m0, {lds_step}")
        e(f"s_add_u32 s{soff_reg}, s{soff_reg}, {soff_step}")
        e(f"s_sub_u32 s{sCNT}, s{sCNT}, 1"); e(f"s_cmp_lg_u32 s{sCNT}, 0"); e(f"s_cbranch_scc1 {L}")

    def dma_wqkv(first, count):
        S = a.new("L_skip")
        e(f"s_cmp_lt_u32 s{sW}, 5"); e(f"s_cbranch_scc1 {S}")
        voff_qkv(2, 3)
        e(f"s_sub_u32 s{sT0}, s{sW}, 5")
        e(f"s_lshl_b32 s{sT0+1}, s{sT0}, 10")
        e(f"s_lshl_b32 s{sT0+2}, s{sI}, 6")
        e(f"s_add_u32 s{sT0+1}, s{sT0+1}, s{sT0+2}")
        if first: e(f"s_add_u32 s{sT0+1}, s{sT0+1}, {first*16*3072}")
        e(f"s_lshl_b32 s{sT0}, s{sT0}, 15")
        e(f"s_add_u32 m0, s{sT0}, {first*1024}")
        dma_loop(sWQ, 2, sT0+1, 16*3072, 1024, count)
        a.lab(S)

    vCSA = 240
    def dma_wqkv_packed(first, count):
        S = a.new("L_skip")
        e(f"s_cmp_lt_u32 s{sW}, 5"); e(f"s_cbranch_scc1 {S}")
        e(f"s_sub_u32 s{sT0}, s{sW}, 5"); e(f"s_lshl_b32 s{sT0}, s{sT0}, 15")
        e(f"s_mul_i32 s{sT0+1}, s{sI}, 98304"); e(f"s_add_u32 s{sT0+1}, s{sT0+1}, s{sT0}")
        e(f"s_add_u32 s{sT0+1}, s{sT0+1}, {PKQ + first*1024}")
        e(f"s_add_u32 m0, s{sT0}, {first*1024}")
        L = a.new("L_dma")
        e(f"s_mov_b32 s{sCNT}, {count}")
        a.lab(L)
        e(f"buffer_load_dwordx4 v{vL16}, {srd(sWS)}, s{sT0+1} offen{PKF} lds")
        e(f"s_add_u32 m0, m0, 1024"); e(f"s_add_u32 s{sT0+1}, s{sT0+1}, 1024")
        e(f"s_sub_u32 s{sCNT}, s{sCNT}, 1"); e(f"s_cmp_lg_u32 s{sCNT}, 0"); e(f"s_cbranch_scc1 {L}")
        a.lab(S)

    def colsum_init(kind):
        tr_base_common(4, 5, 6)
        e(f"s_sub_u32 s{sT0}, s{sW}, 4")
        if kind == "qkv":
            e(f"v_lshl_add_u32 v4, v4, 6, v5")
            e(f"s_lshl_b32 s{sT0+1}, s{sT0}, 15")
            e(f"v_add_u32 v4, s{sT0+1}, v4")
        else:
            e(f"v_and_b32 v6, 3, v4")
            e(f"v_xor_b32 v6, s{sT0}, v6")
            e(f"v_lshl_add_u32 v5, v6, 6, v5")
            e(f"v_lshl_add_u32 v4, v4, 8, v5")
        for r in range(8, 12): e(f"v_mov_b32 v{r}, 0x3f803f80")
    def colsum_chunk(kind, tmp, first, extra=None):
        step, second = (1024, 512) if kind == "qkv" else (4096, 2048)
        for k in range(8):
            e(f"ds_read_b64_tr_b16 v[{tmp+4*k}:{tmp+4*k+1}], v4 offset:{k*step}")
            e(f"ds_read_b64_tr_b16 v[{tmp+4*k+2}:{tmp+4*k+3}], v4 offset:{k*step+second}")
        e(f"v_add_u32 v4, {8*step}, v4")
        for k in range(8):
            if extra: extra(k)
            e(f"s_waitcnt lgkmcnt({14-2*k})")
            e(f"{MF} {V(vCSA,16)}, {V(tmp+4*k,4)}, v[8:11], {'0' if (first and k == 0) else V(vCSA,16)}")
    def colsum_fin(kind):
        cs = L_CS1 if kind == "qkv" else L_CS4
        a.nop(14)
        e(f"s_sub_u32 s{sT0}, s{sW}, 4")
        e(f"s_lshl_b32 s{sT0+1}, s{sT0}, 7"); e(f"s_add_u32 s{sT0+1}, s{sT0+1}, {cs}")
        e(f"v_lshrrev_b32 v10, 5, v{vLANE}"); e(f"v_lshl_add_u32 v10, v10, 4, s{sT0+1}")
        e(f"s_mov_b32 s{sT0+2}, 1"); e(f"s_mov_b32 s{sT0+3}, 1")
        e(f"s_mov_b64 exec, s[{sT0+2}:{sT0+3}]")
        for g in range(4): e(f"ds_write_b128 v10, {V(vCSA+4*g,4)} offset:{g*32}")
        e("s_mov_b64 exec, 1")
        e("s_waitcnt lgkmcnt(0)")
        e(f"v_mov_b32 v10, {L_CSC}"); e("v_mov_b32 v9, 1")
        e("ds_add_u32 v10, v9")
        e("s_mov_b64 exec, -1")
        e("s_waitcnt lgkmcnt(0)")

    def cs_wait(target, v):
        L = a.new("L_csw")
        e(f"v_mov_b32 v{v}, {L_CSC}")
        a.lab(L)
        e(f"ds_read_b32 v{v+1}, v{v}")
        e("s_waitcnt lgkmcnt(0)")
        e(f"v_readfirstlane_b32 s{sT0+10}, v{v+1}")
        e(f"s_cmp_lt_u32 s{sT0+10}, {target}"); e(f"s_cbranch_scc1 {L}")

    def load_stats(st_base, vdst, voff, tile_sreg):
        e(f"v_lshrrev_b32 v{voff}, 5, v{vLANE}")
        e(f"v_lshlrev_b32 v{voff}, 11, v{voff}")
        e(f"v_and_b32 v{voff+1}, 31, v{vLANE}")
        e(f"v_lshl_add_u32 v{voff}, v{voff+1}, 3, v{voff}")
        e(f"s_lshl_b32 s{sT0+5}, s{tile_sreg}, 12")
        e(f"s_add_u32 s{sT0+5}, s{sT0+5}, {st_base}")
        for k in range(8):
            e(f"buffer_load_dwordx2 v[{vdst+2*k}:{vdst+2*k+1}], v{voff}, {srd(sWS)}, s{sT0+5} offen offset:{k*256} sc1")

    def reduce_partials(vsrc):
        for k in (1, 3, 5, 7):
            e(f"v_pk_add_f32 v[{vsrc+2*(k-1)}:{vsrc+2*(k-1)+1}], v[{vsrc+2*(k-1)}:{vsrc+2*(k-1)+1}], v[{vsrc+2*k}:{vsrc+2*k+1}]")
        e(f"v_pk_add_f32 v[{vsrc}:{vsrc+1}], v[{vsrc}:{vsrc+1}], v[{vsrc+4}:{vsrc+5}]")
        e(f"v_pk_add_f32 v[{vsrc+8}:{vsrc+9}], v[{vsrc+8}:{vsrc+9}], v[{vsrc+12}:{vsrc+13}]")
        e(f"v_pk_add_f32 v[{vsrc}:{vsrc+1}], v[{vsrc}:{vsrc+1}], v[{vsrc+8}:{vsrc+9}]")
    def finish_stats(vsrc, vA, vB):
        e(f"v_mov_b32 v{vsrc+2}, v{vsrc}"); e(f"v_mov_b32 v{vsrc+3}, v{vsrc+1}")
        a.nop(2)
        e(f"v_permlane32_swap_b32 v{vsrc+2}, v{vsrc}"); e(f"v_permlane32_swap_b32 v{vsrc+3}, v{vsrc+1}")
        a.nop(1)
        e(f"v_pk_add_f32 v[{vsrc}:{vsrc+1}], v[{vsrc}:{vsrc+1}], v[{vsrc+2}:{vsrc+3}]")
        e(f"v_mul_f32 v{vsrc}, {f2u(1/512):#x}, v{vsrc}")
        e(f"v_mul_f32 v{vsrc+1}, {f2u(1/512):#x}, v{vsrc+1}")
        e(f"v_fma_f32 v{vsrc+1}, -v{vsrc}, v{vsrc}, v{vsrc+1}")
        e(f"v_max_f32 v{vsrc+1}, 0, v{vsrc+1}")
        e(f"v_add_f32 v{vsrc+1}, {f2u(1e-5):#x}, v{vsrc+1}")
        e(f"v_rsq_f32 v{vA}, v{vsrc+1}")
        a.nop(1)
        e(f"v_mul_f32 v{vB}, v{vsrc}, v{vA}")

    def x_setup(base, nsteps_total, s0_sreg, tile_sreg):
        e(f"s_mul_i32 s{sXS}, s{tile_sreg}, {nsteps_total*1024}")
        e(f"s_add_u32 s{sXS}, s{sXS}, {base}")
        if s0_sreg is not None:
            e(f"s_lshl_b32 s{sT0+7}, s{s0_sreg}, 10")
            e(f"s_add_u32 s{sXS}, s{sXS}, s{sT0+7}")
    def x_load(k, dst):
        if k and k % 4 == 0: e(f"s_add_u32 s{sXS}, s{sXS}, 4096")
        e(f"buffer_load_dwordx4 v[{dst}:{dst+3}], v{vL16}, {srd(sWS)}, s{sXS} offen offset:{(k%4)*1024} sc1")

    def tile_ids():
        e(f"s_lshl_b32 s{sT0+4}, s{sB}, 2")
        e(f"s_lshr_b32 s{sT0+1}, s{sI}, 3"); e(f"s_lshl_b32 s{sT0+1}, s{sT0+1}, 1")
        e(f"s_add_u32 s{sT0+4}, s{sT0+4}, s{sT0+1}")
        e(f"s_and_b32 s{sT0+1}, s{sW}, 1"); e(f"s_add_u32 s{sT0+4}, s{sT0+4}, s{sT0+1}")
        e(f"s_lshr_b32 s{sT0+3}, s{sW}, 1")

    e("s_cmp_ge_u32 s2, 256"); e("s_cbranch_scc1 L_end")
    e(f"s_load_dwordx16 s[{sKA}:{sKA+15}], s[0:1], 0")
    e(f"s_load_dwordx4 s[{sKA+16}:{sKA+19}], s[0:1], 64")
    e(f"s_load_dwordx2 s[{sKA+20}:{sKA+21}], s[0:1], 80")
    e(f"v_lshrrev_b32 v2, 6, v0")
    e(f"v_and_b32 v{vLANE}, 63, v0")
    e(f"v_readfirstlane_b32 s{sW}, v2")
    e(f"v_lshlrev_b32 v{vL16}, 4, v{vLANE}")
    e(f"s_and_b32 s{sB}, s2, 7"); e(f"s_lshl_b32 s{sB}, s{sB}, 1")
    e(f"s_lshr_b32 s{sT0}, s2, 7"); e(f"s_or_b32 s{sB}, s{sB}, s{sT0}")
    e(f"s_bfe_u32 s{sI}, s2, 0x40003")
    e(f"s_mov_b32 s{sL}, 0"); e(f"s_mov_b32 s{sFAIL}, 0"); e(f"s_mov_b32 s{sKVO}, 0"); e(f"s_mov_b32 s{sMODE}, 0"); e(f"s_mov_b32 s{sNONCE}, 0")
    e(f"s_mov_b32 s{sM16}, 0x0000ffff"); e(f"s_mov_b32 s{sM16+1}, 0x0000ffff")
    e(f"s_mov_b32 s{sM32}, -1"); e(f"s_mov_b32 s{sM32+1}, 0")
    e(f"s_getreg_b32 s{sXCC}, hwreg(HW_REG_XCC_ID, 0, 4)")
    e(f"s_lshl_b32 s{sTEAM}, s{sB}, 12")
    e(f"s_lshl_b32 s{sMYF}, s{sI}, 4"); e(f"s_add_u32 s{sMYF}, s{sMYF}, s{sTEAM}")
    e(f"s_and_b32 s{sT0}, s{sW}, 3"); e(f"s_lshl_b32 s{sT0}, s{sT0}, 2"); e(f"s_add_u32 s{sMYF}, s{sMYF}, s{sT0}")
    e("s_waitcnt lgkmcnt(0)")
    def mk(dst, src, size):
        e(f"s_mov_b32 s{dst}, s{src}"); e(f"s_and_b32 s{dst+1}, s{src+1}, 0xffff")
        e(f"s_mov_b32 s{dst+2}, {size}"); e(f"s_mov_b32 s{dst+3}, 0x00020000")
    mk(sX, sKA+0, 2048*512*2); mk(sWQ, sKA+2, 512*1536*2); mk(sWO, sKA+4, 512*512*2)
    mk(sW1, sKA+8, 512*1792*2); mk(sW2, sKA+12, 1792*512*2); mk(sOUT, sKA+16, 2048*512*2)
    mk(sDBG, sKA+18, 256); mk(sWS, sKA+20, 0x10000000)
    if args.cpf:
        Lcp = a.new("L_nocpf")
        e(f"s_cmp_lg_u32 s{sW}, 7"); e(f"s_cbranch_scc1 {Lcp}")
        e(f"s_lshr_b32 s{sT0+2}, s2, 3")
        e(f"s_cmp_ge_u32 s{sT0+2}, (L_end - L_cpf0) >> 11"); e(f"s_cbranch_scc1 {Lcp}")
        e(f"s_getpc_b64 s[{sT0}:{sT0+1}]")
        a.lab("L_cpf0")
        e(f"s_lshl_b32 s{sT0+2}, s{sT0+2}, 11")
        e(f"v_add_u32 v2, s{sT0+2}, v{vL16}")
        e(f"global_load_dwordx4 v[60:63], v2, s[{sT0}:{sT0+1}]")
        e(f"global_load_dwordx4 v[60:63], v2, s[{sT0}:{sT0+1}] offset:1024")
        a.lab(Lcp)
    e(f"s_cmp_ge_u32 s{sW}, 4"); e("s_cbranch_scc1 L_pro_helper")

    if args.prio: e(f"s_setprio {args.prio}")
    vX = 64; vAcc = 16; vWf = 192
    vXO = 14
    Lnb = a.new("L_nobias")
    e(f"s_cmp_lg_u32 s{sW}, 3"); e(f"s_cbranch_scc1 {Lnb}")
    mk(sTS, sKA+10, 1792*2)
    e(f"v_lshlrev_b32 v20, 1, v{vLANE}")
    e(f"s_lshl_b32 s{sT0+2}, s{sI}, 8")
    e(f"buffer_load_ushort v21, v20, {srd(sTS)}, s{sT0+2} offen")
    e(f"buffer_load_ushort v22, v20, {srd(sTS)}, s{sT0+2} offen offset:128")
    mk(sTS, sKA+14, 512*2)
    e(f"s_and_b32 s{sT0+2}, s{sI}, 7"); e(f"s_lshl_b32 s{sT0+2}, s{sT0+2}, 7")
    e(f"buffer_load_ushort v23, v20, {srd(sTS)}, s{sT0+2} offen")
    a.lab(Lnb)
    fstamp("start")
    tile_ids()
    e(f"v_and_b32 v10, 31, v{vLANE}"); e(f"v_lshlrev_b32 v10, 10, v10")
    e(f"v_lshrrev_b32 v11, 5, v{vLANE}")
    e(f"v_lshl_add_u32 v{vXO}, v11, 4, v10")
    e(f"v_lshl_add_u32 v10, v11, 3, v10")
    e(f"s_lshl_b32 s{sT0}, s{sT0+4}, 15")
    e(f"s_and_b32 s{sT0+1}, s{sI}, 7"); e(f"s_lshl_b32 s{sT0+1}, s{sT0+1}, 7"); e(f"s_add_u32 s{sT0}, s{sT0}, s{sT0+1}")
    e(f"s_lshl_b32 s{sT0+1}, s{sT0+3}, 6"); e(f"s_add_u32 s{sT0}, s{sT0}, s{sT0+1}")
    for g in range(4):
        e(f"buffer_load_dwordx2 v[{vRES+2*g}:{vRES+2*g+1}], v10, {srd(sX)}, s{sT0} offen offset:{g*16}")
    e(f"s_lshl_b32 s{sXS}, s{sB}, 2"); e(f"s_add_u32 s{sXS}, s{sXS}, s{sW}"); e(f"s_lshl_b32 s{sXS}, s{sXS}, 15")
    L_XR = 98304
    e(f"v_lshrrev_b32 v{vXO}, 3, v{vLANE}"); e(f"v_and_b32 v15, 7, v{vLANE}"); e(f"v_xor_b32 v15, v15, v{vXO}")
    e(f"v_lshlrev_b32 v{vXO}, 10, v{vXO}"); e(f"v_lshl_add_u32 v{vXO}, v15, 4, v{vXO}")
    e(f"s_mul_i32 s{sW1S}, s{sW}, 12288"); e(f"s_add_u32 s{sW1S}, s{sW1S}, {L_XR}")
    def x0_dma(c):
        e(f"s_add_u32 m0, s{sW1S}, {(c % 3)*4096}")
        e(f"s_add_u32 s{sT0+6}, s{sXS}, {c*128}")
        for r in range(4):
            e(f"buffer_load_dwordx4 v{vXO}, {srd(sX)}, s{sT0+6} offen lds")
            if r < 3:
                e(f"s_add_u32 m0, m0, 1024"); e(f"s_add_u32 s{sT0+6}, s{sT0+6}, 8192")
    if args.xreg:
        for c in range(8):
            for r in range(4):
                e(f"s_add_u32 s{sT0+6}, s{sXS}, {c*128 + r*8192}")
                e(f"buffer_load_dwordx4 {V(vX+4*(4*c+r),4)}, v{vXO}, {srd(sX)}, s{sT0+6} offen")
        XA0 = 32
    else:
        for c in range(3): x0_dma(c)
        XA0 = 12
    fstamp("xissued")
    Lw1, Lw2, Lw3, Ltab = a.new("L_w1"), a.new("L_w2"), a.new("L_w3"), a.new("L_tabdone")
    e(f"v_and_b32 v16, 31, v{vLANE}"); e(f"v_lshrrev_b32 v17, 5, v{vLANE}"); e(f"v_lshlrev_b32 v17, 2, v17")
    e(f"v_sub_u32 v16, v16, v17")
    e(f"v_mov_b32 v18, 0"); e(f"v_mov_b32 v19, {NEG:#x}")
    e(f"s_cmp_eq_u32 s{sW}, 3"); e(f"s_cbranch_scc1 {Lw3}")
    e(f"s_cmp_eq_u32 s{sW}, 2"); e(f"s_cbranch_scc1 {Lw2}")
    e(f"s_cmp_eq_u32 s{sW}, 1"); e(f"s_cbranch_scc1 {Lw1}")
    e(f"v_mov_b32 v33, {L_CSC}"); e("ds_write_b32 v33, v18"); e("ds_write_b32 v33, v18 offset:4")
    for (lab, base, inv) in ((None, L_MD, False), (Lw1, L_MF, True)):
        if lab: a.lab(lab)
        for g in range(4):
            for i in range(4):
                e(f"v_cmp_le_i32 vcc, {8*g+i}, v16"); a.nop(2)
                e(f"v_cndmask_b32 v{24+i}, v19, v18, vcc" if not inv else f"v_cndmask_b32 v{24+i}, v18, v19, vcc")
            e(f"v_add_u32 v28, {base + g*1024}, v{vL16}")
            e(f"ds_write_b128 v28, v[24:27]"); a.nop(2)
        e(f"s_branch {Ltab}")
    a.lab(Lw2)
    e(f"v_mov_b32 v29, 0xffff"); e(f"v_mov_b32 v30, 0xffff0000")
    for half in range(2):
        for dd in range(4):
            d = half*4 + dd; r0, r1 = 2*d, 2*d+1
            c0 = 8*(r0 >> 2) + (r0 & 3); c1 = 8*(r1 >> 2) + (r1 & 3)
            e(f"v_cmp_le_i32 vcc, {c0}, v16"); a.nop(2); e(f"v_cndmask_b32 v31, v18, v29, vcc")
            e(f"v_cmp_le_i32 vcc, {c1}, v16"); a.nop(2); e(f"v_cndmask_b32 v32, v18, v30, vcc")
            e(f"v_or_b32 v{24+dd}, v31, v32")
        e(f"v_add_u32 v28, {L_MB + half*1024}, v{vL16}")
        e(f"ds_write_b128 v28, v[24:27]"); a.nop(2)
    e(f"s_branch {Ltab}")
    a.lab(Lw3)
    e(f"s_waitcnt vmcnt({4 + XA0})")
    e("v_lshlrev_b32 v21, 16, v21"); e("v_lshlrev_b32 v22, 16, v22"); e("v_lshlrev_b32 v23, 16, v23")
    e(f"v_lshlrev_b32 v24, 2, v{vLANE}"); e(f"v_add_u32 v24, {L_B1}, v24")
    e(f"ds_write_b32 v24, v21"); e(f"ds_write_b32 v24, v22 offset:256"); e(f"ds_write_b32 v24, v23 offset:512")
    a.lab(Ltab)

    def kv_fetch(wr):
        Lnokv = a.new("L_nokv")
        e(f"s_lshr_b32 s{sT0}, s{wr}, 1"); e(f"s_add_u32 s{sT0}, s{sT0}, s{sB}"); e(f"s_sub_u32 s{sT0}, s{sT0}, 2")
        e(f"s_cbranch_scc1 {Lnokv}")
        e(f"s_lshl_b32 s{sT0}, s{sT0}, 12")
        e(f"s_lshl_b32 s{sT0+1}, s{sI}, 7"); e(f"s_add_u32 s{sT0}, s{sT0}, s{sT0+1}")
        e(f"s_lshl_b32 s{sT0+1}, s{wr}, 4"); e(f"s_and_b32 s{sT0+1}, s{sT0+1}, 16")
        e(f"s_add_u32 s{sT0}, s{sT0}, s{sT0+1}"); e(f"s_add_u32 s{sT0}, s{sT0}, {C_KV}")
        e(f"v_and_b32 v10, 1, v{vLANE}"); e(f"v_lshlrev_b32 v10, 3, v10")
        e(f"s_add_u32 s{sTGT}, s{sL}, 1")
        poll64(10, sT0, sTGT, 12, sleep=args.kvsleep)
        fstamp("kvpoll")
        for zz in range(2):
            e(f"s_lshl_b32 s{sT0}, s{sB}, 2"); e(f"s_lshl_b32 s{sT0+1}, s{wr}, 1")
            e(f"s_add_u32 s{sT0}, s{sT0}, s{sT0+1}"); e(f"s_add_u32 s{sT0}, s{sT0}, {zz}"); e(f"s_sub_u32 s{sT0}, s{sT0}, 8")
            e(f"s_lshl_b32 s{sT0}, s{sT0}, 15"); e(f"s_lshl_b32 s{sT0+2}, s{sI}, 11")
            e(f"s_add_u32 s{sT0}, s{sT0}, s{sT0+2}"); e(f"s_add_u32 s{sT0}, s{sT0}, s{sKVO}")
            e(f"s_add_u32 s{sT0+2}, s{sT0}, {VF}"); e(f"s_add_u32 s{sT0}, s{sT0}, {KF}")
            e(f"s_lshl_b32 s{sT0+1}, s{wr}, 12")
            e(f"s_add_u32 m0, s{sT0+1}, {L_KST + zz*2048}"); e("s_nop 0")
            e(f"buffer_load_dwordx4 v{vL16}, {srd(sWS)}, s{sT0} offen sc1 lds")
            e(f"buffer_load_dwordx4 v{vL16}, {srd(sWS)}, s{sT0} offen offset:1024 sc1 lds")
            e(f"s_add_u32 m0, s{sT0+1}, {L_VST + zz*2048}"); e("s_nop 0")
            e(f"buffer_load_dwordx4 v{vL16}, {srd(sWS)}, s{sT0+2} offen sc1 lds")
            e(f"buffer_load_dwordx4 v{vL16}, {srd(sWS)}, s{sT0+2} offen offset:1024 sc1 lds")
        a.lab(Lnokv)
    def kv_fetch_helper():
        e(f"s_sub_u32 s{sT0+7}, s{sW}, 4")
        Lh = a.new("L_hn")
        e(f"s_cmp_lg_u32 s{sNONCE}, 0"); e(f"s_cbranch_scc1 {Lh}")
        nonce_poll(10)
        a.lab(Lh)
        kv_fetch(sT0+7)
        e("s_waitcnt vmcnt(0)")

    def p1_bases():
        tr_base_common(4, 5, 6)
        e("v_lshl_add_u32 v4, v4, 6, v5"); e("v_add_u32 v5, 65536, v4")
    class L1:
        n = 0
    def lds1(instr):
        e(instr); L1.n += 1; return L1.n
    def lwait1(k): e(f"s_waitcnt lgkmcnt({min(15, L1.n - k)})")
    seq1 = [(s, t) for s in range(32) for t in (1, 2)] + [(s, 0) for s in range(32)]
    NS1 = 6; PRE1 = NS1 - 1
    rid1 = {}
    def slot1(n): return vWf + 4*(n % NS1)
    def issue1(n):
        s, t = seq1[n]
        if n < 64 and t == 1 and s % 8 == 0 and s > 0: e("s_barrier")
        b = 4 if t < 2 else 5; off = (t % 2) * 32768 + s * 1024; dst = slot1(n)
        lds1(f"ds_read_b64_tr_b16 v[{dst}:{dst+1}], v{b} offset:{off}")
        rid1[n] = lds1(f"ds_read_b64_tr_b16 v[{dst+2}:{dst+3}], v{b} offset:{off+512}")
    def mfma1(n):
        s, t = seq1[n]
        acc = vAcc + 16*t; c = "0" if s == 0 else V(acc, 16); x = vX + 4*s; w = slot1(n)
        if t < 2: e(f"{MF} {V(acc,16)}, {V(w,4)}, {V(x,4)}, {c}")
        else:     e(f"{MF} {V(acc,16)}, {V(x,4)}, {V(w,4)}, {c}")
    vA, vB = 8, 10
    def p1_stats_ready(tracked=False):
        finish_stats(216, vA, vB)
        e(f"v_and_b32 v6, 31, v{vLANE}"); e(f"v_lshlrev_b32 v6, 2, v6")
        e(f"v_add_u32 v13, {L_CS1+256}, v6")
        e(f"s_lshl_b32 s{sT0}, s{sW}, 8"); e(f"s_add_u32 s{sT0}, s{sT0}, {L_STA}")
        e(f"v_add_u32 v6, s{sT0}, v6")
        (lds1 if tracked else e)(f"ds_write_b32 v6, v{vA}"); (lds1 if tracked else e)(f"ds_write_b32 v6, v{vB} offset:128")
        e(f"v_lshrrev_b32 v7, 5, v{vLANE}"); e(f"v_lshlrev_b32 v7, 4, v7")
        e(f"v_add_u32 v6, {L_CS1}, v7")
        e(f"v_add_u32 v7, s{sT0}, v7")
        if not tracked: e("s_waitcnt lgkmcnt(0)")
    def p1_passA(loads):
        L1.n = 0; rid1.clear()
        for n in range(PRE1): issue1(n)
        for n in range(64):
            s, t = seq1[n]
            if loads and t == 1:
                e(f"s_waitcnt vmcnt({XA + 7 if s < XA else min(XA, 32-s)-1})")
                if s + XA < 32: x_load(s + XA, vX + 4*(s + XA))
            if t == 2 and s == XA:
                if loads: reduce_partials(216)
                p1_stats_ready(True)
            lwait1(rid1[n]); mfma1(n); issue1(n + PRE1)

    e(f"v_and_b32 v6, 31, v{vLANE}"); e(f"v_lshrrev_b32 v7, 5, v{vLANE}"); e(f"v_and_b32 v15, 7, v6")
    e(f"v_xor_b32 v7, v7, v15"); e(f"v_lshlrev_b32 v6, 7, v6"); e(f"v_lshl_add_u32 v6, v7, 4, v6")
    e(f"v_add_u32 v232, s{sW1S}, v6")
    for sp_ in range(1, 4): e(f"v_xor_b32 v{232+sp_}, {sp_*32}, v232")
    e(f"v_add_u32 v236, s{sW1S}, v{vL16}")
    for r in range(8, 12): e(f"v_mov_b32 v{r}, 0x3f803f80")
    def shuffle(c):
        e(f"s_waitcnt vmcnt({4*(7-c)})")
        if c == 0: fstamp("xland")
        for r in range(4):
            e(f"ds_write_b128 v236, {V(vX+4*(4*c+r),4)} offset:{(c % 3)*4096 + r*1024}")
        for sp_ in range(4):
            e(f"ds_read_b128 {V(vX+4*(4*c+sp_),4)}, v{232+sp_} offset:{(c % 3)*4096}")
    shuffle(0)
    for c in range(8):
        if c < 7: shuffle(c + 1)
        e(f"s_waitcnt lgkmcnt({8 if c < 7 else 0})")
        for sp_ in range(4):
            x = vX + 4*(4*c + sp_)
            e(f"v_permlane32_swap_b32 v{x}, v{x+2}"); e(f"v_permlane32_swap_b32 v{x+1}, v{x+3}")
        a.nop(1)
        for sp_ in range(4):
            x = vX + 4*(4*c + sp_); first = (c == 0 and sp_ == 0)
            e(f"{MF} v[16:31], {V(x,4)}, {V(x,4)}, {'0' if first else 'v[16:31]'}")
            e(f"{MF} v[32:47], v[8:11], {V(x,4)}, {'0' if first else 'v[32:47]'}")
    e(f"v_and_b32 v6, 31, v{vLANE}"); e(f"v_lshrrev_b32 v7, 5, v{vLANE}"); e("v_lshlrev_b32 v7, 2, v7"); e("v_sub_u32 v6, v6, v7")
    e("v_mov_b32 v217, 0")
    a.nop(8)
    for r in range(16):
        e(f"v_cmp_eq_u32 vcc, {8*(r >> 2) + (r & 3)}, v6"); a.nop(2)
        e(f"v_cndmask_b32 v217, v217, v{16+r}, vcc")
    e("v_mul_f32 v216, 0.5, v32")
    p1_bases()
    fstamp("xdone")
    e("s_barrier")
    fstamp("p1B")
    p1_passA(False)
    cs_wait(3, 14)
    e("s_branch L_p1_passB")

    a.lab("L_p1_l1")
    team_wait(0, 4)
    fstamp("p1poll")
    e(f"s_lshl_b32 s{sT0+4}, s{sB}, 2"); e(f"s_add_u32 s{sT0+4}, s{sT0+4}, s{sW}")
    x_setup(XF, 32, None, sT0+4)
    for k in range(XA): x_load(k, vX + 4*k)
    load_stats(ST1, 216, 14, sT0+4)
    p1_bases()
    e("s_barrier")
    p1_passA(True)

    a.lab("L_p1_passB")
    fstamp("p1A")
    e("v_mov_b32 v14, 0")
    e(f"buffer_load_dword v15, v14, {srd(sDBG)}, 0 offen sc1")
    e(f"s_lshl_b32 s{sT0+4}, s{sB}, 2"); e(f"s_add_u32 s{sT0+4}, s{sT0+4}, s{sW}")
    e(f"s_lshl_b32 s{sT0}, s{sT0+4}, 15"); e(f"s_lshl_b32 s{sT0+1}, s{sI}, 11")
    e(f"s_add_u32 s{sT0}, s{sT0}, s{sT0+1}"); e(f"s_add_u32 s{sT0}, s{sT0}, s{sKVO}")
    e(f"s_add_u32 s{sT0+1}, s{sT0}, {VF}"); e(f"s_add_u32 s{sT0}, s{sT0}, {KF}")
    gid1 = {}
    def grp1(G):
        b = 232 + 8*(G % 2)
        if G < 4:   gid1[G] = lds1(f"ds_read_b128 {V(b,4)}, v6 offset:{128 + G*32}")
        elif G < 8:
            g = G - 4
            lds1(f"ds_read_b128 {V(b,4)}, v7 offset:{g*32}")
            gid1[G] = lds1(f"ds_read_b128 {V(b+4,4)}, v7 offset:{128 + g*32}")
    items1 = []
    aK, aV, aQ = vAcc + 16, vAcc + 32, vAcc
    for G in range(8):
        b = 232 + 8*(G % 2); g = G % 4; acc = aK if G < 4 else aV
        items1.append(("wait", G))
        for i in range(4):
            r = acc + 4*g + i
            if G < 4:
                items1.append(("v", f"v_mul_f32 v{r}, v{r}, v{vA}"))
                items1.append(("v", f"v_fma_f32 v{r}, -v{vB}, v{b+i}, v{r}"))
            else:
                items1.append(("v", f"v_mul_f32 v{r}, v{r}, v{b+i}"))
                items1.append(("v", f"v_fma_f32 v{r}, -v{b+4+i}, v12, v{r}"))
        items1.append(("next", G + 2))
        for dd in range(2):
            d = 2*g + dd
            items1.append(("v", f"v_cvt_pk_bf16_f32 v{acc+d}, v{acc+2*d}, v{acc+2*d+1}"))
        if g == 3: items1.append(("st", G))
    def run1(budget):
        done = 0
        while items1 and done < budget:
            it = items1.pop(0)
            if it[0] == "v": e(it[1]); done += 1
            elif it[0] == "wait": lwait1(gid1[it[1]])
            elif it[0] == "next": grp1(it[1])
            elif it[0] == "st":
                acc, so = (aK, sT0) if it[1] == 3 else (aV, sT0+1)
                e(f"buffer_store_dwordx4 {V(acc,4)}, v{vL16}, {srd(sWS)}, s{so} offen sc1")
                e(f"buffer_store_dwordx4 {V(acc+4,4)}, v{vL16}, {srd(sWS)}, s{so} offen offset:1024 sc1")
    lds1("ds_read_b32 v12, v13")
    grp1(0); grp1(1)
    for n in range(64, 96):
        lwait1(rid1[n]); mfma1(n)
        if n + PRE1 < 96: issue1(n + PRE1)
        if n == 64: a.nop(10)
        else: run1(4)
    run1(10**6)
    for g in range(4): lds1(f"ds_read_b128 {V(232+4*g,4)}, v6 offset:{g*32}")
    fstamp("p1main")
    e("s_barrier")
    fstamp("p1pre")
    e("s_waitcnt vmcnt(0)")
    fstamp("p1drain")
    Lhn = a.new("L_havenonce")
    e(f"v_readfirstlane_b32 s{sNONCE}, v15")
    e(f"s_cmp_lg_u32 s{sNONCE}, 0"); e(f"s_cbranch_scc1 {Lhn}")
    nonce_poll(14)
    a.lab(Lhn)
    e(f"s_lshl_b32 s{sT0}, s{sI}, 7"); e(f"s_add_u32 s{sT0}, s{sT0}, s{sTEAM}")
    e(f"s_lshl_b32 s{sT0+1}, s{sW}, 3"); e(f"s_add_u32 s{sT0}, s{sT0}, s{sT0+1}"); e(f"s_add_u32 s{sT0}, s{sT0}, {C_KV}")
    e(f"s_add_u32 s{sT0+1}, s{sL}, 1")
    e(f"v_mov_b32 v14, s{sNONCE}"); e(f"v_mov_b32 v15, s{sT0+1}"); e("v_mov_b32 v13, 0")
    e("s_mov_b64 exec, 1")
    e(f"buffer_store_dwordx2 v[14:15], v13, {srd(sWS)}, s{sT0} offen sc1")
    e("s_mov_b64 exec, -1")
    e("s_waitcnt lgkmcnt(0)")
    e(f"v_mul_f32 v152, {f2u(QSCALE):#x}, v{vA}"); e(f"v_mul_f32 v154, {f2u(QSCALE):#x}, v{vB}")
    for p in range(8):
        e(f"v_pk_mul_f32 {V(aQ+2*p,2)}, {V(aQ+2*p,2)}, {V(152,2)} op_sel_hi:[1,0]")
        e(f"v_pk_fma_f32 {V(aQ+2*p,2)}, {V(232+2*p,2)}, {V(154,2)}, {V(aQ+2*p,2)} op_sel_hi:[1,0,1] neg_lo:[0,1,0] neg_hi:[0,1,0]")
    for d in range(8): e(f"v_cvt_pk_bf16_f32 v{aQ+d}, v{aQ+2*d}, v{aQ+2*d+1}")
    e(f"s_lshl_b32 s{sT0+2}, s{sW}, 11"); e(f"v_add_u32 v6, s{sT0+2}, v{vL16}")
    e(f"ds_write_b128 v6, {V(aK,4)} offset:{L_KST+16*1024}"); e(f"ds_write_b128 v6, {V(aK+4,4)} offset:{L_KST+17*1024}")
    e(f"ds_write_b128 v6, {V(aV,4)} offset:{L_VST+16*1024}"); e(f"ds_write_b128 v6, {V(aV+4,4)} offset:{L_VST+17*1024}")
    e(f"ds_write_b128 v6, {V(aQ,4)} offset:{L_QST}"); e(f"ds_write_b128 v6, {V(aQ+4,4)} offset:{L_QST+1024}")
    if args.dbgq:
        e(f"s_lshl_b32 s{sT0}, s{sT0+4}, 15"); e(f"s_lshl_b32 s{sT0+1}, s{sI}, 11")
        e(f"s_add_u32 s{sT0}, s{sT0}, s{sT0+1}"); e(f"s_add_u32 s{sT0}, s{sT0}, {OF}")
        e(f"buffer_store_dwordx4 {V(aQ,4)}, v{vL16}, {srd(sWS)}, s{sT0} offen sc1")
        e(f"buffer_store_dwordx4 {V(aQ+4,4)}, v{vL16}, {srd(sWS)}, s{sT0} offen offset:1024 sc1")
    if STOP == 1:
        e("s_waitcnt vmcnt(0) lgkmcnt(0)"); e("s_barrier"); e("s_branch L_end")
    if not args.kvh: kv_fetch(sW)
    e("s_waitcnt vmcnt(0) lgkmcnt(0)")
    e("s_barrier")
    e("s_branch L_p2")

    def helper_prefetch():
        e(f"s_sub_u32 s{sT0+6}, s{sW}, 4"); e(f"s_lshl_b32 s{sT0+6}, s{sT0+6}, 14")
        e(f"s_and_b32 s{sT0+5}, s{sI}, 7"); e(f"s_lshl_b32 s{sT0+5}, s{sT0+5}, 16")
        e(f"s_add_u32 s{sT0+5}, s{sT0+5}, s{sT0+6}"); e(f"s_add_u32 s{sT0+5}, s{sT0+5}, {PKO}")
        e(f"s_add_u32 m0, s{sT0+6}, {L_WO}")
        L = a.new("L_wo")
        e(f"s_mov_b32 s{sCNT}, 16")
        a.lab(L)
        e(f"buffer_load_dwordx4 v{vL16}, {srd(sWS)}, s{sT0+5} offen{PKF} lds")
        e(f"s_add_u32 m0, m0, 1024"); e(f"s_add_u32 s{sT0+5}, s{sT0+5}, 1024")
        e(f"s_sub_u32 s{sCNT}, s{sCNT}, 1"); e(f"s_cmp_lg_u32 s{sCNT}, 0"); e(f"s_cbranch_scc1 {L}")
        if args.hpre == 2: return
        e(f"s_min_u32 s{sW1S}, s{sI}, 13"); e(f"s_lshl_b32 s{sW1S}, s{sW1S}, 17"); e(f"s_lshl_b32 s{sT0+6}, s{sW}, 14")
        e(f"s_add_u32 s{sW1S}, s{sW1S}, s{sT0+6}"); e(f"s_add_u32 s{sW1S}, s{sW1S}, {PK1}")
        for k in range(16):
            if k and k % 4 == 0: e(f"s_add_u32 s{sW1S}, s{sW1S}, 4096")
            e(f"buffer_load_dwordx4 {V(vSTG+4*k,4)}, v{vL16}, {srd(sWS)}, s{sW1S} offen offset:{(k%4)*1024}{PKF}")

    a.lab("L_pro_helper")
    fstamp("start")
    def l2_prefetch(srd_reg, bytes_per_wg, per_wave, dst=48, base=0):
        e(f"s_lshr_b32 s{sT0}, s2, 3"); e(f"s_mul_i32 s{sT0}, s{sT0}, {bytes_per_wg}")
        e(f"s_sub_u32 s{sT0+1}, s{sW}, 4"); e(f"s_mul_i32 s{sT0+1}, s{sT0+1}, {per_wave*1024}")
        e(f"s_add_u32 s{sT0}, s{sT0}, s{sT0+1}")
        if base: e(f"s_add_u32 s{sT0}, s{sT0}, {base}")
        for k in range(per_wave):
            if k and k % 4 == 0: e(f"s_add_u32 s{sT0}, s{sT0}, 4096")
            e(f"buffer_load_dwordx4 v[{dst}:{dst+3}], v{vL16}, {srd(srd_reg)}, s{sT0} offen offset:{(k%4)*1024}")
    def l2_prefetch1(bytes_per_wg, nkb, base, dst=48, sleep=0):
        e(f"s_lshr_b32 s{sT0}, s2, 3"); e(f"s_mul_i32 s{sT0}, s{sT0}, {bytes_per_wg}"); e(f"s_add_u32 s{sT0}, s{sT0}, {base}")
        L = a.new("L_pf")
        e(f"s_mov_b32 s{sCNT}, {nkb}")
        a.lab(L)
        e(f"buffer_load_dwordx4 v[{dst}:{dst+3}], v{vL16}, {srd(sWS)}, s{sT0} offen sc1")
        if sleep: e(f"s_sleep {sleep}")
        e(f"s_add_u32 s{sT0}, s{sT0}, 1024")
        e(f"s_sub_u32 s{sCNT}, s{sCNT}, 1"); e(f"s_cmp_lg_u32 s{sCNT}, 0"); e(f"s_cbranch_scc1 {L}")
    if args.pf0:
        l2_prefetch(sWQ, 49152, 12)
        e("s_waitcnt vmcnt(0)")
    dma_wqkv(0, args.l0pre)
    fstamp("hissued")
    Lreg = a.new("L_noreg"); Lnl = a.new("L_noleader"); Lnn = a.new("L_nononce")
    e(f"s_cmp_lg_u32 s{sW}, 4"); e(f"s_cbranch_scc1 {Lreg}")
    e(f"s_cmp_lg_u32 s2, 0"); e(f"s_cbranch_scc1 {Lnn}")
    e(f"s_memrealtime s[{sT0}:{sT0+1}]"); e("s_waitcnt lgkmcnt(0)")
    e(f"s_or_b32 s{sT0}, s{sT0}, 1")
    e(f"v_mov_b32 v4, s{sT0}"); e("v_mov_b32 v8, 0")
    e("s_mov_b64 exec, 1"); e(f"buffer_store_dword v4, v8, {srd(sDBG)}, 0 offen sc1"); e("s_mov_b64 exec, -1")
    a.lab(Lnn)
    e(f"s_cmp_lg_u32 s{sI}, 0"); e(f"s_cbranch_scc1 {Lnl}")
    e("v_mov_b32 v4, 0"); e(f"v_lshlrev_b32 v5, 2, v{vLANE}")
    e(f"buffer_store_dword v4, v5, {srd(sWS)}, s{sTEAM} offen sc1")
    a.lab(Lnl)
    if args.touch:
        e(f"v_lshlrev_b32 v9, 21, v{vLANE}"); e(f"s_mov_b64 exec, 0xffff")
        e(f"buffer_load_dword v52, v9, {srd(sWS)}, 0 offen")
        e("s_mov_b64 exec, 1")
        e(f"buffer_load_dword v53, v9, {srd(sOUT)}, 0 offen")
        e("s_mov_b64 exec, -1")
    vPK = 64
    def pack_gather():
        voff_qkv(56, 59); voff_n64(57, 59); voff_n128(58, 59)
        e(f"s_lshr_b32 s{sT0}, s2, 4"); e(f"s_lshl_b32 s{sT0}, s{sT0}, 6")
        e(f"s_and_b32 s{sT0+1}, s2, 15"); e(f"s_mul_i32 s{sT0+1}, s{sT0+1}, 6")
        for k in range(6):
            e(f"s_add_u32 s{sT0+2}, s{sT0+1}, {k}")
            e(f"s_lshr_b32 s{sT0+3}, s{sT0+2}, 5"); e(f"s_lshl_b32 s{sT0+3}, s{sT0+3}, 10")
            e(f"s_and_b32 s{sT0+2}, s{sT0+2}, 31"); e(f"s_mul_i32 s{sT0+2}, s{sT0+2}, {16*3072}")
            e(f"s_add_u32 s{sT0+2}, s{sT0+2}, s{sT0+3}"); e(f"s_add_u32 s{sT0+2}, s{sT0+2}, s{sT0}")
            e(f"buffer_load_dwordx4 {V(vPK+4*k,4)}, v56, {srd(sWQ)}, s{sT0+2} offen")
        e(f"s_lshr_b32 s{sT0}, s2, 5"); e(f"s_lshl_b32 s{sT0}, s{sT0}, 7")
        e(f"s_and_b32 s{sT0+1}, s2, 31"); e(f"s_lshl_b32 s{sT0+2}, s{sT0+1}, 14"); e(f"s_add_u32 s{sT0+2}, s{sT0+2}, s{sT0}")
        e(f"buffer_load_dwordx4 {V(vPK+24,4)}, v57, {srd(sWO)}, s{sT0+2} offen")
        e(f"s_add_u32 s{sT0+2}, s{sT0+2}, 8192")
        e(f"buffer_load_dwordx4 {V(vPK+28,4)}, v57, {srd(sWO)}, s{sT0+2} offen")
        e(f"s_mul_i32 s{sT0+2}, s{sT0+1}, {7*8192}"); e(f"s_add_u32 s{sT0+2}, s{sT0+2}, s{sT0}")
        for k in range(7):
            e(f"buffer_load_dwordx4 {V(vPK+60+4*k,4)}, v57, {srd(sW2)}, s{sT0+2} offen")
            if k < 6: e(f"s_add_u32 s{sT0+2}, s{sT0+2}, 8192")
        e(f"s_mul_i32 s{sT0+1}, s2, 7")
        for k in range(7):
            e(f"s_add_u32 s{sT0+2}, s{sT0+1}, {k}")
            e(f"s_lshr_b32 s{sT0+3}, s{sT0+2}, 7"); e(f"s_lshl_b32 s{sT0+3}, s{sT0+3}, 8")
            e(f"s_and_b32 s{sT0+2}, s{sT0+2}, 127"); e(f"s_mul_i32 s{sT0+2}, s{sT0+2}, {4*3584}")
            e(f"s_add_u32 s{sT0+2}, s{sT0+2}, s{sT0+3}")
            e(f"buffer_load_dwordx4 {V(vPK+32+4*k,4)}, v58, {srd(sW1)}, s{sT0+2} offen")
    if args.packq < 0: pack_gather()
    def pack_store():
        e("s_waitcnt vmcnt(0)")
        for (base, per, r0) in ((PKQ, 6, 0), (PKO, 2, 24), (PK1, 7, 32), (PK2, 7, 60)):
            e(f"s_mul_i32 s{sT0}, s2, {per*1024}"); e(f"s_add_u32 s{sT0}, s{sT0}, {base}")
            for k in range(per):
                if k == 4: e(f"s_add_u32 s{sT0}, s{sT0}, 4096")
                e(f"buffer_store_dwordx4 {V(vPK+r0+4*k,4)}, v{vL16}, {srd(sWS)}, s{sT0} offen offset:{(k%4)*1024} sc1")
    a.lab(Lreg)
    Lplain, Lc1 = a.new("L_plain"), a.new("L_c1")
    def l0_chunk(q, cs):
        Lsw = a.new("L_skipwait")
        e(f"s_cmp_eq_u32 s{sW}, 4"); e(f"s_cbranch_scc1 {Lsw}")
        iss = min(32, args.l0pre + 8*q)
        e(f"s_waitcnt vmcnt({iss - 8*(q+1)})")
        a.lab(Lsw)
        fstamp(f"hc{q}"); e("s_barrier"); fstamp(f"hb{q}")
        if args.l0pre + 8*q < 32: dma_wqkv(args.l0pre + 8*q, 8)
        if cs: colsum_chunk("qkv", 16, q == 0)
        def w4only(fn):
            Lnp = a.new("L_w4o")
            e(f"s_cmp_lg_u32 s{sW}, 4"); e(f"s_cbranch_scc1 {Lnp}")
            fn(); a.lab(Lnp)
        def reg_write():
            nonce_poll(4 + 50)
            e(f"s_add_u32 s{sT0}, s{sXCC}, 1")
            e(f"v_mov_b32 v56, s{sNONCE}"); e(f"v_mov_b32 v57, s{sT0}"); e("v_mov_b32 v58, 0")
            e(f"s_lshl_b32 s{sT0+1}, s{sB}, 4"); e(f"s_add_u32 s{sT0+1}, s{sT0+1}, s{sI}"); e(f"s_lshl_b32 s{sT0+1}, s{sT0+1}, 3")
            e(f"s_add_u32 s{sT0+1}, s{sT0+1}, {REGA}")
            e("s_mov_b64 exec, 1")
            e(f"buffer_store_dwordx2 v[56:57], v58, {srd(sWS)}, s{sT0+1} offen sc1")
            e("s_mov_b64 exec, -1")
        l0_chunk.reg_write = reg_write; l0_chunk.w4only = w4only
        if cs and q == args.packq: w4only(pack_gather)
        if cs and q == args.packst: w4only(pack_store)
        if cs and q == args.regq: w4only(reg_write)
    e(f"s_cmp_eq_u32 s{sW}, 7"); e(f"s_cbranch_scc1 {Lplain}")
    colsum_init("qkv"); pass
    for q in range(4): l0_chunk(q, True)
    colsum_fin("qkv"); pass
    e(f"s_branch {Lc1}")
    a.lab(Lplain)
    for q in range(4): l0_chunk(q, False)
    a.lab(Lc1)
    e("s_barrier")
    if STOP == 1:
        e("s_barrier"); e("s_branch L_end")
    if args.kvh: kv_fetch_helper()
    Lnr = a.new("L_noreg2")
    e(f"s_cmp_lg_u32 s{sW}, 4"); e(f"s_cbranch_scc1 {Lnr}")
    if args.packst > 3: pack_store()
    if args.regq > 3: l0_chunk.reg_write()
    e(f"s_mov_b32 s{sTGT}, 1")
    e(f"v_lshlrev_b32 v4, 3, v{vLANE}")
    for r in range(4):
        e(f"s_mov_b32 s{sT0}, {REGA + r*512}")
        poll64(4, sT0, sTGT, 6, sleep=16)
    e(f"v_and_b32 v4, 15, v{vLANE}"); e(f"v_lshlrev_b32 v4, 3, v4")
    e(f"s_lshl_b32 s{sT0}, s{sB}, 7"); e(f"s_add_u32 s{sT0}, s{sT0}, {REGA}")
    e(f"v_mov_b32 v7, 0")
    poll64(4, sT0, sTGT, 6, sleep=2)
    e(f"s_add_u32 s{sT0}, s{sXCC}, 1")
    e(f"v_cmp_ne_u32 vcc, s{sT0}, v7")
    e(f"s_cmp_eq_u64 vcc, 0"); e(f"s_cselect_b32 s{sMODE}, 1, 0")
    if args.slow: e(f"s_mov_b32 s{sMODE}, 0")
    e(f"v_mov_b32 v5, s{sMODE}"); e(f"v_mov_b32 v4, {L_MODE}")
    e("ds_write_b32 v4, v5"); e("s_waitcnt lgkmcnt(0)")
    a.lab(Lnr)
    e("s_barrier")
    if args.hpre: helper_prefetch()
    e("s_branch L_p2")
    a.lab("L_p1_helper_l1")
    e("s_waitcnt vmcnt(8)"); e("s_barrier")
    fstamp("hb0")
    Lw4, Lw4j = a.new("L_w4pf"), a.new("L_w4j")
    if args.pfa:
        e(f"s_cmp_eq_u32 s{sW}, 4"); e(f"s_cbranch_scc1 {Lw4}")
    dma_wqkv_packed(16, 8)
    e("s_waitcnt vmcnt(8)"); fstamp("hc1"); e("s_barrier")
    dma_wqkv_packed(24, 8)
    e("s_waitcnt vmcnt(8)"); fstamp("hc2"); e("s_barrier")
    e("s_waitcnt vmcnt(0)"); fstamp("hc3"); e("s_barrier")
    if args.pfa:
        e(f"s_branch {Lw4j}")
        a.lab(Lw4)
        l2_prefetch1(16384, 16, PKO); e("s_barrier")
        l2_prefetch1(57344, 20, PK1); e("s_barrier")
        l2_prefetch1(57344, 18, PK1 + 20*1024); e("s_barrier")
        l2_prefetch1(57344, 18, PK1 + 38*1024)
        a.lab(Lw4j)
    e("s_barrier")
    if args.kvh: kv_fetch_helper()
    e("s_barrier")

    a.lab("L_p2")
    if args.prio and args.prio2 >= 0: e(f"s_setprio {args.prio2}")
    fstamp("p2start")
    vQ = 4; vK = 8; vV = 44; vS = 60; vP = 108; vO = 116; vCb = 132; vMB = 148; vM = 156
    vAK, vAV, vAQ, vWO, vW1 = 158, 159, 160, 161, 162
    e(f"v_mov_b32 v{vAQ}, {L_MODE}"); e(f"ds_read_b32 v{vM}, v{vAQ}")
    e(f"s_and_b32 s{sT0}, s{sW}, 3"); e(f"s_lshr_b32 s{sT0+1}, s{sW}, 2")
    e(f"s_lshl_b32 s{sN}, s{sB}, 2"); e(f"s_add_u32 s{sN}, s{sN}, s{sT0}"); e(f"s_add_u32 s{sN}, s{sN}, 1"); e(f"s_min_u32 s{sN}, s{sN}, 9")
    e(f"s_lshl_b32 s{sT0+2}, s{sT0}, 11"); e(f"s_lshl_b32 s{sT0+3}, s{sT0+1}, 10"); e(f"s_add_u32 s{sT0+4}, s{sT0+2}, s{sT0+3}")
    e(f"v_add_u32 v{vAK}, s{sT0+4}, v{vL16}")
    e(f"s_lshl_b32 s{sT0+3}, s{sT0+1}, 8"); e(f"s_add_u32 s{sT0+4}, s{sT0+2}, s{sT0+3}")
    e(f"v_add_u32 v{vAV}, s{sT0+4}, v{vL16}")
    e(f"ds_read_b128 {V(vQ,4)}, v{vAK} offset:{L_QST}")
    for j in range(9): e(f"ds_read_b128 {V(vK+4*j,4)}, v{vAK} offset:{L_KST + (8-j)*2048}")
    e(f"v_add_u32 v{vAQ}, {L_MD}, v{vL16}")
    for g in range(2): e(f"ds_read_b128 {V(vMB+4*g,4)}, v{vAQ} offset:{8192+g*1024}")
    e(f"s_and_b32 s{sT0+5}, s{sI}, 7"); e(f"s_lshl_b32 s{sT0+5}, s{sT0+5}, 16")
    e(f"s_lshl_b32 s{sT0+6}, s{sW}, {14 if args.w1late == 2 else 13}"); e(f"s_add_u32 s{sT0+5}, s{sT0+5}, s{sT0+6}"); e(f"s_add_u32 s{sT0+5}, s{sT0+5}, {PKO}")
    e(f"s_add_u32 m0, s{sT0+6}, {L_WO}")
    e(f"s_min_u32 s{sW1S}, s{sI}, 13"); e(f"s_lshl_b32 s{sW1S}, s{sW1S}, 17"); e(f"s_lshl_b32 s{sT0+6}, s{sW}, 14")
    e(f"s_add_u32 s{sW1S}, s{sW1S}, s{sT0+6}"); e(f"s_add_u32 s{sW1S}, s{sW1S}, {PK1}")
    def wo_dma():
        e(f"buffer_load_dwordx4 v{vL16}, {srd(sWS)}, s{sT0+5} offen{PKF} lds")
        e(f"s_add_u32 m0, m0, 1024"); e(f"s_add_u32 s{sT0+5}, s{sT0+5}, 1024")
    def w1_load(k):
        if k and k % 4 == 0: e(f"s_add_u32 s{sW1S}, s{sW1S}, 4096")
        e(f"buffer_load_dwordx4 {V(vSTG+4*k,4)}, v{vL16}, {srd(sWS)}, s{sW1S} offen offset:{(k%4)*1024}{PKF}")
    for r in range(16): e(f"v_mov_b32 v{vV+r}, 0x3f803f80")
    e("s_waitcnt lgkmcnt(0)")
    e(f"v_readfirstlane_b32 s{sMODE}, v{vM}")
    def Sb(j): return vS + 16*(j % 3)
    def smfma(j, c): e(f"{MF} {V(Sb(j),16)}, {V(vK+4*j,4)}, {V(vQ,4)}, {c}")
    def vread(j):
        Vb = vV + 8*(j % 2)
        e(f"s_mov_b64 exec, {sp(sM16)}")
        e(f"ds_read_b128 {V(Vb,4)}, v{vAV} offset:{L_VST + (8-j)*2048}")
        e(f"ds_read_b128 {V(Vb+4,4)}, v{vAV} offset:{L_VST + (8-j)*2048 + 1024}")
        e("s_mov_b64 exec, -1")
    def mf_read(j):
        for g in range(4): e(f"ds_read_b128 {V(Sb(j)+4*g,4)}, v{vAQ} offset:{4096+g*1024}")
    def maxes(j):
        for k in range(8): e(f"v_max3_f32 v{vM}, v{Sb(j)+2*k}, v{Sb(j)+2*k+1}, v{vM}")
    def finish_max():
        e(f"v_mov_b32 v{vM+1}, v{vM}"); a.nop(2)
        e(f"v_permlane32_swap_b32 v{vM+1}, v{vM}"); a.nop(1)
        e(f"v_max_f32 v{vM}, v{vM}, v{vM+1}")
        e(f"v_sub_f32 v{vM}, 0, v{vM}")
        for r in range(16): e(f"v_mov_b32 v{vCb+r}, v{vM}")
        a.nop(2)
    def tile2(j, first):
        S = Sb(j); Vb = vV + 8*(j % 2)
        for r in range(8): e(f"v_exp_f32 v{S+r}, v{S+r}")
        for d in range(4): e(f"v_cvt_pk_bf16_f32 v{vP+d}, v{S+2*d}, v{S+2*d+1}")
        if j == 0:
            for d in range(4): e(f"v_and_b32 v{vP+d}, v{vP+d}, v{vMB+d}")
        if j == 8:
            for d in range(4): e(f"v_bfi_b32 v{vP+d}, v{vMB+d}, 0, v{vP+d}")
        for r in range(8, 16): e(f"v_exp_f32 v{S+r}, v{S+r}")
    def tile2b(j, first):
        S = Sb(j); Vb = vV + 8*(j % 2)
        e(f"{MF} {V(vO,16)}, {V(Vb,4)}, {V(vP,4)}, {'0' if first else V(vO,16)}")
        for d in range(4, 8): e(f"v_cvt_pk_bf16_f32 v{vP+d}, v{S+2*d}, v{S+2*d+1}")
        if j == 0:
            for d in range(4, 8): e(f"v_and_b32 v{vP+d}, v{vP+d}, v{vMB+d}")
        if j == 8:
            for d in range(4, 8): e(f"v_bfi_b32 v{vP+d}, v{vMB+d}, 0, v{vP+d}")
        a.nop(2)
        e(f"{MF} {V(vO,16)}, {V(Vb+4,4)}, {V(vP+4,4)}, {V(vO,16)}")

    Lgen, Lfin = a.new("L_att_gen"), a.new("L_att_fin")
    bg = [("wo", k) for k in range(16 if args.w1late == 2 else 8)] + [("w1", k) for k in range(16)]
    if args.hpre == 2: bg = [("w1", k) for k in range(16)]
    if args.nobg == 1: bg = []
    def bg_issue(n, guard=False):
        for _ in range(n):
            if bg:
                kind, k = bg.pop(0)
                Ls = None
                only_c = (args.w1late == 1 and kind == "w1") or args.w1late == 2
                if guard or only_c:
                    Ls = a.new("L_bgs")
                    if guard: e(f"s_cbranch_vccz {Ls}")
                    if only_c: e(f"s_bitcmp1_b32 s{sW}, 2"); e(f"s_cbranch_scc1 {Ls}")
                wo_dma() if kind == "wo" else w1_load(k)
                if Ls: a.lab(Ls)
    def exact_path(nmax):
        for g in range(4): e(f"ds_read_b128 {V(vS+4*g,4)}, v{vAQ} offset:{g*1024}")
        e(f"v_mov_b32 v{vM}, {NEG:#x}")
        e("s_waitcnt lgkmcnt(0)")
        Lp1 = a.new("L_p1done")
        for j in range(nmax):
            if j == 8:
                mf_read(8); e("s_waitcnt lgkmcnt(0)")
            smfma(j, V(Sb(j), 16) if j in (0, 8) else "0")
            a.nop(14)
            maxes(j)
            if j < nmax - 1:
                e(f"s_cmp_le_u32 s{sN}, {j+1}"); e(f"s_cbranch_scc1 {Lp1}")
        a.lab(Lp1)
        finish_max()
        Lp2 = a.new("L_p2done")
        for j in range(nmax):
            smfma(j, V(vCb,16)); vread(j)
            a.nop(12)
            tile2(j, j == 0)
            e("s_waitcnt lgkmcnt(0)")
            tile2b(j, j == 0)
            if j < nmax - 1:
                e(f"s_cmp_le_u32 s{sN}, {j+1}"); e(f"s_cbranch_scc1 {Lp2}")
        a.lab(Lp2)
    if args.nomax:
        Lup, Lgo, Lfd = a.new("L_bgup"), a.new("L_fastgo"), a.new("L_fastdone")
        e(f"s_cmp_eq_u32 s{sN}, 9"); e("s_cselect_b64 vcc, -1, 0")
        e(f"s_cbranch_vccnz {Lgo}")
        saved = list(bg)
        bg_issue(len(bg))
        bg.extend(saved)
        a.lab(Lgo)
        if args.p2prio:
            Lpr = a.new("L_prio")
            e(f"s_cmp_lt_u32 s{sW}, 4"); e(f"s_cbranch_scc1 {Lpr}")
            e("s_setprio 1")
            a.lab(Lpr)
        smfma(0, "0"); smfma(1, "0"); vread(0)
        bg_issue(3, True)
        a.nop(10)
        for j in range(9):
            if j + 2 <= 8: smfma(j + 2, "0")
            if j + 1 <= 8: vread(j + 1)
            bg_issue(args.bg2 + (1 if args.w1late == 2 else 0), True)
            tile2(j, j == 0)
            if j < 8: bg_issue(1, True)
            e(f"s_waitcnt lgkmcnt({2 if j < 8 else 0})")
            tile2b(j, j == 0)
            if args.p2prio and j == args.p2prio - 1: e("s_setprio 0")
            if j < 8:
                e(f"s_cmp_le_u32 s{sN}, {j+1}"); e(f"s_cbranch_scc1 {Lfd}")
        bg_issue(len(bg), True)
        a.lab(Lfd)
        if args.p2prio: e("s_setprio 0")
        a.nop(14)
        e(f"v_max3_f32 v{vM}, |v{vO}|, |v{vO+1}|, |v{vO+2}|")
        e(f"v_max3_f32 v{vM}, |v{vO+3}|, |v{vO+4}|, v{vM}")
        e(f"v_max3_f32 v{vM}, |v{vO+5}|, |v{vO+6}|, v{vM}")
        e(f"v_max_f32 v{vM}, |v{vO+7}|, v{vM}")
        e(f"s_mov_b32 s{sT0}, {f2u(2.0**-40):#x}"); e(f"s_mov_b32 s{sT0+1}, {f2u(2.0**40):#x}"); e(f"s_mov_b32 s{sT0+2}, {f2u(2.0**120):#x}")
        e(f"v_cmp_le_f32 vcc, s{sT0}, v{vO+8}")
        e(f"v_cmp_ge_f32 s[{sT0+10}:{sT0+11}], s{sT0+1}, v{vO+8}")
        e(f"s_and_b64 vcc, vcc, s[{sT0+10}:{sT0+11}]")
        e(f"v_cmp_ge_f32 s[{sT0+10}:{sT0+11}], s{sT0+2}, v{vM}")
        e(f"s_and_b64 vcc, vcc, s[{sT0+10}:{sT0+11}]")
        if args.forcefb: e("s_mov_b64 vcc, 0")
        e(f"s_cmp_eq_u64 vcc, -1"); e(f"s_cbranch_scc1 {Lfin}")
        e("s_waitcnt lgkmcnt(0)")
        exact_path(9)
    else:
        e(f"s_cmp_lt_u32 s{sN}, 9"); e(f"s_cbranch_scc1 {Lgen}")
        for g in range(4): e(f"ds_read_b128 {V(vS+4*g,4)}, v{vAQ} offset:{g*1024}")
        e(f"v_mov_b32 v{vM}, {NEG:#x}")
        e("s_waitcnt lgkmcnt(0)")
        saved = list(bg)
        for j in range(11):
            if j <= 8:
                if j == 8: e("s_waitcnt lgkmcnt(0)")
                smfma(j, V(Sb(j), 16) if j in (0, 8) else "0")
            bg_issue(args.bg1)
            if j == 2: a.nop(10)
            if j >= 2: maxes(j - 2)
            if j == 7: mf_read(8)
        finish_max()
        smfma(0, V(vCb,16)); smfma(1, V(vCb,16)); vread(0)
        a.nop(10)
        for j in range(9):
            if j + 2 <= 8: smfma(j + 2, V(vCb,16))
            if j + 1 <= 8: vread(j + 1)
            bg_issue(args.bg2)
            tile2(j, j == 0)
            e(f"s_waitcnt lgkmcnt({2 if j < 8 else 0})")
            tile2b(j, j == 0)
        bg_issue(len(bg))
        e(f"s_branch {Lfin}")
        a.lab(Lgen)
        bg.extend(saved); bg_issue(len(bg))
        exact_path(8)
    a.lab(Lfin)
    a.nop(14)
    e(f"v_rcp_f32 v{vM}, v{vO+8}"); a.nop(1)
    for r in range(8): e(f"v_mul_f32 v{vO+r}, v{vO+r}, v{vM}")
    for d in range(4): e(f"v_cvt_pk_bf16_f32 v{vP+d}, v{vO+2*d}, v{vO+2*d+1}")
    e(f"s_and_b32 s{sT0}, s{sW}, 3"); e(f"s_lshr_b32 s{sT0+1}, s{sW}, 2")
    e(f"s_lshl_b32 s{sT0+2}, s{sB}, 2"); e(f"s_add_u32 s{sT0+2}, s{sT0+2}, s{sT0}"); e(f"s_lshl_b32 s{sT0+2}, s{sT0+2}, 15")
    e(f"s_lshl_b32 s{sT0+3}, s{sI}, 11"); e(f"s_add_u32 s{sT0+2}, s{sT0+2}, s{sT0+3}")
    e(f"s_lshl_b32 s{sT0+3}, s{sT0+1}, 10"); e(f"s_add_u32 s{sT0+2}, s{sT0+2}, s{sT0+3}")
    e(f"s_add_u32 s{sT0+2}, s{sT0+2}, {OF}")
    moded(lambda fl: e(f"buffer_store_dwordx4 {V(vP,4)}, v{vL16}, {srd(sWS)}, s{sT0+2} offen{fl}"))
    fstamp("p2pre")
    e("s_waitcnt vmcnt(0)")
    e("s_barrier")
    fstamp("p2end")
    if args.prio and args.prio2 >= 0: e("s_setprio 0")
    e(f"s_cmp_ge_u32 s{sW}, 4"); e("s_cbranch_scc1 L_p3_helper")
    if args.prio: e(f"s_setprio {args.prio}")
    team_signal(1, 4)
    def w1_to_lds():
        e(f"s_lshl_b32 s{sT0}, s{sW}, 14"); e(f"v_add_u32 v7, s{sT0}, v{vL16}")
        for k in range(16): e(f"ds_write_b128 v7, {V(vSTG+4*k,4)} offset:{k*1024}")
    if STOP == 2:
        e("s_waitcnt vmcnt(0) lgkmcnt(0)"); e("s_branch L_end")

    def n64_bases(vmine, vother, lds_base_sreg):
        tr_base_common(vmine, vother, 6)
        e(f"v_bfe_u32 v6, v{vmine}, 1, 1")
        e(f"v_lshl_add_u32 v{vother}, v{vmine}, 7, v{vother}")
        e(f"s_lshr_b32 s{sT0+3}, s{sW}, 1")
        e(f"v_xor_b32 v6, s{sT0+3}, v6")
        e(f"v_lshl_add_u32 v{vmine}, v6, 6, v{vother}")
        e(f"v_xor_b32 v6, 1, v6")
        e(f"v_lshl_add_u32 v{vother}, v6, 6, v{vother}")
        e(f"v_add_u32 v{vmine}, s{lds_base_sreg}, v{vmine}")
        e(f"v_add_u32 v{vother}, s{lds_base_sreg}, v{vother}")
    def unpack_res(dst, bias):
        for d in range(8):
            e(f"v_lshlrev_b32 v{dst+2*d}, 16, v{vRES+d}")
            e(f"v_and_b32 v{dst+2*d+1}, 0xffff0000, v{vRES+d}")
        if bias is not None:
            for p in range(8): e(f"v_pk_add_f32 {V(dst+2*p,2)}, {V(dst+2*p,2)}, {V(bias+2*p,2)}")

    def exchange_and_epilogue(is_p5):
        accM, accO = 16, 32
        nm = "p5" if is_p5 else "p3"
        a.nop(12)
        e(f"s_lshl_b32 s{sT0}, s{sW}, 12"); e(f"s_add_u32 s{sT0}, s{sT0}, {L_EX}")
        e(f"v_add_u32 v6, s{sT0}, v{vL16}")
        for q in range(4): e(f"ds_write_b128 v6, {V(accO+4*q,4)} offset:{q*1024}")
        tile_ids()
        e(f"s_lshl_b32 s{sT0}, s{sT0+4}, 15")
        e(f"s_and_b32 s{sT0+1}, s{sI}, 7"); e(f"s_lshl_b32 s{sT0+2}, s{sT0+1}, 12"); e(f"s_add_u32 s{sT0}, s{sT0}, s{sT0+2}")
        e(f"s_lshl_b32 s{sT0+2}, s{sT0+3}, 11"); e(f"s_add_u32 s{sT0}, s{sT0}, s{sT0+2}")
        e(f"s_add_u32 s{sT0}, s{sT0}, {XF if is_p5 else X2F}")
        e(f"s_lshl_b32 s{sT0+5}, s{sT0+4}, 12")
        e(f"s_lshl_b32 s{sT0+2}, s{sT0+1}, 9"); e(f"s_add_u32 s{sT0+5}, s{sT0+5}, s{sT0+2}")
        e(f"s_lshl_b32 s{sT0+2}, s{sT0+3}, 8"); e(f"s_add_u32 s{sT0+5}, s{sT0+5}, s{sT0+2}")
        e(f"s_add_u32 s{sT0+5}, s{sT0+5}, {ST1 if is_p5 else ST2}")
        e(f"s_xor_b32 s{sT0+6}, s{sW}, 2"); e(f"s_lshl_b32 s{sT0+6}, s{sT0+6}, 12"); e(f"s_add_u32 s{sT0+6}, s{sT0+6}, {L_EX}")
        e(f"v_add_u32 v7, s{sT0+6}, v{vL16}")
        e(f"v_and_b32 v10, 31, v{vLANE}"); e(f"v_lshlrev_b32 v10, 3, v10")
        e("s_waitcnt lgkmcnt(0)")
        e("s_barrier")
        fstamp(nm + "x")
        for q in range(4): e(f"ds_read_b128 {V(accO+4*q,4)}, v7 offset:{q*1024}")
        for q in range(4):
            e(f"s_waitcnt lgkmcnt({3-q})")
            e(f"v_pk_add_f32 {V(accM+4*q,2)}, {V(accM+4*q,2)}, {V(accO+4*q,2)}")
            e(f"v_pk_add_f32 {V(accM+4*q+2,2)}, {V(accM+4*q+2,2)}, {V(accO+4*q+2,2)}")
        for d in range(8): e(f"v_cvt_pk_bf16_f32 v{vRES+d}, v{accM+2*d}, v{accM+2*d+1}")
        def st_data(fl):
            e(f"buffer_store_dwordx4 {V(vRES,4)}, v{vL16}, {srd(sWS)}, s{sT0} offen{fl}")
            e(f"buffer_store_dwordx4 {V(vRES+4,4)}, v{vL16}, {srd(sWS)}, s{sT0} offen offset:1024{fl}")
        def stats():
            e(f"v_pk_mul_f32 {V(32,2)}, {V(accM,2)}, {V(accM,2)}")
            e(f"v_pk_add_f32 {V(34,2)}, {V(accM,2)}, {V(accM+2,2)}")
            e(f"v_pk_fma_f32 {V(32,2)}, {V(accM+2,2)}, {V(accM+2,2)}, {V(32,2)}")
            for p in range(2, 8):
                e(f"v_pk_add_f32 {V(34,2)}, {V(34,2)}, {V(accM+2*p,2)}")
                e(f"v_pk_fma_f32 {V(32,2)}, {V(accM+2*p,2)}, {V(accM+2*p,2)}, {V(32,2)}")
            e("v_add_f32 v8, v34, v35"); e("v_add_f32 v9, v32, v33")
            e("v_mov_b32 v12, v8"); e("v_mov_b32 v13, v9"); a.nop(2)
            e("v_permlane32_swap_b32 v12, v8"); e("v_permlane32_swap_b32 v13, v9"); a.nop(1)
            e(f"v_pk_add_f32 {V(8,2)}, {V(8,2)}, {V(12,2)}")
        def st_stats(fl):
            e(f"s_mov_b64 exec, {sp(sM32)}")
            e(f"buffer_store_dwordx2 v[8:9], v10, {srd(sWS)}, s{sT0+5} offen{fl}")
            e("s_mov_b64 exec, -1")
        def normal(delta):
            moded(st_data); stats(); moded(st_stats)
            fstamp(nm + "pre")
            e("s_waitcnt vmcnt(0)")
            fstamp(nm + "drain")
            team_signal(delta, 4)
        if is_p5:
            Lf, Lj = a.new("L_final"), a.new("L_fj")
            e(f"s_cmp_eq_u32 s{sL}, 1"); e(f"s_cbranch_scc1 {Lf}")
            normal(4)
            e(f"s_branch {Lj}")
            a.lab(Lf)
            e(f"v_and_b32 v10, 31, v{vLANE}"); e(f"v_lshlrev_b32 v10, 10, v10")
            e(f"v_lshrrev_b32 v11, 5, v{vLANE}"); e(f"v_lshl_add_u32 v10, v11, 3, v10")
            e(f"s_lshl_b32 s{sT0}, s{sT0+4}, 15")
            e(f"s_lshl_b32 s{sT0+2}, s{sT0+1}, 7"); e(f"s_add_u32 s{sT0}, s{sT0}, s{sT0+2}")
            e(f"s_lshl_b32 s{sT0+2}, s{sT0+3}, 6"); e(f"s_add_u32 s{sT0}, s{sT0}, s{sT0+2}")
            for g in range(4):
                e(f"buffer_store_dwordx2 {V(vRES+2*g,2)}, v10, {srd(sOUT)}, s{sT0} offen offset:{g*16}")
            e("s_branch L_end")
            a.lab(Lj)
        else:
            normal(2)

    w1_to_lds()
    unpack_res(48, None)
    e("s_waitcnt lgkmcnt(0)")
    team_wait(1, 4)
    fstamp("p3poll")
    tile_ids()
    e(f"s_lshl_b32 s{sT0+2}, s{sT0+3}, 4")
    x_setup(OF, 32, sT0+2, sT0+4)
    for k in range(XA): x_load(k, 64 + 4*k)
    e(f"s_lshl_b32 s{sT0+8}, s{sT0+3}, 15"); e(f"s_add_u32 s{sT0+8}, s{sT0+8}, {L_WO}")
    n64_bases(4, 5, sT0+8)
    vWf = 128
    def wread3(s):
        dst = vWf + 8*(s % 3); off = s*2048
        e(f"ds_read_b64_tr_b16 {V(dst,2)}, v4 offset:{off}"); e(f"ds_read_b64_tr_b16 {V(dst+2,2)}, v4 offset:{off+1024}")
        e(f"ds_read_b64_tr_b16 {V(dst+4,2)}, v5 offset:{off}"); e(f"ds_read_b64_tr_b16 {V(dst+6,2)}, v5 offset:{off+1024}")
    wread3(0); wread3(1)
    for s in range(16):
        e(f"s_waitcnt vmcnt({min(XA, 16-s)-1})")
        if s == 0: fstamp("p3x0")
        if s + XA < 16: x_load(s + XA, 64 + 4*(s + XA))
        if s + 2 < 16: wread3(s + 2)
        e(f"s_waitcnt lgkmcnt({4*min(2, 15-s)})")
        w = vWf + 8*(s % 3); x = 64 + 4*s
        e(f"{MF} v[16:31], {V(w,4)}, {V(x,4)}, {'v[48:63]' if s == 0 else 'v[16:31]'}")
        e(f"{MF} v[32:47], {V(w+4,4)}, {V(x,4)}, {'0' if s == 0 else 'v[32:47]'}")
    fstamp("p3main")
    exchange_and_epilogue(False)
    if STOP == 3:
        e("s_waitcnt vmcnt(0) lgkmcnt(0)"); e("s_branch L_end")
    e("s_branch L_p4_compute")

    a.lab("L_p3_helper")
    if STOP == 2: e("s_branch L_end")
    if args.w1late:
        for k in range(16): w1_load(k)
    if args.pfb: l2_prefetch(sWS, 57344, 14, dst=48, base=PK2)
    e("s_barrier")
    if STOP == 3: e("s_branch L_end")
    if args.w1late: e("s_waitcnt vmcnt(0)")
    e(f"s_lshl_b32 s{sT0}, s{sW}, 14"); e(f"v_add_u32 v6, s{sT0}, v{vL16}")
    for k in range(16): e(f"ds_write_b128 v6, {V(vSTG+4*k,4)} offset:{k*1024}")
    e(f"s_sub_u32 s{sT0}, s{sW}, 4")
    e(f"s_lshr_b32 s{sT0+1}, s{sT0}, 1"); e(f"s_and_b32 s{sT0+2}, s{sT0}, 1")
    e(f"s_mul_i32 s{sW1S}, s{sT0+1}, {112*1024}"); e(f"s_lshl_b32 s{sT0+4}, s{sT0+2}, 13"); e(f"s_add_u32 s{sW1S}, s{sW1S}, s{sT0+4}")
    e(f"s_and_b32 s{sT0+4}, s{sI}, 7"); e(f"s_mul_i32 s{sT0+4}, s{sT0+4}, {224*1024}"); e(f"s_add_u32 s{sW1S}, s{sW1S}, s{sT0+4}")
    e(f"s_add_u32 s{sW1S}, s{sW1S}, {PK2}")
    e("s_waitcnt lgkmcnt(0)")
    e("s_barrier")
    def w2_load(q, k, sleep=0):
        e(f"buffer_load_dwordx4 {V(16+32*q+4*k,4)}, v{vL16}, {srd(sWS)}, s{sW1S} offen offset:{(k%4)*1024}{PKF}")
        if k == 3: e(f"s_add_u32 s{sW1S}, s{sW1S}, 4096")
        if k == 7: e(f"s_add_u32 s{sW1S}, s{sW1S}, {16*1024 - 4096}")
        if sleep: e(f"s_sleep {sleep}")
    Lcs, Lw2d = a.new("L_cs4"), a.new("L_w2done")
    e(f"s_cmp_lg_u32 s{sL}, 0"); e(f"s_cbranch_scc1 {Lcs}")
    colsum_init("n128"); pass
    for q in range(4): colsum_chunk("n128", 208, q == 0, extra=lambda k, q=q: w2_load(q, k, args.l0w2s))
    colsum_fin("n128"); pass
    for q in range(4, args.w2pre):
        for k in range(8): w2_load(q, k, args.w2sleep)
    e(f"s_branch {Lw2d}")
    a.lab(Lcs)
    W2S = [int(x) for x in args.w2s.split(",")] if args.w2s else [args.w2sleep]*7
    for q in range(args.w2pre):
        for k in range(8): w2_load(q, k, W2S[q])
    a.lab(Lw2d)
    if args.pfq == 1:
        Lnq = a.new("L_nopfq")
        e(f"s_cmp_eq_u32 s{sL}, 1"); e(f"s_cbranch_scc1 {Lnq}")
        l2_prefetch(sWS, 49152, 12, dst=244, base=PKQ)
        a.lab(Lnq)
    if args.c4lds:
        Lc4 = a.new("L_c4w")
        e(f"s_lshl_b32 s{sT0+1}, s{sL}, 2"); e(f"s_add_u32 s{sT0+1}, s{sT0+1}, 4")
        e(f"v_mov_b32 v4, {L_C4C}")
        a.lab(Lc4)
        e("ds_read_b32 v5, v4"); e("s_waitcnt lgkmcnt(0)")
        e(f"v_readfirstlane_b32 s{sT0}, v5")
        e(f"s_cmp_lt_u32 s{sT0}, s{sT0+1}"); e("s_sleep 1"); e(f"s_cbranch_scc1 {Lc4}")
    else:
        e("s_barrier")
    if STOP == 4: e("s_branch L_end")
    if args.w2late == 0:
        for q in range(args.w2pre, 7):
            for k in range(8): w2_load(q, k)
    e(f"s_sub_u32 s{sT0}, s{sW}, 4"); e(f"s_lshl_b32 s{sT0}, s{sT0}, 13"); e(f"v_add_u32 v6, s{sT0}, v{vL16}")
    e("v_add_u32 v7, 65536, v6")
    issued = {"n": 7 if args.w2late == 0 else args.w2pre}
    def ring_write(q):
        y = 8*(issued["n"] - 1 - q)
        extra = 12 if ((args.pfq == 1 and q < args.w2pre) or (args.pfq == 2 and q >= PF)) else 0
        if extra:
            La, Lb = a.new("L_wa"), a.new("L_wb")
            e(f"s_cmp_eq_u32 s{sL}, 1"); e(f"s_cbranch_scc1 {La}")
            e(f"s_waitcnt vmcnt({min(63, y + extra)})"); e(f"s_branch {Lb}")
            a.lab(La); e(f"s_waitcnt vmcnt({y})"); a.lab(Lb)
        else:
            e(f"s_waitcnt vmcnt({y})")
        slot = (q % 4) * 32768
        for k in range(8):
            if args.p5now: break
            e(f"ds_write_b128 v{6 if slot < 65536 else 7}, {V(16+32*q+4*k,4)} offset:{slot % 65536 + k*1024}")
    PF = args.ringpre
    for q in range(PF): ring_write(q)
    e("s_waitcnt lgkmcnt(0)")
    for q in range(7):
        e("s_barrier")
        if q == 0 and args.pfq == 2:
            Lnq = a.new("L_nopfq")
            e(f"s_cmp_eq_u32 s{sL}, 1"); e(f"s_cbranch_scc1 {Lnq}")
            l2_prefetch(sWS, 49152, 12, dst=244, base=PKQ)
            a.lab(Lnq)
        if q == 0 and args.w2late == 1:
            for qq in range(args.w2pre, 7):
                for k in range(8): w2_load(qq, k)
            issued["n"] = 7
        nxt = [c for c in range(PF, 7) if (c == q + 1 and c < 4) or (c >= 4 and c == q + 2)]
        for c in nxt: ring_write(c)
        if nxt: e("s_waitcnt lgkmcnt(0)")
    e("s_barrier")
    e(f"s_cmp_eq_u32 s{sL}, 1"); e("s_cbranch_scc1 L_end")
    if STOP == 5: e("s_branch L_end")
    dma_wqkv_packed(0, 16)
    e(f"s_mov_b32 s{sL}, 1"); e(f"s_mov_b32 s{sKVO}, {LSTRIDE}")
    e("s_branch L_p1_helper_l1")

    a.lab("L_p4_compute")
    Lidle, Lp4e = a.new("L_p4idle"), a.new("L_p4end")
    e(f"s_cmp_ge_u32 s{sI}, 14"); e(f"s_cbranch_scc1 {Lidle}")
    team_wait(2, 4)
    fstamp("p4poll")
    vX = 80; vAcc = 16; vWf = 208
    e(f"s_lshl_b32 s{sT0+4}, s{sB}, 2"); e(f"s_add_u32 s{sT0+4}, s{sT0+4}, s{sW}")
    x_setup(X2F, 32, None, sT0+4)
    for k in range(XA): x_load(k, vX + 4*k)
    load_stats(ST2, 232, 4, sT0+4)
    tr_base_common(4, 5, 6)
    e("v_lshl_add_u32 v5, v4, 8, v5"); e("v_and_b32 v8, 3, v4")
    for ft in range(4):
        e(f"v_xor_b32 v9, {ft}, v8"); e(f"v_lshl_add_u32 v{10+ft}, v9, 6, v5")
    vA, vB = 4, 6
    e(f"v_lshrrev_b32 v8, 5, v{vLANE}"); e("v_lshlrev_b32 v8, 4, v8"); e(f"v_add_u32 v8, {L_CS4}, v8")
    e(f"s_mul_i32 s{sT0}, s{sT0+4}, {112*1024}")
    e(f"s_lshl_b32 s{sT0+1}, s{sI}, 13"); e(f"s_add_u32 s{sT0}, s{sT0}, s{sT0+1}"); e(f"s_add_u32 s{sT0}, s{sT0}, {HF}")
    e("s_barrier")
    class Lg:
        n = 0
    def lds(instr):
        e(instr); Lg.n += 1; return Lg.n
    def lwait(k):
        e(f"s_waitcnt lgkmcnt({min(15, Lg.n - k)})")
    NS = 6; PRE = NS - 1
    seq = [(s, ft) for s in range(32) for ft in range(3)] + [(s, 3) for s in range(32)]
    rid = {}
    def slot4(n): return vWf + 4*(n % NS)
    bumped = set()
    def issue4(n):
        s, ft = seq[n]
        if s >= 16 and ft not in bumped:
            e(f"v_add_u32 v{10+ft}, 65536, v{10+ft}"); bumped.add(ft)
        off = (s % 16) * 4096; dst = slot4(n)
        lds(f"ds_read_b64_tr_b16 {V(dst,2)}, v{10+ft} offset:{off}")
        rid[n] = lds(f"ds_read_b64_tr_b16 {V(dst+2,2)}, v{10+ft} offset:{off+2048}")
    gid = {}
    def grp_reads(G):
        ft, g = divmod(G, 4); b = 232 + 8*(G % 2)
        lds(f"ds_read_b128 {V(b,4)}, v8 offset:{ft*128 + g*32}")
        gid[G] = lds(f"ds_read_b128 {V(b+4,4)}, v8 offset:{512 + ft*128 + g*32}")
    def store_tile(ft):
        acc = vAcc + 16*ft
        if ft == 2: e(f"s_add_u32 s{sT0}, s{sT0}, 4096")
        def st4(fl):
            e(f"buffer_store_dwordx4 {V(acc,4)}, v{vL16}, {srd(sWS)}, s{sT0} offen offset:{(ft%2)*2048}{fl}")
            e(f"buffer_store_dwordx4 {V(acc+4,4)}, v{vL16}, {srd(sWS)}, s{sT0} offen offset:{(ft%2)*2048+1024}{fl}")
        moded(st4)
    items = []
    for G in range(12):
        ft, g = divmod(G, 4); b = 232 + 8*(G % 2); acc = vAcc + 16*ft
        items.append(("wait", G))
        for i in range(4):
            r = acc + 4*g + i
            items.append(("v", f"v_fma_f32 v{r}, v{r}, v{vA}, v{b+4+i}"))
            items.append(("v", f"v_fma_f32 v{r}, -v{vB}, v{b+i}, v{r}"))
        items.append(("next", G + 2))
        for i in range(4):
            r = acc + 4*g + i
            items.append(("v", f"v_max_f32 v{r}, 0, v{r}"))
            items.append(("v", f"v_mul_f32 v{r}, v{r}, v{r}"))
        for dd in range(2):
            d = 2*g + dd
            items.append(("v", f"v_cvt_pk_bf16_f32 v{acc+d}, v{acc+2*d}, v{acc+2*d+1}"))
        if g == 3: items.append(("st", ft))
    nv = sum(1 for it in items if it[0] == "v")
    def run_items(budget):
        done = 0
        while items and done < budget:
            it = items.pop(0)
            if it[0] == "v": e(it[1]); done += 1
            elif it[0] == "wait": lwait(gid[it[1]])
            elif it[0] == "next":
                if it[1] < 16: grp_reads(it[1])
            elif it[0] == "st": store_tile(it[1])
    for n in range(PRE): issue4(n)
    for n, (s, ft) in enumerate(seq):
        passB = n >= 96
        if not passB and ft == 0:
            e(f"s_waitcnt vmcnt({XA + 7 if s < XA else min(XA, 32-s)-1})")
            if s == 0: fstamp("p4x0")
            if s + XA < 32: x_load(s + XA, vX + 4*(s + XA))
        if not passB and ft == 1 and s == XA:
            reduce_partials(232); finish_stats(232, vA, vB)
        if n == 96:
            fstamp("p4A")
            Lnb4 = a.new("L_nob4b")
            e(f"s_cmp_lg_u32 s{sL}, 0"); e(f"s_cbranch_scc1 {Lnb4}")
            cs_wait(7, 14)
            a.lab(Lnb4)
            grp_reads(0); grp_reads(1)
        lwait(rid[n])
        acc = vAcc + 16*ft; x = vX + 4*s; w = slot4(n)
        e(f"{MF} {V(acc,16)}, {V(w,4)}, {V(x,4)}, {'0' if s == 0 else V(acc,16)}")
        if n + PRE < len(seq): issue4(n + PRE)
        if n == 96: a.nop(10)
        if passB and n > 96: run_items(7)
    run_items(10**6)
    fstamp("p4main")
    if args.c4lds:
        e(f"v_mov_b32 v14, {L_C4C}"); e("v_mov_b32 v15, 1"); e("s_mov_b64 exec, 1")
        lds("ds_add_u32 v14, v15"); e("s_mov_b64 exec, -1")
    else:
        e("s_barrier")
    acc = vAcc + 48
    for G in range(12, 16):
        g = G - 12; b = 232 + 8*(G % 2)
        lwait(gid[G])
        if G == 12: a.nop(8)
        for p in range(2):
            r = acc + 4*g + 2*p
            e(f"v_pk_fma_f32 {V(r,2)}, {V(r,2)}, {V(vA,2)}, {V(b+4+2*p,2)} op_sel_hi:[1,0,1]")
            e(f"v_pk_fma_f32 {V(r,2)}, {V(b+2*p,2)}, {V(vB,2)}, {V(r,2)} op_sel_hi:[1,0,1] neg_lo:[0,1,0] neg_hi:[0,1,0]")
        if G + 2 < 16: grp_reads(G + 2)
        for p in range(2):
            r = acc + 4*g + 2*p
            e(f"v_max_f32 v{r}, 0, v{r}"); e(f"v_max_f32 v{r+1}, 0, v{r+1}")
            e(f"v_pk_mul_f32 {V(r,2)}, {V(r,2)}, {V(r,2)}")
        for dd in range(2):
            d = 2*g + dd
            e(f"v_cvt_pk_bf16_f32 v{acc+d}, v{acc+2*d}, v{acc+2*d+1}")
    store_tile(3)
    fstamp("p4pre")
    e("s_waitcnt vmcnt(0)")
    fstamp("p4drain")
    e(f"s_branch {Lp4e}")
    a.lab(Lidle)
    e("s_barrier")
    if args.c4lds:
        e(f"v_mov_b32 v14, {L_C4C}"); e("v_mov_b32 v15, 1"); e("s_mov_b64 exec, 1")
        e("ds_add_u32 v14, v15"); e("s_mov_b64 exec, -1")
    else:
        e("s_barrier")
    a.lab(Lp4e)
    team_signal(3, 4)
    fstamp("p4flag")
    if STOP == 4:
        e("s_waitcnt vmcnt(0) lgkmcnt(0)"); e("s_branch L_end")

    e(f"v_lshrrev_b32 v7, 5, v{vLANE}"); e(f"v_lshlrev_b32 v7, 4, v7")
    e(f"s_lshr_b32 s{sT0}, s{sW}, 1"); e(f"s_lshl_b32 s{sT0}, s{sT0}, 7"); e(f"s_add_u32 s{sT0}, s{sT0}, {L_B2}")
    e(f"v_add_u32 v7, s{sT0}, v7")
    for g in range(4): e(f"ds_read_b128 {V(32+4*g,4)}, v7 offset:{g*32}")
    e("s_waitcnt lgkmcnt(0)")
    unpack_res(48, 32)
    fstamp("p5pp")
    team_wait(3, 4)
    if args.fine and "p5cnt" in args.fine.split(","):
        k = args.fine.split(",").index("p5cnt"); e(f"s_mov_b32 s{64+2*k}, s{sCNT}")
    fstamp("p5poll")
    tile_ids()
    e(f"s_mul_i32 s{sT0+2}, s{sT0+3}, 56")
    NX = args.xahead5
    x_setup(HF, 112, sT0+2, sT0+4)
    def x5(k):
        if args.p5nox and k >= NX: return
        x_load(k, 64 + 4*(k % NX))
    for k in range(NX): x5(k)
    e(f"s_lshl_b32 s{sT0+8}, s{sT0+3}, 14")
    n64_bases(4, 5, sT0+8)
    e("v_add_u32 v8, 65536, v4"); e("v_add_u32 v9, 65536, v5")
    vWf = 176
    def wread5(s):
        q, ss = divmod(s, 8); dst = vWf + 8*(s % 3); off = (q % 4)*32768 + ss*2048
        b0, b1 = (8, 9) if off >= 65536 else (4, 5); off %= 65536
        e(f"ds_read_b64_tr_b16 {V(dst,2)}, v{b0} offset:{off}"); e(f"ds_read_b64_tr_b16 {V(dst+2,2)}, v{b0} offset:{off+1024}")
        e(f"ds_read_b64_tr_b16 {V(dst+4,2)}, v{b1} offset:{off}"); e(f"ds_read_b64_tr_b16 {V(dst+6,2)}, v{b1} offset:{off+1024}")
    e("s_barrier")
    fstamp("p5B")
    wread5(0); wread5(1)
    for s in range(56):
        e(f"s_waitcnt vmcnt({min(56, s + NX) - s - 1})")
        if s + 2 < 56:
            if (s + 2) % 8 == 0: e("s_barrier")
            wread5(s + 2)
        e(f"s_waitcnt lgkmcnt({4*min(2, 55-s)})")
        w = vWf + 8*(s % 3); x = 64 + 4*(s % NX)
        e(f"{MF} v[16:31], {V(w,4)}, {V(x,4)}, {'v[48:63]' if s == 0 else 'v[16:31]'}")
        e(f"{MF} v[32:47], {V(w+4,4)}, {V(x,4)}, {'0' if s == 0 else 'v[32:47]'}")
        if s + NX < 56: x5(s + NX)
    fstamp("p5main")
    exchange_and_epilogue(True)
    if STOP == 5:
        e("s_waitcnt vmcnt(0) lgkmcnt(0)"); e("s_branch L_end")
    e(f"s_mov_b32 s{sL}, 1"); e(f"s_mov_b32 s{sKVO}, {LSTRIDE}")
    e("s_branch L_p1_l1")
    a.lab("L_end")
    if args.fine:
        n = len(args.fine.split(","))
        e("s_waitcnt lgkmcnt(0)")
        e("s_cmp_ge_u32 s2, 256"); e("s_cbranch_scc1 L_end2")
        e(f"s_lshl_b32 s98, s2, 3"); e(f"s_add_u32 s98, s98, s{sW}"); e(f"s_lshl_b32 s98, s98, 8"); e(f"s_add_u32 s98, s98, {STAMP}")
        e("v_mov_b32 v3, 0"); e("s_mov_b64 exec, 1")
        for k in range(n):
            e(f"v_mov_b32 v2, s{64+2*k}")
            e(f"buffer_store_dword v2, v3, {srd(sWS)}, s98 offen offset:{4*k}"); e("s_nop 1")
        a.lab("L_end2")
    e("s_endpgm")
    return a.text()

HEADER = """; Fused 2-layer (sliding-window attention + squared-ReLU MLP) megakernel for gfx950.
; @launch grid=(256,1,1) block=(512,1,1) lds=163840
.amdgcn_target "amdgcn-amd-amdhsa--gfx950"
.text
.globl {n}_kernel
.p2align 8
.type {n}_kernel,@function
{n}_kernel:
"""
FOOTER = """.section .rodata,"a"
.p2align 6
.amdhsa_kernel {n}_kernel
  .amdhsa_next_free_vgpr 256
  .amdhsa_next_free_sgpr 102
  .amdhsa_accum_offset 256
  .amdhsa_group_segment_fixed_size 0
  .amdhsa_kernarg_size 88
  .amdhsa_user_sgpr_count 2
  .amdhsa_user_sgpr_kernarg_segment_ptr 1
  .amdhsa_system_sgpr_workgroup_id_x 1
.end_amdhsa_kernel
"""
def parse(argv=None):
    ap = argparse.ArgumentParser()
    ap.add_argument("--stop", type=int, default=-1)
    ap.add_argument("--slow", action="store_true")
    ap.add_argument("--dbgq", action="store_true")
    ap.add_argument("--rt", action="store_true")
    ap.add_argument("--fine", default="")
    ap.add_argument("--xahead", type=int, default=8)
    ap.add_argument("--xahead0", type=int, default=12)
    ap.add_argument("--xahead5", type=int, default=12)
    ap.add_argument("--w2sleep", type=int, default=1)
    ap.add_argument("--nobg", type=int, default=0)
    ap.add_argument("--c4lds", type=int, default=1)
    ap.add_argument("--kvh", type=int, default=0)
    ap.add_argument("--pkf", type=int, default=0)
    ap.add_argument("--diag", type=int, default=0)
    ap.add_argument("--plog", type=int, default=22)
    ap.add_argument("--cpf", type=int, default=1)
    ap.add_argument("--l0w2s", type=int, default=1)
    ap.add_argument("--touch", type=int, default=0)
    ap.add_argument("--packq", type=int, default=-1)
    ap.add_argument("--packst", type=int, default=0)
    ap.add_argument("--regq", type=int, default=2)
    ap.add_argument("--xreg", type=int, default=1)
    ap.add_argument("--l0pre", type=int, default=16)
    ap.add_argument("--w1late", type=int, default=0)
    ap.add_argument("--psleep", type=int, default=1)
    ap.add_argument("--kvsleep", type=int, default=1)
    ap.add_argument("--p2prio", type=int, default=0)
    ap.add_argument("--pfa", type=int, default=0)
    ap.add_argument("--pfa_n", type=int, default=40)
    ap.add_argument("--pfb", type=int, default=0)
    ap.add_argument("--hpre", type=int, default=0)
    ap.add_argument("--nomax", type=int, default=1)
    ap.add_argument("--forcefb", type=int, default=0)
    ap.add_argument("--w2pre", type=int, default=7)
    ap.add_argument("--w2late", type=int, default=0)
    ap.add_argument("--ringpre", type=int, default=4)
    ap.add_argument("--w2s", default="3,3,2,2,1,1,1")
    ap.add_argument("--prio", type=int, default=0)
    ap.add_argument("--prio2", type=int, default=0)
    ap.add_argument("--p5nox", type=int, default=0)
    ap.add_argument("--p5now", type=int, default=0)
    ap.add_argument("--bg1", type=int, default=1)
    ap.add_argument("--bg2", type=int, default=1)
    ap.add_argument("--bgorder", type=int, default=0)
    ap.add_argument("--pf0", type=int, default=0)
    ap.add_argument("--pfq", type=int, default=2)
    ap.add_argument("-o", default="/dev/stdout")
    return ap.parse_args(argv)
if __name__ == "__main__":
    args = parse()
    open(args.o, "w").write(HEADER.format(n=NAME) + build(args) + FOOTER.format(n=NAME))
```
